```python
import torch

def _softmax(x, axis=-1):
    return torch.softmax(x, dim=axis)

def _gelu(x):
    return torch.nn.functional.gelu(x, approximate='tanh')

def _silu(x):
    return torch.nn.functional.silu(x)

def _sigmoid(x):
    return torch.sigmoid(x)

def _layernorm(x, axis=-1, eps=1e-05):
    m = x.mean(dim=axis, keepdim=True)
    v = x.var(dim=axis, keepdim=True, unbiased=False)
    return (x - m) / torch.sqrt(v + eps)

def _scatter_add(tgt, idx, src, axis=0):
    return tgt.clone().index_add_(axis, idx, src)

def _segment_sum(src, seg, n):
    out = torch.zeros((n,) + src.shape[1:], dtype=src.dtype)
    return out.index_add_(0, seg, src)

def _pad(x, pw):
    flat = tuple((v for pair in reversed(pw) for v in pair))
    return torch.nn.functional.pad(x, flat)
kernel_name = 'gated_mix__memory_aug_recurrent_mem_tr__geglu_ffn__prompt'

def setup_inputs():

    _w = lambda a: (lambda t: t.to(torch.bfloat16) if t.is_floating_point() else t)(torch.as_tensor(a))

    def _A_setup():
        B, S, Dm = (1, 2048, 1024)
        H, Dh = (32, 128)
        M, seg = (8, 32)
        seg = min(seg, S)
        S = S // seg * seg
        return {'x': _w((lambda *s: torch.randn(*s, dtype=torch.bfloat16) * 0.05)(B, S, Dm)), 'mem0': _w((lambda *s: torch.randn(*s, dtype=torch.bfloat16) * 0.4)(B, M, Dm)), 'Wq': _w((lambda *s: torch.randn(*s, dtype=torch.bfloat16) * 6.4)(Dm, H, Dh) * Dm ** (-0.5)), 'Wk': _w((lambda *s: torch.randn(*s, dtype=torch.bfloat16) * 6.4)(Dm, H, Dh) * Dm ** (-0.5)), 'Wv': _w((lambda *s: torch.randn(*s, dtype=torch.bfloat16) * 0.4)(Dm, H, Dh) * Dm ** (-0.5)), 'Wo': _w((lambda *s: torch.randn(*s, dtype=torch.bfloat16) * 0.4)(H, Dh, Dm) * (H * Dh) ** (-0.5)), 'seg_len': seg}
    _A_in = _A_setup()

    def _B_setup():
        B, S, D, F = (1, 2048, 1024, 3584)
        return {'x': _w((lambda *s: torch.randn(*s, dtype=torch.bfloat16) * 0.05)(B, S, D)), 'w_gate': _w((lambda *s: torch.randn(*s, dtype=torch.bfloat16) * 0.05)(D, F)), 'w_up': _w((lambda *s: torch.randn(*s, dtype=torch.bfloat16) * 0.05)(D, F)), 'w_down': _w((lambda *s: torch.randn(*s, dtype=torch.bfloat16) * 0.05)(F, D))}
    _B_in = _B_setup()
    return {'A_x': _A_in['x'], 'A_mem0': _A_in['mem0'], 'A_Wq': _A_in['Wq'], 'A_Wk': _A_in['Wk'], 'A_Wv': _A_in['Wv'], 'A_Wo': _A_in['Wo'], 'A_seg_len': _A_in['seg_len'], 'B_x': _B_in['x'], 'B_w_gate': _B_in['w_gate'], 'B_w_up': _B_in['w_up'], 'B_w_down': _B_in['w_down'], 'gate_w': _w((lambda *s: torch.randn(*s, dtype=torch.bfloat16) * 0.05)(1024) * 16.0)}

def reference(A_x, A_mem0, A_Wq, A_Wk, A_Wv, A_Wo, A_seg_len, B_x, B_w_gate, B_w_up, B_w_down, gate_w):

    def _A_ref(x, mem0, Wq, Wk, Wv, Wo, seg_len):
        B, S, Dm = x.shape
        H, Dh = (Wq.shape[1], Wq.shape[2])
        M = mem0.shape[1]
        scale = Dh ** (-0.5)
        n_seg = S // seg_len
        L = M + seg_len
        idx = torch.arange(L)
        mask = (idx[:, None] < M) | (idx[:, None] >= idx[None, :])
        mem = mem0
        outs = []
        for s in range(n_seg):
            xs = x[:, s * seg_len:(s + 1) * seg_len, :].clone()
            h = torch.concatenate([mem, xs], axis=1)
            q = torch.einsum('btd,dhe->bhte', h, Wq)
            k = torch.einsum('btd,dhe->bhte', h, Wk)
            v = torch.einsum('btd,dhe->bhte', h, Wv)
            scores = torch.einsum('bhqe,bhke->bhqk', q, k) * scale
            scores = torch.where(mask[None, None], scores, -1000000000.0)
            p = _softmax(scores, axis=-1)
            o = torch.einsum('bhqk,bhke->bhqe', p, v)
            o = torch.einsum('bhte,hed->btd', o, Wo)
            mem = o[:, :M, :].clone()
            outs.append(o[:, M:, :])
        return torch.concatenate(outs, axis=1)

    def _B_ref(x, w_gate, w_up, w_down):
        return _gelu(x @ w_gate) * (x @ w_up) @ w_down
    x = A_x
    g = _sigmoid((x * gate_w).sum(-1, keepdims=True))
    a = _A_ref(x, A_mem0, A_Wq, A_Wk, A_Wv, A_Wo, A_seg_len)
    b = _B_ref(x, B_w_gate, B_w_up, B_w_down)
    return g * a + (1 - g) * b
```

```python
import re
TRANS=('v_exp_f32','v_log_f32','v_rcp_f32','v_rsq_f32','v_sqrt_f32','v_sin_f32','v_cos_f32')
def regs(tok):
    tok=tok.strip()
    tok=re.sub(r'^-|^abs\(|\)$|^\||\|$','',tok)
    m=re.fullmatch(r'([vas])(\d+)',tok)
    if m: return [(m.group(1),int(m.group(2)))]
    m=re.fullmatch(r'([vas])\[(\d+):(\d+)\]',tok)
    if m: return [(m.group(1),i) for i in range(int(m.group(2)),int(m.group(3))+1)]
    if tok in('vcc','vcc_lo','vcc_hi'): return [('s','vcc')]
    if tok=='exec': return [('s','exec')]
    if tok=='m0': return [('s','m0')]
    return []
def v(i,n=1): return f"v{i}" if n==1 else f"v[{i}:{i+n-1}]"
def a(i,n=1): return f"a{i}" if n==1 else f"a[{i}:{i+n-1}]"
def s(i,n=1): return f"s{i}" if n==1 else f"s[{i}:{i+n-1}]"
class Ins:
    def __init__(self,text):
        self.text=text
        t=text.split(';')[0].strip()
        p=t.split(None,1); self.op=p[0]
        rest=p[1] if len(p)>1 else ''
        rest=re.sub(r'quad_perm:\[(\d),(\d),(\d),(\d)\]',r'quad_perm:\1\2\3\4',rest); rest=re.sub(r'op_sel_hi:\[\d,\d\]','opsel',rest)
        ops=[o.strip() for o in rest.split(',')] if rest else []
        if ops:
            last=ops[-1].split(); ops[-1]=last[0] if last else ''; self.mods=' '.join(last[1:])
        else: self.mods=''
        self.ops=ops; op=self.op
        self.mfma=op.startswith('v_mfma') or op.startswith('v_smfmac')
        self.valu=op.startswith('v_') and not self.mfma
        self.vmem=op.startswith(('buffer_','global_'))
        self.ds=op.startswith('ds_')
        self.salu=op.startswith('s_')
        self.dpp=('_dpp' in op) or any(k in self.mods for k in('row_ror','quad_perm','row_shr','row_shl','row_mirror','row_half_mirror','row_bcast'))
        R=[regs(o) for o in ops]; fl=lambda L:[x for l in L for x in l]
        self.w=[];self.r=[];self.srcC=[];self.ab=[];self.stdata=[]
        if self.mfma:
            self.w=R[0]; self.passes=8 if ('32x32' in op or '16x16x4_f32' in op) else 4
            if op.startswith('v_smfmac'): self.srcC=R[0]; self.ab=R[1]+R[2]+R[3]
            else: self.srcC=R[3]; self.ab=R[1]+R[2]
            self.r=self.ab+self.srcC
        elif self.valu:
            if op.startswith('v_permlane'): self.w=R[0]+R[1]; self.r=R[0]+R[1]
            elif op.startswith(('v_add_co','v_addc_co','v_sub_co')): self.w=R[0]+R[1]; self.r=fl(R[2:])
            elif op=='v_nop': pass
            else:
                self.w=R[0]; self.r=fl(R[1:])
                if op.startswith(('v_fmac','v_dot2c')) or self.dpp: self.r=self.r+R[0]
        elif self.ds:
            if 'read' in op or 'permute' in op or 'swizzle' in op: self.w=R[0]; self.r=fl(R[1:])
            else: self.r=fl(R)
        elif self.vmem:
            lds=' lds' in ' '+self.mods
            if 'store' in op or ('atomic' in op):
                self.r=fl(R)
                if 'x4' in op or 'x3' in op: self.stdata=R[0] if op.startswith('buffer') else R[1]
                if 'atomic' in op and 'sc0' in self.mods: self.w=R[0]
            elif lds: self.r=fl(R)+[('s','m0')]
            else: self.w=R[0]; self.r=fl(R[1:])
        elif self.salu:
            if op.startswith(('s_cmp','s_cbranch','s_branch','s_waitcnt','s_nop','s_barrier','s_sleep','s_setprio','s_endpgm','s_bitcmp')): self.r=fl(R)
            else:
                self.w=R[0] if R else []; self.r=fl(R[1:])
                if 'saveexec' in op: self.w=self.w+[('s','exec')]
        self.states=(int(ops[0],0)+1) if op=='s_nop' else 1
def need(p,c):
    n=0; W=set(p.w)
    hit=lambda L:any(x in W for x in L)
    if p.mfma:
        big={4:8,8:12}[p.passes]
        if c.mfma:
            if hit(c.ab): n=max(n,big)
            if hit(c.srcC) and not (c.srcC==p.w and c.op==p.op): n=max(n,big-2)
            if hit(c.w) and not hit(c.srcC): n=max(n,big-2)
        elif (c.valu or c.vmem or c.ds) and (hit(c.r) or hit(c.w)): n=max(n,big)
        if c.valu and any(x in set(p.srcC) for x in c.w): n=max(n,{4:3,8:7}[p.passes])
    if p.valu:
        vw=[x for x in p.w if x[0]!='s']; sw=set(x for x in p.w if x[0]=='s')
        V=set(vw); hv=lambda L:any(x in V for x in L)
        if c.mfma and hv(c.r): n=max(n,2)
        if c.valu and c.op.startswith('v_permlane') and hv(c.r): n=max(n,2)
        if c.valu and c.dpp and hv(c.r): n=max(n,2)
        if c.op.startswith(('v_readfirstlane','v_readlane')) and hv(c.r): n=max(n,1)
        if p.op in TRANS and c.valu and hv(c.r): n=max(n,1)
        if p.op.startswith('v_dot') and (c.valu or c.vmem or c.ds or c.mfma) and (hv(c.r) or hv(c.w)): n=max(n,3)
        if sw:
            cr=set(c.r)
            if c.op.startswith('s_cbranch_vcc'): cr.add(('s','vcc'))
            if sw&cr:
                if c.vmem: n=max(n,5)
                elif c.valu: n=max(n,4 if c.op.startswith(('v_readlane','v_writelane')) else 2)
                elif c.salu: n=max(n,1)
    if p.salu and ('s','m0') in W and c.vmem and ('s','m0') in c.r: n=max(n,1)
    if p.salu and ('s','exec') in W and c.dpp: n=max(n,1)
    if p.stdata and any(x in set(p.stdata) for x in c.w): n=max(n,2)
    return n
class Asm:
    def __init__(self): self.lines=[]; self.hist=[]; self.nl=0; self.nops=0
    def raw(self,t): self.lines.append(t)
    def label(self,l): self.lines.append(l+':')
    def newlabel(self,p='L'): self.nl+=1; return f"{p}_{self.nl}"
    def __call__(self,text):
        for t in text.split('\n'):
            t=t.strip()
            if not t: continue
            if t.endswith(':'): self.label(t[:-1]); continue
            c=Ins(t); d=0; pad=0
            for p in reversed(self.hist[-14:]):
                pad=max(pad,need(p,c)-d); d+=p.states
            if pad>0:
                self.nops+=pad
                n=Ins(f"s_nop {pad-1}"); self.lines.append('  '+n.text); self.hist.append(n)
            self.lines.append('  '+t); self.hist.append(c)
    def fence(self): self("s_nop 11")
    def text(self): return '\n'.join(self.lines)+'\n'
def interleave(main,fill,start=0,every=None,end=None):
    out=[]; n=len(main); end=n if end is None else end
    m=len(fill); pos={}
    for i,f in enumerate(fill):
        p=start+(i*every if every else (i*(end-start))//max(m,1))
        pos.setdefault(min(p,n-1),[]).append(f)
    for i,x in enumerate(main):
        out.append(x)
        for f in pos.get(i,[]): out += f if isinstance(f,list) else [f]
    return out
```

```python
from asm import *
MB=1<<20
WS_A=0; WS_C=2*MB; WS_FL=2*MB+512*1024; WS_B=3*MB; WS_TS=4*MB
WS_KM=8*MB; WS_VM=16*MB; WS_KX=32*MB; WS_VX=48*MB; WS_QX=64*MB; WS_O=80*MB; WS_H=96*MB; WS_BF=112*MB; WS_G=116*MB
F_KV=0
F_Q=16
F_H=24
F_BF=32
F_O=64
F_PROG=128
NFLAGS=192
D_CNT=0
D_OVF=32; D_INIT=36; D_RDY=40; D_P0=44; D_P1=45; D_ERR=48
S_WS=4; S_A=8; S_B0=12; S_B1=16; S_DBG=20; S_OUT=24
S_VX=28; S_RANK=29; S_W=30; S_Y=31
P_X=64; P_MEM=66; P_WQ=68; P_WK=70; P_WV=72; P_WO=74; P_WG=80; P_WU=82; P_WD=84; P_GW=86; P_OUT=88; P_DBG=90; P_WS=92
S_BUD=94
XA=0; XB=2
def srd(A,d,p,size):
    A(f"s_mov_b32 s{d}, s{p}\ns_mov_b32 s{d+1}, s{p+1}\ns_mov_b32 s{d+2}, {hex(size)}\ns_mov_b32 s{d+3}, 0x20000")
def spin_ge(A,sr,off,target,vt,va,st,soff='0'):
    L=A.newlabel('spin'); E=A.newlabel('spun')
    A(f"v_mov_b32 v{va}, {hex(off)}")
    A.label(L)
    A(f"buffer_load_dword v{vt}, v{va}, {s(sr,4)}, {soff} offen sc1\ns_waitcnt vmcnt(0)\nv_readfirstlane_b32 s{st}, v{vt}")
    A(f"s_cmp_ge_u32 s{st}, {target}\ns_cbranch_scc1 {E}\ns_sleep 4\ns_sub_u32 s{S_BUD}, s{S_BUD}, 1\ns_cbranch_scc0 {L}\ns_mov_b32 s{S_BUD}, 0")
    A.label(E)
```

```python
from common import *
S_SA=32
S_SB=40
S_STA=44; S_STB=45; S_IT=46; S_CUR=47; S_PREV=48; S_RND=49; S_MB=50; S_CT=51
S_EO=52; S_EF=53; S_PEO=54; S_PEF=55; S_T=56
S_M0=95; S_NI=96; S_B1O=97
V_L=0; V_L16=1; V_AO=2; V_BO=3; V_RA=4; V_RB=6; V_T=16; V_FL=14; V_ONE=15; V_BO1=24
F0=128; F1=192; VE=64
LB=0; LA=65536
T_NONE=0;T_BK=1;T_BV=2;T_UP=3;T_SK=4;T_SV=5;T_DN=6;T_FLUSH=7
def dma(T,buf):
    g=[]
    nb=2 if T==8 else 1
    for i in range(T):
        g.append([f"s_add_u32 m0, s{S_M0}, {LA+buf*32768+i*4096}", f"buffer_load_dwordx4 v{V_AO}, {s(S_A,4)}, s{S_SA+i} offen SCA lds"])
    h=[]
    for j in range(nb):
        for i in range(4):
            h.append([f"s_add_u32 m0, s{S_M0}, {LB+buf*32768+j*16384+i*4096}", f"buffer_load_dwordx4 v{V_BO1 if j else V_BO}, {s(S_B1 if j else S_B0,4)}, s{S_SB+i} offen lds"])
    out=[]
    for x,y in zip(h,g): out+= [x,y]
    out[-1]=out[-1]+[f"v_add_u32 v{V_AO}, s{S_STA}, v{V_AO}", f"v_add_u32 v{V_BO}, s{S_STB}, v{V_BO}"]+([f"v_add_u32 v{V_BO1}, s{S_STB}, v{V_BO1}"] if nb==2 else [])
    return [[t.replace(' SCA',' sc1' if T==4 else '') for t in x] for x in out]
def reads(T,F,buf,sub):
    g=[]
    for i in range(T):
        g.append(f"ds_read_b128 {v(F+4*i,4)}, v{V_RA+sub} offset:{buf*32768+i*2048}")
        for half in range(2):
            g.append(f"ds_read_b64_tr_b16 {v(F+32+4*i+2*half,2)}, v{V_RB+i} offset:{buf*32768+(32*sub+4*half)*256}")
    return g
def mfmas(T,F,swap,first):
    g=[]
    for mt in range(T):
        for nt in range(T):
            x=v(F+4*mt,4); w=v(F+32+4*nt,4); d=a(4*(T*mt+nt),4)
            p,q=(w,x) if swap else (x,w)
            g.append(f"v_mfma_f32_16x16x32_bf16 {d}, {p}, {q}, {'0' if first else d}")
    return g
def flag_add(A):
    L=A.newlabel('nf')
    A(f"s_cmp_eq_u32 s{S_PEF}, 0\ns_cbranch_scc1 {L}\nv_mov_b32 v{V_FL}, s{S_PEF}\ns_mov_b64 exec, 1")
    A(f"buffer_atomic_add v{V_ONE}, v{V_FL}, {s(S_WS,4)}, 0 offen\ns_mov_b64 exec, -1\ns_mov_b32 s{S_PEF}, 0")
    A.label(L)
def iteration(A,T,swap,buf,first=False,vm=True,nxt=True,do_dma=True,flag=False):
    n=T*T
    for t in interleave(mfmas(T,F0,swap,first),reads(T,F1,buf,1),start=0,end=n*3//4): A(t)
    A("s_waitcnt vmcnt(0) lgkmcnt(0)" if vm else "s_waitcnt lgkmcnt(0)")
    A("s_barrier")
    if flag: flag_add(A)
    m=mfmas(T,F1,swap,False)
    if nxt: m=interleave(m,reads(T,F0,1-buf,0),start=0,end=n*3//4)
    if do_dma: m=interleave(m,dma(T,buf),start=1,end=len(m)-2)
    for t in m: A(t)
    if nxt: A("s_waitcnt lgkmcnt(0)")
def loop(A,T,swap,name):
    A.label(name)
    A("s_barrier")
    for t in reads(T,F0,0,0): A(t)
    A(f"s_sub_u32 s{S_IT}, s{S_NI}, 4\ns_waitcnt lgkmcnt(0)")
    iteration(A,T,swap,0,first=True,vm=False); iteration(A,T,swap,1,flag=True)
    A.label(name+'_l')
    iteration(A,T,swap,0); iteration(A,T,swap,1)
    A(f"s_sub_u32 s{S_IT}, s{S_IT}, 2\ns_cmp_lg_u32 s{S_IT}, 0\ns_cbranch_scc1 {name}_l")
    iteration(A,T,swap,0,do_dma=False); iteration(A,T,swap,1,vm=False,nxt=False,do_dma=False)
    A("s_branch G_next")
def cvt4(A,dst,accs,tmp):
    for j,ac in enumerate(accs):
        for i in range(4): A(f"v_accvgpr_read_b32 v{tmp+4*j+i}, a{ac+i}")
    for j in range(4): A(f"v_cvt_pk_bf16_f32 v{dst+j}, v{tmp+2*j}, v{tmp+2*j+1}")
def epilogue(A,typ):
    T=8 if typ in(T_BK,T_BV,T_UP) else 4
    acc=lambda mt,nt:4*(T*mt+nt)
    st=[]
    if typ in(T_BK,T_SK): st=[((mt>>1)*262144+(mt&1)*4096,j*1024,(acc(mt,2*j),acc(mt,2*j+1))) for mt in range(T) for j in range(T//2)]
    if typ in(T_BV,T_SV): st=[(j*262144+(nt>>2)*4096,(nt&3)*1024,(acc(2*j,nt),acc(2*j+1,nt))) for j in range(T//2) for nt in range(T)]
    if typ==T_DN: st=[((mt>>1)*65536,j*2048+(mt&1)*1024,(acc(mt,2*j),acc(mt,2*j+1))) for mt in range(T) for j in range(2)]
    if typ==T_UP: st=[(mt*112*1024,j*1024,(acc(mt,2*j),acc(mt,2*j+1))) for mt in range(T) for j in range(2)]
    if typ==T_UP: A(f"s_mov_b32 s{S_T+1}, 0xbdd2d3e8\nv_mov_b32 v{VE+40}, 0xc0135761")
    last=None
    for k,(so,imm,ac) in enumerate(st):
        d=VE+4*(k&3); t=VE+16
        if so!=last: A(f"s_add_u32 s{S_T}, s{S_PEO}, {so}"); last=so
        if typ==T_UP:
            G=t; U=t+8; X=t+16
            for j in range(2):
                for i in range(4): A(f"v_accvgpr_read_b32 v{G+4*j+i}, a{ac[j]+i}")
            for i in range(8): A(f"v_mul_f32 v{X+i}, v{G+i}, v{G+i}")
            for i in range(8): A(f"v_fma_f32 v{X+i}, v{X+i}, s{S_T+1}, v{VE+40}")
            for i in range(8): A(f"v_mul_f32 v{X+i}, v{X+i}, v{G+i}")
            for i in range(8): A(f"v_exp_f32 v{X+i}, v{X+i}\nv_accvgpr_read_b32 v{U+i}, a{ac[i>>2]+16+(i&3)}")
            for i in range(8): A(f"v_add_f32 v{X+i}, 1.0, v{X+i}")
            for i in range(8): A(f"v_rcp_f32 v{X+i}, v{X+i}\nv_mul_f32 v{G+i}, v{G+i}, v{U+i}")
            for i in range(8): A(f"v_mul_f32 v{G+i}, v{G+i}, v{X+i}")
            for j in range(4): A(f"v_cvt_pk_bf16_f32 v{d+j}, v{G+2*j}, v{G+2*j+1}")
        else: cvt4(A,d,ac,t)
        A(f"buffer_store_dwordx4 {v(d,4)}, v{V_L16}, {s(S_WS,4)}, s{S_T} offen offset:{imm} sc1")
    A(f"s_waitcnt vmcnt({len(st)})")
def setup(A,typ,isq=False):
    T=8 if typ in(T_BK,T_BV,T_UP) else 4
    t=V_T; w=S_W; q=S_T
    RS={T_UP:7168,T_DN:2048}.get(typ,8192)
    A(f"s_mov_b32 s{S_CUR}, {typ}\ns_mov_b32 s{S_NI}, {56 if typ==T_DN else 16}\ns_mov_b32 s{S_STB}, {64*RS}")
    A(f"s_lshr_b32 s{q}, s{w}, 1\ns_and_b32 s{q+1}, s{w}, 1")
    P={T_BK:P_WQ if isq else P_WK,T_SK:P_WK,T_BV:P_WV,T_SV:P_WV,T_UP:P_WG,T_DN:P_WD}[typ]
    size=7*MB if typ in(T_UP,T_DN) else 8*MB
    srd(A,S_B0,P,size); srd(A,S_B1,P_WU if typ==T_UP else P,size)
    for i in range(4): A(f"s_mov_b32 s{S_SB+i}, {(4*(2*(i&1)+8*(i>>1)) if typ==T_DN else 16*i)*RS}")
    A(f"v_lshrrev_b32 v{t}, 4, v{V_L}\ns_lshl_b32 s{q+2}, s{q}, 2\nv_or_b32 v{t+1}, s{q+2}, v{t}\nv_bfe_u32 v{t+2}, v{V_L}, 1, 3\nv_xor_b32 v{t+1}, v{t+1}, v{t+2}")
    A(f"v_lshlrev_b32 v{t+1}, 5, v{t+1}\nv_and_b32 v{t+2}, 1, v{V_L}\nv_lshl_add_u32 v{t+1}, v{t+2}, 4, v{t+1}")
    if typ==T_DN: A(f"s_lshl_b32 s{q+2}, s{q+1}, 2\ns_add_u32 s{q+2}, s{q+2}, s{q}\ns_lshl_b32 s{q+2}, s{q+2}, 2")
    else: A(f"s_lshl_b32 s{q+2}, s{w}, 2")
    A(f"v_add_u32 v{t}, s{q+2}, v{t}\nv_mul_u32_u24 v{t}, {RS}, v{t}\ns_lshl_b32 s{q+2}, s{S_CT}, {9 if typ in(T_BK,T_BV) else 8}")
    A(f"v_add3_u32 v{V_BO}, v{t}, v{t+1}, s{q+2}\nv_add_u32 v{V_BO1}, {0 if typ==T_UP else 256}, v{V_BO}")
    if typ==T_DN:
        srd(A,S_A,P_WS,256*MB)
        for i in range(4): A(f"s_mov_b32 s{S_SA+i}, {WS_H+2*i*112*1024}")
        A(f"s_mov_b32 s{S_STA}, 2048\ns_lshl_b32 s{q+2}, s{S_MB}, 3\ns_add_u32 s{q+2}, s{q+2}, s{q}\ns_mul_i32 s{q+2}, s{q+2}, 112\ns_add_u32 s{q+2}, s{q+2}, s{q+1}\ns_lshl_b32 s{q+2}, s{q+2}, 10")
        A(f"v_add_u32 v{V_AO}, s{q+2}, v{V_L16}")
        A(f"s_lshl_b32 s{q+2}, s{q}, 13\ns_add_u32 s{q+2}, s{q+2}, {LA}\nv_add_u32 v{V_RA}, s{q+2}, v{V_L16}\nv_add_u32 v{V_RA+1}, 1024, v{V_RA}")
    else:
        srd(A,S_A,P_X,4*MB)
        for i in range(T): A(f"s_mov_b32 s{S_SA+i}, {i*65536}")
        A(f"s_mov_b32 s{S_STA}, 128\nv_lshrrev_b32 v{t}, 4, v{V_L}\ns_lshl_b32 s{q+2}, s{q+1}, 2\nv_or_b32 v{t}, s{q+2}, v{t}\nv_and_b32 v{t+1}, 7, v{V_L}\nv_xor_b32 v{t}, v{t}, v{t+1}")
        A(f"v_lshrrev_b32 v{t+1}, 3, v{V_L}\nv_lshlrev_b32 v{t+1}, 11, v{t+1}\nv_lshl_add_u32 v{t}, v{t}, 4, v{t+1}")
        A(f"s_lshl_b32 s{q+2}, s{S_MB}, {19 if T==8 else 18}\ns_lshl_b32 s{q+3}, s{w}, 14\ns_add_u32 s{q+2}, s{q+2}, s{q+3}\nv_add_u32 v{V_AO}, s{q+2}, v{t}")
        A(f"v_and_b32 v{t}, 15, v{V_L}\nv_lshrrev_b32 v{t+1}, 4, v{V_L}\nv_lshrrev_b32 v{t+2}, 1, v{t}\nv_xor_b32 v{t+1}, v{t+1}, v{t+2}\nv_lshlrev_b32 v{t}, 7, v{t}\nv_lshl_add_u32 v{t}, v{t+1}, 4, v{t}")
        A(f"s_mul_i32 s{q+2}, s{q}, {T*2048}\ns_add_u32 s{q+2}, s{q+2}, {LA}\nv_add_u32 v{V_RA}, s{q+2}, v{t}\nv_xor_b32 v{V_RA+1}, 64, v{V_RA}")
    for b in range(2):
        for g in dma(T,b):
            for x in g: A(x)
    A(f"v_lshrrev_b32 v{t}, 4, v{V_L}\nv_bfe_u32 v{t+1}, v{V_L}, 2, 2\nv_lshl_add_u32 v{t}, v{t}, 3, v{t+1}\nv_lshlrev_b32 v{t}, 8, v{t}\nv_and_b32 v{t+1}, 3, v{V_L}\nv_lshl_add_u32 v{t}, v{t+1}, 3, v{t}")
    A(f"v_bfe_u32 v{t+1}, v{V_L}, 2, 3\nv_lshl_add_u32 v{t}, v{t+1}, 5, v{t}")
    if typ in(T_BK,T_BV):
        A(f"s_lshl_b32 s{q+2}, s{q+1}, 14\nv_add_u32 v{t}, s{q+2}, v{t}")
        for i in range(8): A(f"v_xor_b32 v{V_RB+i}, {i*32}, v{t}")
    else:
        A(f"s_lshl_b32 s{q+2}, s{q+1}, 7\nv_xor_b32 v{t}, s{q+2}, v{t}")
        for i in range(T): A(f"v_xor_b32 v{V_RB+i}, {(i&3)*32+(i>>2)*16384}, v{t}")
    if typ in(T_BK,T_BV):
        base=WS_QX if isq else (WS_KX if typ==T_BK else WS_VX)
        A(f"s_lshl_b32 s{q+2}, s{S_MB}, 21\ns_lshl_b32 s{q+3}, s{q}, 20\ns_add_u32 s{q+2}, s{q+2}, s{q+3}\ns_lshl_b32 s{q+3}, s{S_CT}, 14\ns_add_u32 s{q+2}, s{q+2}, s{q+3}\ns_lshl_b32 s{q+3}, s{q+1}, 13")
        fl=F_Q if isq else F_KV+1
    elif typ in(T_SK,T_SV):
        base=WS_KX if typ==T_SK else WS_VX
        A(f"s_lshl_b32 s{q+2}, s{S_MB}, 20\ns_lshl_b32 s{q+3}, s{q}, 19\ns_add_u32 s{q+2}, s{q+2}, s{q+3}\ns_lshl_b32 s{q+3}, s{S_CT}, 13\ns_add_u32 s{q+2}, s{q+2}, s{q+3}\ns_lshl_b32 s{q+3}, s{q+1}, {11 if typ==T_SK else 12}")
        fl=F_KV
    elif typ==T_UP:
        base=WS_H
        A(f"s_lshl_b32 s{q+2}, s{S_MB}, 1\ns_add_u32 s{q+2}, s{q+2}, s{q}\ns_mul_i32 s{q+2}, s{q+2}, {8*112*1024}\ns_lshl_b32 s{q+3}, s{S_CT}, 12\ns_add_u32 s{q+2}, s{q+2}, s{q+3}\ns_lshl_b32 s{q+3}, s{q+1}, 11")
        fl=F_H
    else:
        base=WS_BF
        A(f"s_lshl_b32 s{q+2}, s{S_MB}, 18\ns_lshl_b32 s{q+3}, s{q}, 17\ns_add_u32 s{q+2}, s{q+2}, s{q+3}\ns_lshl_b32 s{q+3}, s{S_CT}, 13\ns_add_u32 s{q+2}, s{q+2}, s{q+3}\ns_lshl_b32 s{q+3}, s{q+1}, 12")
        fl=F_BF
    A(f"s_add_u32 s{q+2}, s{q+2}, s{q+3}\ns_add_u32 s{S_EO}, s{q+2}, {base}")
    A(f"s_lshl_b32 s{q+2}, s{S_MB}, 7\ns_add_u32 s{q+2}, s{q+2}, {WS_FL+fl*128}\ns_cmp_eq_u32 s{w}, 0\ns_cselect_b32 s{S_EF}, s{q+2}, 0")
    A("s_branch G_epi")
def ts(A,slot):
    pass
def gemm_role(A,sched,after,stamp):
    A.label('G_start')
    A(f"s_mov_b32 s{S_EF}, 0\ns_mov_b32 s{S_EO}, 0\ns_mov_b32 s{S_PREV}, 0\ns_mov_b32 s{S_PEF}, 0\ns_mov_b32 s{S_PEO}, 0\ns_lshl_b32 s{S_RND}, s{S_Y}, 4\ns_lshl_b32 s{S_M0}, s{S_W}, 10\nv_mov_b32 v{V_ONE}, 1")
    A("s_branch G_disp")
    A.label('G_next')
    A(f"s_mov_b32 s{S_PREV}, s{S_CUR}\ns_mov_b32 s{S_PEO}, s{S_EO}\ns_mov_b32 s{S_PEF}, s{S_EF}")
    A.label('G_next2')
    stamp(A)
    A(f"s_add_u32 s{S_RND}, s{S_RND}, 1")
    A.label('G_disp')
    i=S_RANK
    for y,tasks in enumerate(sched):
        for r,tk in enumerate(tasks):
            L=A.newlabel('d')
            A(f"s_cmp_lg_u32 s{S_RND}, {y*16+r}\ns_cbranch_scc1 {L}")
            k=tk[0]
            if k=='flush': A(f"s_mov_b32 s{S_CUR}, {T_FLUSH}\ns_branch G_epi")
            elif k=='kv7': A(f"s_mov_b32 s{S_MB}, 7\ns_and_b32 s{S_CT}, s{i}, 15\ns_cmp_lt_u32 s{i}, 16\ns_cbranch_scc1 G_s_bk\ns_branch G_s_bv")
            else:
                mb0,lg,ct0=tk[1:]
                A(f"s_and_b32 s{S_MB}, s{i}, {(1<<lg)-1}\ns_add_u32 s{S_MB}, s{S_MB}, {mb0}\ns_lshr_b32 s{S_CT}, s{i}, {lg}\ns_add_u32 s{S_CT}, s{S_CT}, {ct0}\ns_branch G_s_{k}")
            A.label(L)
    A(f"s_branch {after}")
    for k,typ,isq in(('bk',T_BK,0),('bq',T_BK,1),('bv',T_BV,0),('up',T_UP,0),('sk',T_SK,0),('sv',T_SV,0),('dn',T_DN,0)):
        A.label('G_s_'+k)
        if k=='dn':
            A(f"s_lshr_b32 s{S_T}, s{S_MB}, 1\ns_lshl_b32 s{S_T}, s{S_T}, 7")
            spin_ge(A,S_WS,WS_FL+F_H*128,28,V_T,V_T+1,S_T+1,soff=f"s{S_T}")
        setup(A,typ,isq)
    A.label('G_epi')
    for typ in(T_BK,T_BV,T_UP,T_SK,T_SV,T_DN): A(f"s_cmp_eq_u32 s{S_PREV}, {typ}\ns_cbranch_scc1 G_e_{typ}")
    spin_ge(A,S_DBG,D_INIT*4,1,V_T,V_T+1,S_T+1)
    A("s_waitcnt vmcnt(0)\ns_branch G_ld")
    for typ in(T_BK,T_BV,T_UP,T_SK,T_SV,T_DN):
        A.label(f'G_e_{typ}'); A.fence(); epilogue(A,typ); A("s_branch G_ld")
    A.label('G_ld')
    for typ,n in((T_BK,'bs'),(T_UP,'bs'),(T_BV,'bn'),(T_SK,'ss'),(T_DN,'ss'),(T_SV,'sn')): A(f"s_cmp_eq_u32 s{S_CUR}, {typ}\ns_cbranch_scc1 G_l_{n}")
    A("s_waitcnt vmcnt(0)\ns_barrier"); flag_add(A); A(f"s_mov_b32 s{S_PREV}, 0\ns_branch G_next2")
    loop(A,8,True,'G_l_bs'); loop(A,8,False,'G_l_bn'); loop(A,4,True,'G_l_ss'); loop(A,4,False,'G_l_sn')
```

```python
from common import *
L_MEM=131072; L_X=139264; L_VM=143360; L_KX=145408; L_VX=153600
IDX=2; MW=3; XW=7; XR=8; L8=9; VMR=10; VMW=11; KXR=12; WV=13; BS=15; BL=16; L4=17; T0=18; T1=19
SEL1=20; SEL2=24; NEG=28; PB1=32; PB2=36; SENT=40; ONES=44; M=48
S_X=32; S_S=33; S_AO=34; S_AI=35; S_AOV=36; S_AIV=37; S_B=38; S_B2=39; S_CL=40; S_CS=41; S_CC=42; S_KX=43; S_VXO=44
S_KM=45; S_VM=46; S_PR=47; S_FI=48; S_FT=49; S_SC=50; S_M0K=51; S_M0V=52; S_BC=53; S_AVC=54; S_HI=55; Q=56; S_CLB=62; S_CSB=63
WS=s(S_WS,4)
def smf(d,A_,B_): return f"v_smfmac_f32_16x16x64_bf16 {v(d,4)}, {v(A_,4)}, {B_}, v{IDX}"
def mf(d,A_,B_,c): return f"v_mfma_f32_16x16x32_bf16 {v(d,4)}, {v(A_,4)}, {v(B_,4)}, {c if isinstance(c,str) else v(c,4)}"
def trimm(ksl,m): return (64*ksl+8*(m>>1)+2*(m&1))*256
DEF=[]
def retry(A,L,pre=None):
    F=A.newlabel('fail'); E=A.newlabel('ok')
    A(f"s_cbranch_vccnz {F}"); A.label(E)
    DEF.append((F,E,L,pre))
def flush_def(A):
    for F,E,L,pre in DEF:
        A.label(F)
        A(f"s_nop 7\ns_sub_u32 s{S_BUD}, s{S_BUD}, 1\ns_cbranch_scc0 {F}_r\ns_mov_b32 s{S_BUD}, 0\ns_branch {E}")
        A.label(F+'_r')
        if pre: A(pre)
        A(f"s_branch {L}")
    DEF.clear()
def wv_read(n,buf):
    i,t=n>>1,n&1
    r=[f"ds_read_b64_tr_b16 {v(buf+2*m,2)}, v{WV+t} offset:{trimm(i&1,m)}" for m in range(4)]
    if i&1: r.append(f"v_xor_b32 v{WV+t}, {[1,3,1,3][i>>1]*32768}, v{WV+t}")
    return r
WBUF=[96,104,120]
def cwait_fill(A):
    for n in range(3):
        for t in wv_read(n,WBUF[n]): A(t)
    for r in list(range(80,96,2))+list(range(112,120,2)): A(f"v_mov_b64 {v(r,2)}, 0")
def step_loop(A,name,slow,stamp,o):
    sc=' sc1' if slow else ''
    A.label(name)
    A(f"ds_write_b128 v{MW}, {v(M,4)}\nds_write_b128 v{MW}, {v(M+4,4)} offset:1024")
    qk=lambda i:[smf(80,M+4*i,a((i*2)*8,8)),smf(84,M+4*i,a(128+(i*2)*8,8)),smf(88,M+4*i,a((i*2+1)*8,8)),smf(92,M+4*i,a(128+(i*2+1)*8,8))]
    for t in qk(0)[:3]: A(t)
    A("s_waitcnt lgkmcnt(0)\ns_barrier")
    for i in range(2,8): A(f"ds_read_b128 {v(M+4*i,4)}, v{MW+(i>>1)} offset:{(i&1)*1024}")
    A(qk(0)[3])
    for t in qk(1): A(t)
    nf=A.newlabel('nf')
    side=[[f"s_mov_b32 m0, s{S_M0V}",f"buffer_load_dwordx4 v1, {WS}, s{S_VXO} offen sc1 lds"],[f"buffer_load_dwordx4 v1, {WS}, s{S_VXO} offen offset:1024 sc1 lds",f"s_add_u32 s{S_VXO}, s{S_VXO}, 0x40000"],
          [f"buffer_load_dword v{T0}, off, {WS}, s{S_FI} sc1"],
          [f"buffer_store_dwordx4 {v(SENT,4)}, v{BL}, {WS}, s{S_BC} offen{sc}"],[f"buffer_store_dwordx4 {v(SENT,4)}, v{BL}, {WS}, s{S_BC} offen offset:1024{sc}"],
          [f"buffer_store_dwordx2 {v(SENT,2)}, v{L8}, {WS}, s{S_AVC} offen sc1"],
          [f"s_cmp_lg_u32 s{S_W}, 0",f"s_cbranch_scc1 {nf}",f"v_mov_b32 v{T1}, s{S_S}","s_mov_b64 exec, 1",f"buffer_store_dword v{T1}, off, {WS}, s{S_PR} sc1","s_mov_b64 exec, -1",nf+':']]
    m=[]
    for i in range(2,6): m+=[f"s_waitcnt lgkmcnt({7-i})\n"+qk(i)[0]]+qk(i)[1:]
    for t in interleave(m,side,start=0,every=2): A(t)
    A("s_waitcnt lgkmcnt(0)")
    a6,a7=qk(6),qk(7)
    for t in [a6[0],a6[1],a7[0],a7[1],a6[2],a6[3],a7[2],a7[3]]: A(t)
    vs=lambda n,buf:smf(112+4*(n&1),M+4*(n>>1),v(buf,8))
    A(vs(0,WBUF[0]))
    for i in range(4): A(f"v_permlane32_swap_b32 v{80+i}, v{84+i}")
    A(f"v_pk_add_f32 {v(80,2)}, {v(80,2)}, {v(84,2)}\nv_pk_add_f32 {v(82,2)}, {v(82,2)}, {v(86,2)}")
    for i in range(4): A(f"v_permlane32_swap_b32 v{88+i}, v{92+i}")
    A(f"v_cvt_pk_bf16_f32 v84, v80, v81\nv_cvt_pk_bf16_f32 v85, v82, v83")
    A(f"v_pk_add_f32 {v(88,2)}, {v(88,2)}, {v(92,2)}\nv_pk_add_f32 {v(90,2)}, {v(90,2)}, {v(94,2)}")
    A(f"v_cvt_pk_bf16_f32 v86, v88, v89\nv_cvt_pk_bf16_f32 v87, v90, v91")
    A(f"buffer_store_dwordx4 {v(84,4)}, v1, {WS}, s{S_AO} offen sc1")
    buf={0:WBUF[0],1:WBUF[1],2:WBUF[2]}; free=[WBUF[0]]; nxt=3
    ldA=f"buffer_load_dwordx4 {v(92,4)}, v1, {WS}, s{S_AI} offen sc1"
    for n in range(1,16):
        while free and nxt<16:
            b=free.pop(0); buf[nxt]=b
            for t in wv_read(nxt,b): A(t)
            nxt+=1
        if n>=3: A(f"s_waitcnt lgkmcnt({min(15,4*(nxt-1-n))})")
        A(vs(n,buf[n])); free.append(buf[n])
        if n&3==3 and n<8: free.append(M+8*(n>>2))
        if n==o.get('pa',13): A(ldA)
    for i in range(8): A(f"ds_read_b128 {v(M+4*i,4)}, v{KXR} offset:{i*1024}")
    for i in range(4): A(f"v_permlane32_swap_b32 v{116+i}, v{112+i}")
    A(f"v_pk_add_f32 {v(112,2)}, {v(112,2)}, {v(116,2)}\nv_pk_add_f32 {v(114,2)}, {v(114,2)}, {v(118,2)}\nv_cvt_pk_bf16_f32 v120, v112, v113\nv_cvt_pk_bf16_f32 v121, v114, v115")
    A(f"s_waitcnt vmcnt(2)\nbuffer_store_dwordx2 {v(120,2)}, v{L8}, {WS}, s{S_AOV} offen sc1\nds_write_b64 v{VMW}, {v(120,2)}\nbuffer_store_dwordx2 {v(120,2)}, v{L8}, {WS}, s{S_VM} offen sc1")
    LA=A.newlabel('pa'); LA2=A.newlabel('pa')
    A(f"s_add_u32 s{S_VM}, s{S_VM}, 0x20000\ns_waitcnt vmcnt(2)")
    A.label(LA)
    A("v_cmp_eq_u32 vcc, -1, v92")
    for i in range(4): A(f"v_lshlrev_b32 v{112+2*i}, 16, v{92+i}\nv_and_b32 v{113+2*i}, s{S_HI}, v{92+i}")
    retry(A,LA,ldA+"\ns_waitcnt vmcnt(0)")
    ldV=[f"buffer_load_dwordx2 {v(98+4*p,2)}, v{L8}, {WS}, s{S_AIV} offen offset:{p*512} sc1" for p in range(4)]
    for i,r in enumerate((80,82,88,90)): A(f"v_pk_add_f32 {v(r,2)}, {v(r,2)}, {v(112+2*i,2)}")
    for i,r in enumerate((80,82,88,90)): A(f"v_cvt_pk_bf16_f32 v{84+i}, v{r}, v{r+1}")
    A(f"ds_write_b64 v{XW}, {v(84,2)}\nds_write_b64 v{XW}, {v(86,2)} offset:512")
    A(ldV[0]); A(ldV[1])
    A("s_waitcnt lgkmcnt(0)\ns_barrier")
    for i in range(8): A(f"ds_read_b64_tr_b16 {v(80+2*i,2)}, v{XR} offset:{i*512}")
    A(ldV[2]); A(ldV[3])
    A(f"v_readfirstlane_b32 s{Q}, v{T0}\nv_lshl_add_u32 v{T1}, s{S_W}, 10, v{XR}")
    A(f"ds_read_b64_tr_b16 {v(124,2)}, v{T1}\nds_read_b64_tr_b16 {v(126,2)}, v{T1} offset:512")
    for p in range(4): A(f"ds_read_b64 {v(96+4*p,2)}, v{VMR} offset:{p*512}")
    kvw=A.newlabel('kvw'); kvr=A.newlabel('kvr')
    A(f"s_cmp_lt_u32 s{Q}, s{S_FT}\ns_cbranch_scc1 {kvw}")
    A.label(kvr)
    nx=A.newlabel('nx')
    side=[[f"s_mov_b32 m0, s{S_M0K}",f"buffer_load_dwordx4 v1, {WS}, s{S_KX} offen sc1 lds"],[f"buffer_load_dwordx4 v1, {WS}, s{S_KX} offen offset:1024 sc1 lds",f"s_add_u32 s{S_KX}, s{S_KX}, 0x40000"],
          [f"buffer_store_dwordx4 {v(SENT,4)}, v1, {WS}, s{S_AI} offen sc1"]]
    m=[]
    for ks in range(4):
        X=80+4*ks
        m+=[f"s_waitcnt lgkmcnt({12-2*ks})\n"+mf(112,M+4*ks,X,'0' if ks==0 else 112),mf(116,M+16+4*ks,X,'0' if ks==0 else 116),mf(120,X,X,NEG if ks==0 else 120)]
    for t in interleave(m,side,start=1,every=3): A(t)
    A(f"s_waitcnt lgkmcnt(4)\nbuffer_store_dwordx4 {v(124,4)}, v1, {WS}, s{S_KM} offen sc1\ns_add_u32 s{S_KM}, s{S_KM}, 0x20000")
    for i in range(8): A(f"ds_read_b128 {v(M+4*i,4)}, v{KXR} offset:{L_VX-L_KX+i*1024}")
    A(f"s_cmp_eq_u32 s{S_S}, 63\ns_cbranch_scc1 R_done")
    for i in range(4): A(f"v_mov_b32_dpp v{112+i}, v{116+i} row_ror:8 row_mask:0xf bank_mask:0xc")
    A(f"""v_max3_f32 v116, v120, v121, v122
    v_max3_f32 v117, v112, v113, v123
    v_max3_f32 v116, v116, v114, v115
    v_max_f32 v116, v116, v117
    v_max_f32_dpp v116, v116, v116 row_ror:8 row_mask:0xf bank_mask:0xf
    v_mov_b32 v117, v116
    v_permlane16_swap_b32 v116, v117
    v_max_f32 v116, v116, v117
    v_mov_b32 v117, v116
    v_permlane32_swap_b32 v116, v117
    v_max_f32 v116, v116, v117
    v_mul_f32 v116, s{S_SC}, v116""")
    for r in (112,113,114,115): A(f"v_fma_f32 v{r}, v{r}, s{S_SC}, -v116")
    for r in (112,113,114,115): A(f"v_exp_f32 v{r}, v{r}\nv_fma_f32 v{r+8}, v{r+8}, s{S_SC}, -v116")
    A("v_cvt_pk_bf16_f32 v124, v112, v113\nv_cvt_pk_bf16_f32 v125, v114, v115\nv_exp_f32 v120, v120\nv_exp_f32 v121, v121")
    own="quad_perm:[0,1,2,3]"; ror="row_ror:8"
    dp=lambda d,sr,k,bm:f"v_mov_b32_dpp v{d}, v{sr} {k} row_mask:0xf bank_mask:{bm}"
    for i in range(4): A(dp(PB1+i,124+(i&1),own if i<2 else ror,'0x3'))
    for i in range(4): A(dp(PB2+i,124+(i&1),ror if i<2 else own,'0xc'))
    z=lambda T:f"v_mov_b64 {v(M+4*T,2)}, 0\nv_mov_b64 {v(M+4*T+2,2)}, 0"
    A("s_waitcnt lgkmcnt(0)")
    A(mf(80,M,PB1,'0')); A("v_exp_f32 v122, v122")
    A(mf(84,M+8,PB1,'0')); A("v_exp_f32 v123, v123")
    A(mf(116,ONES,PB1,'0')); A("v_cvt_pk_bf16_f32 v120, v120, v121\nv_cvt_pk_bf16_f32 v121, v122, v123")
    A(mf(116,ONES,PB2,116)); A(z(0))
    A(mf(80,M+4,PB2,80)); A(dp(122,120,ror,'0xf')+"\n"+dp(123,121,ror,'0xf'))
    A(mf(84,M+12,PB2,84)); A(z(2))
    A(mf(88,M+16,PB1,'0')); A("v_permlane32_swap_b32 v122, v120\nv_permlane32_swap_b32 v123, v121")
    A(mf(92,M+24,PB1,'0')); A(f"v_mov_b64 {v(122,2)}, {v(120,2)}")
    LV=A.newlabel('pv'); LV2=A.newlabel('pv'); LV3=A.newlabel('pv')
    A("s_waitcnt vmcnt(4)")
    A(f"v_mfma_f32_16x16x16_bf16 {v(116,4)}, {v(ONES,2)}, {v(120,2)}, {v(116,4)}")
    A.label(LV3)
    A("v_max3_u32 v124, v98, v102, v106\nv_max_u32 v124, v124, v110\nv_cmp_eq_u32 vcc, -1, v124")
    retry(A,LV3,"\n".join(ldV)+"\ns_waitcnt vmcnt(0)")
    A(mf(80,96,120,80)); A(z(1))
    A(mf(84,100,120,84)); A(z(3))
    A(mf(88,M+20,PB2,88)); A("v_rcp_f32 v126, v116")
    A(mf(92,M+28,PB2,92)); A(z(4))
    A(mf(88,104,120,88))
    pm=lambda r:f"v_pk_mul_f32 {v(r,2)}, {v(r,2)}, {v(126,2)} op_sel_hi:[1,0]"
    cv=lambda d,r:f"v_cvt_pk_bf16_f32 v{d}, v{r}, v{r+1}"
    A(pm(80)); A(pm(82))
    A(mf(92,108,120,92))
    for t in (pm(84),pm(86),cv(112,80),cv(113,82),cv(114,84),cv(115,86),z(5)): A(t)
    g2=lambda T,u:smf(M+4*T,112 if u==0 else 120,v(128+(T*2+u)*8,8))
    def fold(p):
        a_=M+8*p; b_=a_+4; d=96+2*p
        return [f"v_permlane32_swap_b32 v{a_+i}, v{b_+i}" for i in range(4)]+[f"v_pk_add_f32 {v(a_,2)}, {v(a_,2)}, {v(b_,2)}",f"v_pk_add_f32 {v(a_+2,2)}, {v(a_+2,2)}, {v(b_+2,2)}",cv(d,a_),cv(d+1,a_+2)]
    A(g2(0,0)); A(pm(88)); A(pm(90))
    A(g2(1,0)); A(pm(92)); A(pm(94))
    A(g2(2,0)); A(cv(120,88)); A(cv(121,90))
    A(g2(3,0)); A(cv(122,92)); A(cv(123,94))
    A(g2(4,0)); A(z(6))
    A(g2(0,1)); A(z(7))
    A(g2(1,1)); A(g2(2,1)); A(g2(3,1)); A(g2(5,0)); A(g2(4,1)); A(g2(5,1))
    f0,f1,f2,f3=fold(0),fold(1),fold(2),fold(3)
    A(g2(6,0))
    for t in f0[:3]: A(t)
    A(g2(7,0))
    for t in f0[3:6]: A(t)
    A(g2(6,1))
    for t in f0[6:]: A(t)
    A(g2(7,1))
    for t in f1: A(t)
    A(f"buffer_store_dwordx4 {v(96,4)}, v{BS}, {WS}, s{S_B} offen{sc}")
    for t in f2+f3: A(t)
    A(f"buffer_store_dwordx4 {v(100,4)}, v{BS}, {WS}, s{S_B2} offen{sc}")
    A(f"""s_add_u32 s{S_S}, s{S_S}, 1
    s_lshl_b32 s{Q}, s{S_W}, 9
    s_add_u32 s{S_AVC}, s{S_AIV}, s{Q}
    s_xor_b32 s{S_AO}, s{S_AO}, 0x8000
    s_xor_b32 s{S_AI}, s{S_AI}, 0x8000
    s_xor_b32 s{S_AOV}, s{S_AOV}, 0x8000
    s_xor_b32 s{S_AIV}, s{S_AIV}, 0x8000
    s_mov_b32 s{S_BC}, s{S_B}
    s_xor_b32 s{S_B}, s{S_B}, 0x80000
    s_xor_b32 s{S_B2}, s{S_B2}, 0x80000
    s_and_b32 s{Q}, s{S_S}, 3
    s_lshl_b32 s{Q}, s{Q}, 14
    s_add_u32 s{S_CL}, s{S_CLB}, s{Q}
    s_add_u32 s{S_CS}, s{S_CSB}, s{Q}
    s_xor_b32 s{S_CC}, s{S_CS}, 0x8000
    s_add_u32 s{Q}, s{S_S}, 1
    s_min_u32 s{Q}, s{Q}, 63
    s_lshr_b32 s{Q+1}, s{Q}, 3
    s_add_u32 s{Q+1}, s{Q+1}, 1
    s_lshr_b32 s{Q+2}, s{Q}, 2
    s_cmp_lt_u32 s{Q}, 8
    s_cselect_b32 s{Q+1}, s{Q+2}, s{Q+1}
    s_cselect_b32 s{S_FT}, 64, 32
    s_lshl_b32 s{Q+1}, s{Q+1}, 7
    s_add_u32 s{S_FI}, s{Q+1}, {WS_FL+F_KV*128}""")
    if o.get('db',3): A(f"s_sleep {o.get('db',3)}")
    LB_=A.newlabel('pb'); A.label(LB_)
    A(f"buffer_load_dwordx4 {v(104,4)}, v{BL}, {WS}, s{S_BC} offen sc1\nbuffer_load_dwordx4 {v(108,4)}, v{BL}, {WS}, s{S_BC} offen offset:1024 sc1\ns_waitcnt vmcnt(0)")
    A(mf(112,104,SEL1,'0')); A("v_max_u32 v124, v104, v108")
    A(mf(116,104,SEL2,'0')); A("v_cmp_eq_u32 vcc, -1, v124")
    A(mf(112,108,SEL1,112)); A(mf(116,108,SEL2,116))
    retry(A,LB_)
    A(f"""v_pk_add_f32 {v(112,2)}, {v(112,2)}, {v(114,2)}
    v_add_f32 v112, v112, v113
    v_pk_add_f32 {v(116,2)}, {v(116,2)}, {v(118,2)}
    v_add_f32 v116, v116, v117
    v_permlane32_swap_b32 v112, v116
    v_add_f32 v112, v112, v116
    v_mov_b32 v116, v112
    v_permlane16_swap_b32 v112, v116
    v_add_f32 v112, v112, v116
    v_mov_b32 v116, v112
    v_permlane32_swap_b32 v112, v116
    s_mov_b64 exec, 0xffff
    v_cvt_pk_bf16_f32 v{T1}, v112, v116
    buffer_store_dword v{T1}, v{L4}, {WS}, s{S_CS} offen{sc}
    buffer_store_dword v{SENT}, v{L4}, {WS}, s{S_CC} offen{sc}
    s_mov_b64 exec, -1""")
    cwait_fill(A)
    stamp(A,T0)
    if o.get('dc',0): A(f"s_sleep {o.get('dc',0)}")
    LC=A.newlabel('pc'); A.label(LC)
    A(f"buffer_load_dwordx4 {v(M,4)}, v1, {WS}, s{S_CL} offen sc1\nbuffer_load_dwordx4 {v(M+4,4)}, v1, {WS}, s{S_CL} offen offset:1024 sc1\ns_waitcnt vmcnt(0)")
    A(f"v_max3_u32 v{T0}, v{M}, v{M+1}, v{M+2}\nv_max3_u32 v{T1}, v{M+3}, v{M+4}, v{M+5}\nv_max3_u32 v{T0}, v{T0}, v{M+6}, v{M+7}\nv_max_u32 v{T0}, v{T0}, v{T1}\nv_cmp_eq_u32 vcc, -1, v{T0}")
    A(f"s_cbranch_vccz {name}\ns_sub_u32 s{S_BUD}, s{S_BUD}, 1\ns_cbranch_scc0 {LC}\ns_mov_b32 s{S_BUD}, 0\ns_branch {name}")
    flush_def(A)
    A.label(kvw)
    spin_ge(A,S_WS,0,f"s{S_FT}",T0,T1,Q,soff=f"s{S_FI}")
    A(f"s_branch {kvr}")
def rec_role(A,stamp,o):
    h=S_RANK; w=S_W; x=S_X; t=112
    A(f"s_cmp_eq_u32 s{S_VX}, {XB}\ns_cselect_b32 s{x}, 1, 0")
    srd(A,S_A,P_WV,8*MB); srd(A,S_OUT,P_WO,8*MB)
    for i in range(4): A(f"v_mov_b32 v{SENT+i}, -1")
    A(f"v_lshlrev_b32 v{L8}, 3, v0\nv_lshlrev_b32 v{L4}, 2, v0")
    DQ=16+t-14; DO=DQ+1
    A(f"""v_lshrrev_b32 v{t}, 4, v0
    v_and_b32 v{t+1}, 1, v{t}
    s_lshl_b32 s{Q}, s{w}, 1
    v_or_b32 v{t+1}, s{Q}, v{t+1}
    v_bfe_u32 v{t+4}, v0, 1, 3
    v_xor_b32 v{t+1}, v{t+1}, v{t+4}
    v_lshlrev_b32 v{t+1}, 5, v{t+1}
    v_and_b32 v{t+4}, 1, v0
    v_lshl_add_u32 v{t+1}, v{t+4}, 4, v{t+1}
    s_lshl_b32 s{Q}, s{w}, 4
    v_add_u32 v{t}, s{Q}, v{t}
    s_lshl_b32 s{Q}, s{x}, 22
    s_lshl_b32 s{Q+1}, s{h}, 8
    s_add_u32 s{Q}, s{Q}, s{Q+1}
    v_lshl_add_u32 v{DQ}, v{t}, 13, v{t+1}
    v_add_u32 v{DQ}, s{Q}, v{DQ}
    s_lshl_b32 s{Q}, s{h}, 18
    s_lshl_b32 s{Q+1}, s{x}, 10
    s_add_u32 s{Q}, s{Q}, s{Q+1}
    v_lshl_add_u32 v{DO}, v{t}, 11, v{t+1}
    v_add_u32 v{DO}, s{Q}, v{DO}
    s_lshl_b32 s{S_M0K}, s{w}, 12""")
    def chunk(n):
        mat,j=n>>2,n&3
        for aa in range(2):
            for b in range(4):
                rows=64*aa+4*b
                so=(j*256+rows*2048) if mat==2 else (128*j+rows)*8192
                A(f"s_add_u32 m0, s{S_M0K}, {j*32768+aa*16384+b*1024}\ns_mov_b32 s{Q}, {so}\nbuffer_load_dwordx4 v{DO if mat==2 else DQ}, {s([S_B0,S_B1,S_OUT,S_A][mat],4)}, s{Q} offen lds")
    A(f"""s_lshl_b32 s{Q}, s{h}, 16
    s_lshl_b32 s{Q+1}, s{x}, 14
    s_add_u32 s{S_AO}, s{Q}, s{Q+1}
    s_xor_b32 s{S_AI}, s{S_AO}, 0x4000
    s_lshl_b32 s{Q}, s{x}, 18
    s_add_u32 s{S_B}, s{Q}, {WS_B}
    s_add_u32 s{S_B2}, s{S_B}, 0x8000
    s_xor_b32 s{S_BC}, s{S_B}, 0x80000
    s_lshl_b32 s{Q}, s{h}, 2
    s_add_u32 s{Q}, s{Q}, s{w}
    s_lshl_b32 s{Q+1}, s{Q}, 11
    v_and_b32 v{t}, 15, v0
    v_lshrrev_b32 v{t+1}, 4, v0
    v_lshlrev_b32 v{BL}, 6, v{t}
    v_lshl_add_u32 v{BL}, v{t+1}, 4, v{BL}
    v_add_u32 v{BL}, s{Q+1}, v{BL}
    s_lshl_b32 s{Q}, s{Q}, 6
    s_lshl_b32 s{Q+1}, s{x}, 13
    s_add_u32 s{Q+1}, s{Q+1}, {WS_C}
    s_add_u32 s{S_CSB}, s{Q+1}, s{Q}
    s_lshl_b32 s{Q}, s{w}, 11
    s_add_u32 s{S_CLB}, s{Q+1}, s{Q}""")
    A(f"s_or_b32 s{Q}, s{x}, s{w}\ns_cmp_lg_u32 s{Q}, 0\ns_cbranch_scc1 R_nop\ns_add_u32 s{Q}, s{S_AO}, 7168\ns_add_u32 s{Q+1}, s{Q}, 8192\ns_mov_b64 exec, 1\nv_mov_b32 v{t+4}, 0\nv_mov_b32 v{t+5}, 0")
    for rep in range(3):
        A(f"buffer_store_dword v{SENT}, off, {WS}, s{Q} sc1\nbuffer_store_dword v{SENT}, off, {WS}, s{Q+1} sc1\ns_waitcnt vmcnt(0)")
        for p in range(2):
            A(f"s_memtime s[{Q+2}:{Q+3}]\ns_waitcnt lgkmcnt(0)\nbuffer_load_dword v{t+6}, off, {WS}, s{Q+p} sc1\ns_waitcnt vmcnt(0)\ns_memtime s[{Q+4}:{Q+5}]\ns_waitcnt lgkmcnt(0)")
            A(f"s_sub_u32 s{Q+2}, s{Q+2}, s{Q+4}\nv_max_u32 v{t+4+p}, s{Q+2}, v{t+4+p}")
    A(f"buffer_atomic_umax v{t+4}, off, {s(S_DBG,4)}, 0 offset:{D_P0*4}\nbuffer_atomic_umax v{t+5}, off, {s(S_DBG,4)}, 0 offset:{D_P1*4}\ns_mov_b64 exec, -1")
    A.label('R_nop')
    A(f"s_lshl_b32 s{Q}, s{w}, 10\ns_add_u32 s{Q}, s{Q}, s{S_AI}\ns_lshl_b32 s{Q+1}, s{w}, 9\ns_add_u32 s{Q+1}, s{Q+1}, s{S_AI}\ns_add_u32 s{Q+1}, s{Q+1}, 4096")
    for off in (0,8192,32768,40960):
        A(f"s_add_u32 s{Q+2}, s{Q}, {off}\nbuffer_store_dwordx4 {v(SENT,4)}, v1, {WS}, s{Q+2} offen sc1\ns_add_u32 s{Q+2}, s{Q+1}, {off}\nbuffer_store_dwordx2 {v(SENT,2)}, v{L8}, {WS}, s{Q+2} offen sc1")
    for r in (S_B,S_BC):
        A(f"buffer_store_dwordx4 {v(SENT,4)}, v{BL}, {WS}, s{r} offen sc1\nbuffer_store_dwordx4 {v(SENT,4)}, v{BL}, {WS}, s{r} offen offset:1024 sc1")
    A(f"v_lshlrev_b32 v{t+4}, 2, v{t}\nv_lshl_add_u32 v{t+4}, v{t+1}, 14, v{t+4}\nbuffer_store_dword v{SENT}, v{t+4}, {WS}, s{S_CSB} offen sc1")
    for n in range(4): chunk(n)
    c=t; g=t+1; u=t+4
    A(f"""v_cmp_gt_u32 vcc, 8, v{c}
    v_mov_b32 v{u}, 0x44444444
    v_mov_b32 v{u+1}, 0xeeeeeeee
    v_cndmask_b32 v{IDX}, v{u+1}, v{u}, vcc
    v_cmp_lt_u32 s[{Q}:{Q+1}], 1, v{g}
    s_and_b64 vcc, vcc, s[{Q}:{Q+1}]
    v_mov_b32 v{u}, 0xf149f2ca
    v_cndmask_b32 v{NEG}, v{u}, 0, vcc""".replace(f"v_cndmask_b32 v{NEG}, v{u}, 0, vcc",f"v_cndmask_b32_e64 v{NEG}, v{u}, 0, vcc"))
    for i in range(1,4): A(f"v_mov_b32 v{NEG+i}, v{NEG}")
    for i in range(4): A(f"v_mov_b32 v{PB1+i}, 0\nv_mov_b32 v{PB2+i}, 0\nv_mov_b32 v{ONES+i}, 0x3f803f80")
    A(f"""v_bfe_u32 v{u}, v{c}, 2, 1
    v_lshlrev_b32 v{u}, 4, v{u}
    v_mov_b32 v{u+1}, 0x3f80
    v_lshlrev_b32 v{u}, v{u}, v{u+1}
    v_and_b32 v{u+1}, 2, v{c}
    v_lshrrev_b32 v{u+2}, 3, v{c}
    v_add_u32 v{u+1}, v{u+1}, v{u+2}
    v_and_b32 v{u+2}, 1, v{c}
    v_lshlrev_b32 v{u+2}, 1, v{u+2}
    v_xor_b32 v{u+2}, v{u+2}, v{g}
    v_lshl_add_u32 v{u+1}, v{u+2}, 2, v{u+1}""")
    for i in range(8): A(f"v_cmp_eq_u32 vcc, {i}, v{u+1}\nv_cndmask_b32 v{SEL1+i}, 0, v{u}, vcc")
    A(f"s_lshl_b32 s{Q}, s{w}, 11\ns_add_u32 s{Q}, s{Q}, {L_MEM}\nv_add_u32 v{MW}, s{Q}, v1")
    for p in range(1,4): A(f"v_xor_b32 v{MW+p}, {p*2048}, v{MW}")
    A(f"""v_lshrrev_b32 v{u}, 2, v{c}
    v_xor_b32 v{u+1}, v{u}, v{g}
    v_lshlrev_b32 v{u+1}, 3, v{u+1}
    v_lshl_add_u32 v{u+1}, v{c}, 5, v{u+1}
    s_lshl_b32 s{Q}, s{w}, 10
    s_add_u32 s{Q}, s{Q}, {L_X}
    v_add_u32 v{XW}, s{Q}, v{u+1}
    v_and_b32 v{u+1}, 3, v0
    v_xor_b32 v{u+2}, v{u+1}, v{g}
    v_lshlrev_b32 v{u+2}, 3, v{u+2}
    v_lshrrev_b32 v{u+3}, 2, v0
    v_lshl_add_u32 v{u+2}, v{u+3}, 5, v{u+2}
    v_add_u32 v{XR}, {L_X}, v{u+2}
    v_add_u32 v{VMR}, {L_VM}, v{L8}
    s_lshl_b32 s{Q}, s{w}, 9
    v_add_u32 v{VMW}, s{Q}, v{VMR}
    v_add_u32 v{KXR}, {L_KX}, v1
    v_lshl_add_u32 v{u+2}, v{u}, 2, v{g}
    v_lshlrev_b32 v{u+2}, 11, v{u+2}
    v_lshl_add_u32 v{u+2}, v{u+1}, 4, v{u+2}
    s_lshl_b32 s{Q}, s{w}, 16
    s_lshl_b32 s{Q+1}, s{h}, 6
    s_add_u32 s{Q}, s{Q}, s{Q+1}
    v_add_u32 v{BS}, s{Q}, v{u+2}""")
    TB=t+8
    A(f"""v_and_b32 v{u+2}, 1, v{g}
    v_lshlrev_b32 v{TB}, 5, v{u+2}
    v_lshrrev_b32 v{u+2}, 1, v{g}
    v_lshl_add_u32 v{TB}, v{u+2}, 2, v{TB}
    v_lshrrev_b32 v{u+2}, 1, v{u}
    v_lshl_add_u32 v{TB}, v{u+2}, 4, v{TB}
    v_and_b32 v{u+2}, 1, v{u}
    v_add_u32 v{TB}, v{TB}, v{u+2}
    v_lshlrev_b32 v{TB}, 8, v{TB}
    v_lshl_add_u32 v{TB}, v{u+1}, 3, v{TB}
    v_bfe_u32 v{u+2}, v0, 2, 3
    v_lshl_add_u32 v{TB}, v{u+2}, 5, v{TB}
    s_mul_i32 s{Q}, s{w}, {32768+64}
    v_xor_b32 v{WV}, s{Q}, v{TB}
    v_xor_b32 v{WV+1}, 32, v{WV}""")
    A(f"""s_mov_b32 s{S_S}, 0
    s_mov_b32 s{S_SC}, 0x3e0293ee
    s_mov_b32 s{S_HI}, 0xffff0000
    s_lshl_b32 s{Q}, s{h}, 13
    s_lshl_b32 s{Q+1}, s{w}, 11
    s_add_u32 s{Q}, s{Q}, s{Q+1}
    s_add_u32 s{S_KX}, s{Q}, {WS_KX}
    s_add_u32 s{S_VXO}, s{Q}, {WS_VX}
    s_add_u32 s{S_M0V}, s{Q+1}, {L_VX}
    s_lshr_b32 s{Q}, s{Q}, 1
    s_add_u32 s{S_KM}, s{Q}, {WS_KM}
    s_cmp_eq_u32 s{x}, 0
    s_cselect_b32 s{S_KM}, s{S_KM}, 0x10000000
    s_lshl_b32 s{Q}, s{h}, 1
    s_add_u32 s{Q}, s{Q}, s{x}
    s_lshl_b32 s{Q+1}, s{Q}, 7
    s_add_u32 s{S_PR}, s{Q+1}, {WS_FL+F_PROG*128}
    s_lshl_b32 s{Q}, s{Q}, 11
    s_lshl_b32 s{Q+1}, s{w}, 9
    s_add_u32 s{Q}, s{Q}, s{Q+1}
    s_add_u32 s{S_VM}, s{Q}, {WS_VM}
    s_mov_b32 s{S_FI}, {WS_FL+F_KV*128}
    s_mov_b32 s{S_FT}, 64""")
    for n in range(12):
        mat,j=n>>2,n&3
        A("s_waitcnt vmcnt(24)\ns_barrier")
        if n==4:
            A(f"s_cmp_lg_u32 s{w}, 0\ns_cbranch_scc1 R_na\nv_mov_b32 v{T0}, 1\ns_mov_b64 exec, 1\nbuffer_atomic_add v{T0}, off, {s(S_DBG,4)}, 0 offset:{D_RDY*4}\ns_mov_b64 exec, -1")
            A.label('R_na')
        E=A.newlabel('wl')
        for ww in range(4):
            if mat==2 and ww!=j: continue
            N=A.newlabel('wn')
            A(f"s_cmp_lg_u32 s{w}, {ww}\ns_cbranch_scc1 {N}")
            for T in (range(8) if mat==2 else range(2)):
                A(f"v_xor_b32 v{u}, {j*32768+(T if mat==2 else 2*ww+T)*32}, v{TB}")
                for kl in range(2):
                    for m_ in range(4):
                        d=v(128+(T*2+kl)*8+2*m_,2) if mat==2 else a(mat*128+((((2*j+kl)^(2*ww))*2+T)*8)+2*m_,2)
                        A(f"ds_read_b64_tr_b16 {d}, v{u} offset:{trimm(kl,m_)}")
            A(f"s_branch {E}"); A.label(N)
        A.label(E)
        A("s_waitcnt lgkmcnt(0)\ns_barrier")
        chunk(n+4)
    srd(A,S_B0,P_MEM,16384)
    A(f"""v_and_b32 v{u}, 7, v{c}
    v_lshlrev_b32 v{u}, 11, v{u}
    v_lshrrev_b32 v{u+1}, 3, v{c}
    v_lshl_add_u32 v{u}, v{u+1}, 5, v{u}
    v_lshl_add_u32 v{u}, v{g}, 3, v{u}
    s_lshl_b32 s{Q}, s{x}, 10
    s_lshl_b32 s{Q+1}, s{w}, 8
    s_add_u32 s{Q}, s{Q}, s{Q+1}""")
    for i in range(4): A(f"buffer_load_dwordx2 {v(M+2*i,2)}, v{u}, {s(S_B0,4)}, s{Q} offen offset:{64*i}")
    stamp(A,T0)
    spin_ge(A,S_DBG,D_RDY*4,64,T0,T1,Q)
    spin_ge(A,S_DBG,D_INIT*4,1,T0,T1,Q)
    A(f"buffer_load_dwordx2 {v(u,2)}, off, {s(S_DBG,4)}, 0 offset:{D_P0*4} sc1\nbuffer_load_dword v{u+2}, off, {s(S_DBG,4)}, 0 offset:{XA*16} sc1\nbuffer_load_dword v{u+3}, off, {s(S_DBG,4)}, 0 offset:{XB*16} sc1")
    stamp(A,T0)
    if not o.get('nokv'): spin_ge(A,S_WS,WS_FL+F_KV*128,64,T0,T1,Q)
    A(f"s_waitcnt vmcnt(0)\ns_lshl_b32 s{Q}, s{w}, 11\ns_add_u32 s{S_M0K}, s{Q}, {L_KX}\ns_mov_b32 m0, s{S_M0K}")
    A(f"buffer_load_dwordx4 v1, {WS}, s{S_KX} offen sc1 lds\nbuffer_load_dwordx4 v1, {WS}, s{S_KX} offen offset:1024 sc1 lds\ns_add_u32 s{S_KX}, s{S_KX}, 0x40000")
    A(f"""v_readfirstlane_b32 s{Q}, v{u}
    v_readfirstlane_b32 s{Q+1}, v{u+1}
    v_min_u32 v{u+2}, v{u+2}, v{u+3}
    s_cmp_gt_u32 s{Q+1}, s{Q}
    s_cselect_b32 s{Q}, {8192 if not o.get('badpol') else 0}, {0 if not o.get('badpol') else 8192}
    s_add_u32 s{S_AO}, s{S_AO}, s{Q}
    s_add_u32 s{S_AI}, s{S_AI}, s{Q}
    s_add_u32 s{S_AIV}, s{S_AI}, 4096
    s_lshl_b32 s{Q}, s{w}, 9
    s_add_u32 s{S_AOV}, s{S_AO}, s{Q}
    s_add_u32 s{S_AOV}, s{S_AOV}, 4096
    s_add_u32 s{S_AVC}, s{S_AIV}, s{Q}
    s_xor_b32 s{S_AVC}, s{S_AVC}, 0x8000
    s_lshl_b32 s{Q}, s{w}, 10
    s_add_u32 s{S_AO}, s{S_AO}, s{Q}
    s_add_u32 s{S_AI}, s{S_AI}, s{Q}
    v_readfirstlane_b32 s{Q}, v{u+2}
    s_waitcnt vmcnt(0)
    s_barrier""")
    cwait_fill(A)
    stamp(A,T0)
    A(f"s_cmp_lt_u32 s{Q}, 32\ns_cbranch_scc1 R_slow")
    step_loop(A,'R_fast',False,stamp,o)
    step_loop(A,'R_slow',True,stamp,o)
    A.label('R_done')
    A(f"s_waitcnt vmcnt(0) lgkmcnt(0)\ns_barrier\ns_cmp_lg_u32 s{w}, 0\ns_cbranch_scc1 L_fin\nv_mov_b32 v{T1}, 64\ns_mov_b64 exec, 1\nbuffer_store_dword v{T1}, off, {WS}, s{S_PR} sc1\ns_mov_b64 exec, -1")
    stamp(A,T0)
```

```python
from common import *
WS=s(S_WS,4)
S_S=32; S_SC=33; S_HI=34; S_RT=35; S_EH=36; Q=56
L8=2; OA=3; RW=4; RR=5; GA=6; BA=7; L32=8; T0=10; T1=11; ONE=9
NEG0=12; NEG1=16; NEGM=20; ONES=24; GW=28
ACC=44
def mf(d,A_,B_,c): return f"v_mfma_f32_16x16x32_bf16 {v(d,4)}, {A_ if isinstance(A_,str) else v(A_,4)}, {v(B_,4)}, {c if isinstance(c,str) else v(c,4)}"
cv=lambda d,r:f"v_cvt_pk_bf16_f32 v{d}, v{r}, v{r+1}"
def xred(A,r,t,op):
    A(f"v_mov_b32 v{t}, v{r}\nv_permlane16_swap_b32 v{r}, v{t}\n{op} v{r}, v{r}, v{t}\nv_mov_b32 v{t}, v{r}\nv_permlane32_swap_b32 v{r}, v{t}\n{op} v{r}, v{r}, v{t}")
def att(A):
    i=S_RANK; w=S_W
    QR=64; KX=80; KM=112; VX=128; VM=144; S0=152; S1=156; SM=160; P=164; BH=168; BL=172; O=176; Lr=192; R=196; XR=200; XU=208
    A(f"s_lshr_b32 s{Q}, s{S_S}, 3\ns_lshl_b32 s{Q}, s{Q}, 7")
    spin_ge(A,S_WS,WS_FL+F_Q*128,16,T0,T1,Q+1,soff=f"s{Q}")
    A(f"s_add_u32 s{Q+2}, s{S_S}, 1\ns_lshl_b32 s{Q}, s{i}, 8")
    spin_ge(A,S_WS,WS_FL+F_PROG*128,f"s{Q+2}",T0,T1,Q+1,soff=f"s{Q}")
    spin_ge(A,S_WS,WS_FL+F_PROG*128+128,f"s{Q+2}",T0,T1,Q+1,soff=f"s{Q}")
    A(f"s_lshl_b32 s{Q}, s{S_S}, 5\ns_add_u32 s{Q}, s{Q}, s{i}\ns_lshl_b32 s{Q+1}, s{Q}, 13\ns_lshl_b32 s{Q+2}, s{S_RT}, 12\ns_add_u32 s{Q+2}, s{Q+2}, s{Q+1}\ns_add_u32 s{Q+2}, s{Q+2}, {WS_QX}")
    ld=lambda d,so,off:A(f"buffer_load_dwordx4 {v(d,4)}, v1, {WS}, s{so} offen offset:{off} sc1")
    for k in range(4): ld(QR+4*k,Q+2,k*1024)
    A(f"s_add_u32 s{Q+2}, s{Q+1}, {WS_KX}\ns_add_u32 s{Q+3}, s{Q+2}, 4096\ns_lshl_b32 s{Q+4}, s{Q}, 12\ns_add_u32 s{Q+5}, s{Q+4}, {WS_KM}")
    for k in range(4): ld(KX+4*k,Q+2,k*1024); ld(KX+16+4*k,Q+3,k*1024); ld(KM+4*k,Q+5,k*1024)
    A(f"s_lshl_b32 s{Q+2}, s{S_EH}, 12\ns_add_u32 s{Q+2}, s{Q+2}, s{Q+1}\ns_add_u32 s{Q+2}, s{Q+2}, {WS_VX}\ns_lshl_b32 s{Q+3}, s{S_EH}, 10\ns_add_u32 s{Q+3}, s{Q+3}, s{Q+4}\ns_add_u32 s{Q+3}, s{Q+3}, {WS_VM}")
    for k in range(4): ld(VX+4*k,Q+2,k*1024)
    for p in range(2):
        for x in range(2): A(f"buffer_load_dwordx2 {v(VM+4*p+2*x,2)}, v{L8}, {WS}, s{Q+3} offen offset:{x*2048+p*512} sc1")
    A(f"s_lshl_b32 s{Q+2}, s{Q}, 11\nbuffer_load_dwordx4 {v(XR,4)}, v{L32}, {s(S_A,4)}, s{Q+2} offen\nbuffer_load_dwordx4 {v(XR+4,4)}, v{L32}, {s(S_A,4)}, s{Q+2} offen offset:16")
    for k in range(4):
        A(f"s_waitcnt vmcnt({10+9-3*k})")
        A(mf(S0,KX+4*k,QR+4*k,NEG0 if k==0 else S0)); A(mf(S1,KX+16+4*k,QR+4*k,NEG1 if k==0 else S1)); A(mf(SM,KM+4*k,QR+4*k,NEGM if k==0 else SM))
    A(f"v_mov_b64 {v(BL,2)}, 0")
    A(f"v_max3_f32 v{R}, v{S0}, v{S0+1}, v{S0+2}\nv_max3_f32 v{R+1}, v{S0+3}, v{S1}, v{S1+1}\nv_max3_f32 v{R}, v{R}, v{S1+2}, v{S1+3}\nv_max3_f32 v{R+1}, v{R+1}, v{SM}, v{SM+1}\nv_max3_f32 v{R}, v{R}, v{SM+2}, v{SM+3}\nv_max_f32 v{R}, v{R}, v{R+1}")
    xred(A,R,R+1,'v_max_f32')
    A(f"v_mul_f32 v{R}, s{S_SC}, v{R}")
    for r in range(S0,S0+12): A(f"v_fma_f32 v{r}, v{r}, s{S_SC}, -v{R}")
    for r in range(S0,S0+12): A(f"v_exp_f32 v{r}, v{r}")
    for j in range(6): A(cv(P+j,S0+2*j))
    A(f"v_mov_b64 {v(BH+2,2)}, {v(BH,2)}\nv_mov_b64 {v(BL+2,2)}, {v(BH,2)}")
    A(mf(Lr,ONES,P,'0'))
    A(f"v_permlane32_swap_b32 v{BL+2}, v{BL}\nv_permlane32_swap_b32 v{BL+3}, v{BL+1}")
    A(f"v_mfma_f32_16x16x16_bf16 {v(Lr,4)}, {v(ONES,2)}, {v(BH,2)}, {v(Lr,4)}\nv_mov_b64 {v(BL+2,2)}, {v(BL,2)}\ns_waitcnt vmcnt(2)")
    for j in range(4): A(mf(O+4*j,VX+4*j,P,'0'))
    for j in range(4): A(mf(O+4*j,VM+4*(j>>1),BL if j&1 else BH,O+4*j))
    A(f"v_rcp_f32 v{R}, v{Lr}")
    A(f"s_lshl_b32 s{Q+2}, s{S_S}, 1\ns_add_u32 s{Q+2}, s{Q+2}, s{S_RT}\ns_lshl_b32 s{Q+2}, s{Q+2}, 17\ns_lshl_b32 s{Q+3}, s{i}, 12\ns_add_u32 s{Q+2}, s{Q+2}, s{Q+3}\ns_lshl_b32 s{Q+3}, s{S_EH}, 11\ns_add_u32 s{Q+2}, s{Q+2}, s{Q+3}\ns_add_u32 s{Q+2}, s{Q+2}, {WS_O}")
    for jj in range(2):
        for r in range(O+8*jj,O+8*jj+8,2): A(f"v_pk_mul_f32 {v(r,2)}, {v(r,2)}, {v(R,2)} op_sel_hi:[1,0]")
        for j in range(4): A(cv(S0+4*jj+j,O+8*jj+2*j))
        A(f"buffer_store_dwordx4 {v(S0+4*jj,4)}, v1, {WS}, s{Q+2} offen offset:{jj*1024} sc1")
    ng=A.newlabel('ng')
    A(f"s_cmp_lg_u32 s{w}, 0\ns_cbranch_scc1 {ng}\ns_waitcnt vmcnt(2)")
    for k in range(8): A(f"v_lshlrev_b32 v{XU+2*k}, 16, v{XR+k}\nv_and_b32 v{XU+2*k+1}, s{S_HI}, v{XR+k}")
    A(f"v_mul_f32 v{R}, v{XU}, v{GW}\nv_mul_f32 v{R+1}, v{XU+1}, v{GW+1}")
    for k in range(2,16): A(f"v_fmac_f32 v{R+(k&1)}, v{XU+k}, v{GW+k}")
    A(f"v_add_f32 v{R}, v{R}, v{R+1}")
    for sh in (8,4,2,1): A(f"v_add_f32_dpp v{R}, v{R}, v{R} row_ror:{sh} row_mask:0xf bank_mask:0xf")
    xred(A,R,R+1,'v_add_f32')
    A(f"v_mul_f32 v{R}, 0xbfb8aa3b, v{R}\nv_exp_f32 v{R}, v{R}\nv_add_f32 v{R}, 1.0, v{R}\nv_rcp_f32 v{R}, v{R}\ns_lshl_b32 s{Q+2}, s{Q}, 2\ns_add_u32 s{Q+2}, s{Q+2}, {WS_G}\ns_mov_b64 exec, 1")
    A(f"buffer_store_dword v{R}, off, {WS}, s{Q+2} sc1\ns_mov_b64 exec, -1")
    A.label(ng)
    nf=A.newlabel('nf')
    A(f"s_waitcnt vmcnt(0)\ns_barrier\ns_cmp_lg_u32 s{w}, 0\ns_cbranch_scc1 {nf}\ns_lshl_b32 s{Q}, s{S_S}, 7\ns_add_u32 s{Q}, s{Q}, {WS_FL+F_O*128}\ns_mov_b64 exec, 1\nbuffer_atomic_add v{ONE}, off, {WS}, s{Q}\ns_mov_b64 exec, -1")
    A.label(nf)
def stream(A):
    i=S_RANK; w=S_W; F=128; Bv=64; Gv=66; t=68
    A(f"s_lshr_b32 s{Q}, s{S_S}, 2\ns_lshl_b32 s{Q}, s{Q}, 7")
    spin_ge(A,S_WS,WS_FL+F_BF*128,8,T0,T1,Q+1,soff=f"s{Q}")
    A(f"s_lshl_b32 s{Q}, s{S_S}, 7")
    spin_ge(A,S_WS,WS_FL+F_O*128,32,T0,T1,Q+1,soff=f"s{Q}")
    A(f"s_lshl_b32 s{Q+2}, s{S_S}, 16\nbuffer_load_dwordx2 {v(Bv,2)}, v{BA}, {WS}, s{Q+2} offen sc1\nbuffer_load_dword v{Gv}, v{GA}, {WS}, s{Q} offen sc1")
    A(f"s_lshl_b32 s{Q}, s{S_S}, 18\ns_lshl_b32 s{Q+1}, s{w}, 15\ns_add_u32 s{Q}, s{Q}, s{Q+1}\ns_add_u32 s{Q}, s{Q}, {WS_O}")
    def ld(n):
        rt,k=n>>5,n&31
        if k&3==0: A(f"s_add_u32 s{Q+1}, s{Q}, {rt*131072+k*1024}")
        A(f"buffer_load_dwordx4 {v(F+4*k,4)}, v1, {WS}, s{Q+1} offen offset:{(k&3)*1024} sc1")
    for n in range(32): ld(n)
    for n in range(64):
        rt,k=n>>5,n&31
        A(f"s_waitcnt vmcnt({min(31,63-n)})")
        for nt in range(2): A(mf(ACC+8*rt+4*nt,a((k*2+nt)*4,4),F+4*k,'0' if k==0 else ACC+8*rt+4*nt))
        if n<32: ld(n+32)
    for j in range(4): A(f"ds_write_b128 v{RW}, {v(ACC+4*j,4)} offset:{j*4096}")
    A("s_waitcnt lgkmcnt(0)\ns_barrier")
    for j in range(4): A(f"ds_read_b128 {v(t+4*j,4)}, v{RR} offset:{j*1024}")
    A(f"v_lshlrev_b32 v{t+16}, 16, v{Bv}\nv_and_b32 v{t+17}, s{S_HI}, v{Bv}\nv_lshlrev_b32 v{t+18}, 16, v{Bv+1}\nv_and_b32 v{t+19}, s{S_HI}, v{Bv+1}\ns_waitcnt lgkmcnt(0)")
    for k in range(4): A(f"v_add_f32 v{t+k}, v{t+k}, v{t+4+k}\nv_add_f32 v{t+8+k}, v{t+8+k}, v{t+12+k}")
    for k in range(4): A(f"v_add_f32 v{t+k}, v{t+k}, v{t+8+k}")
    for k in range(4): A(f"v_sub_f32 v{t+k}, v{t+k}, v{t+16+k}")
    for k in range(4): A(f"v_fma_f32 v{t+k}, v{t+k}, v{Gv}, v{t+16+k}")
    A(cv(t,t)); A(cv(t+1,t+2))
    A(f"buffer_store_dwordx2 {v(t,2)}, v{OA}, {s(S_OUT,4)}, s{Q+2} offen")
def tail_role(A,stamp,o):
    i=S_RANK; w=S_W; c=64; g=65; u=66
    srd(A,S_B0,P_WO,8*MB); srd(A,S_B1,P_GW,2048); srd(A,S_A,P_X,4*MB)
    A(f"""v_lshrrev_b32 v{u}, 2, v0
    v_lshlrev_b32 v{u}, 11, v{u}
    v_and_b32 v{u+1}, 3, v0
    v_lshl_add_u32 v{u}, v{u+1}, 4, v{u}
    s_lshl_b32 s{Q}, s{w}, 21
    s_lshl_b32 s{Q+1}, s{i}, 6
    s_add_u32 s{Q}, s{Q}, s{Q+1}
    v_add_u32 v{u}, s{Q}, v{u}
    s_lshl_b32 s{Q+2}, s{w}, 15
    v_lshrrev_b32 v{u+2}, 2, v0
    v_lshlrev_b32 v{u+2}, 6, v{u+2}
    v_lshl_add_u32 v{u+2}, v{u+1}, 3, v{u+2}
    v_add_u32 v{u+2}, s{Q+2}, v{u+2}
    v_lshlrev_b32 v{L32}, 5, v0
    buffer_load_dwordx4 {v(ACC,4)}, v{L32}, {s(S_B1,4)}, 0 offen
    buffer_load_dwordx4 {v(ACC+4,4)}, v{L32}, {s(S_B1,4)}, 0 offen offset:16""")
    def dm(n): A(f"s_add_u32 m0, s{Q+2}, {(n&31)*1024}\ns_mov_b32 s{Q}, {n*32768}\nbuffer_load_dwordx4 v{u}, {s(S_B0,4)}, s{Q} offen lds")
    for n in range(32): dm(n)
    A(f"""s_mov_b32 s{S_SC}, 0x3e0293ee
    s_mov_b32 s{S_HI}, 0xffff0000
    s_lshr_b32 s{S_RT}, s{w}, 1
    s_and_b32 s{S_EH}, s{w}, 1
    v_mov_b32 v{ONE}, 1
    v_lshlrev_b32 v{L8}, 3, v0
    v_and_b32 v{c}, 15, v0
    v_lshrrev_b32 v{g}, 4, v0
    s_lshl_b32 s{Q}, s{S_RT}, 4
    v_add_u32 v{u+3}, s{Q}, v{c}
    v_lshlrev_b32 v{GA}, 2, v{u+3}
    v_add_u32 v{GA}, {WS_G}, v{GA}
    v_lshlrev_b32 v{OA}, 11, v{u+3}
    v_lshl_add_u32 v{OA}, v{g}, 3, v{OA}
    s_lshl_b32 s{Q}, s{S_EH}, 5
    s_add_u32 s{Q}, s{Q}, s{Q+1}
    v_add_u32 v{OA}, s{Q}, v{OA}
    s_lshl_b32 s{Q}, s{i}, 11
    s_lshl_b32 s{Q+1}, s{S_RT}, 10
    s_add_u32 s{Q}, s{Q}, s{Q+1}
    s_lshl_b32 s{Q+1}, s{S_EH}, 3
    s_add_u32 s{Q}, s{Q}, s{Q+1}
    s_add_u32 s{Q}, s{Q}, {WS_BF}
    v_add_u32 v{BA}, s{Q}, v1
    s_lshl_b32 s{Q}, s{w}, 10
    s_add_u32 s{Q}, s{Q}, 131072
    v_add_u32 v{RW}, s{Q}, v1
    s_lshl_b32 s{Q}, s{w}, 12
    s_add_u32 s{Q}, s{Q}, 131072
    v_add_u32 v{RR}, s{Q}, v1
    v_lshlrev_b32 v{u+4}, 2, v{g}
    v_sub_u32 v{u+3}, v{u+3}, v{u+4}
    v_mov_b32 v{u+4}, 0xf149f2ca""")
    for k in range(8): A(f"v_cmp_gt_i32 vcc, {(k>>2)*16+(k&3)}, v{u+3}\nv_cndmask_b32 v{NEG0+k}, 0, v{u+4}, vcc")
    A(f"v_cmp_gt_u32 vcc, 2, v{g}")
    for k in range(4): A(f"v_cndmask_b32 v{NEGM+k}, 0, v{u+4}, vcc\nv_mov_b32 v{ONES+k}, 0x3f803f80")
    A("s_waitcnt vmcnt(32)")
    for k in range(8): A(f"v_lshlrev_b32 v{GW+2*k}, 16, v{ACC+k}\nv_and_b32 v{GW+2*k+1}, s{S_HI}, v{ACC+k}")
    for grp in range(8):
        A(f"s_waitcnt vmcnt({24 if grp<5 else 8*(7-grp)})")
        for ks in range(4*grp,4*grp+4):
            for nt in range(2):
                for hf in range(2): A(f"ds_read_b64_tr_b16 {a((ks*2+nt)*4+2*hf,2)}, v{u+2} offset:{(ks&15)*2048+hf*1024+nt*32}")
        if grp<4:
            A("s_waitcnt lgkmcnt(0)")
            for n in range(32+8*grp,40+8*grp): dm(n)
    A(f"s_waitcnt lgkmcnt(0)\ns_mov_b32 s{S_S}, s{S_Y}")
    stamp(A,T0)
    A.label('T_loop')
    att(A); stream(A)
    stamp(A,T0)
    A(f"s_add_u32 s{S_S}, s{S_S}, 6\ns_cmp_lt_u32 s{S_S}, 64\ns_cbranch_scc1 T_loop")
```

```python
import sys
from common import *
import gemm
K="gated_mix__memory_aug_recurrent_mem_tr__geglu_ffn__prompt"
S_TS=98
def build(mode='full',stamps=False,opts={}):
    A=Asm()
    def stamp(A,vt=16):
        if not stamps: return
        L=A.newlabel('ts')
        A(f"s_cmp_lg_u32 s{S_W}, 0\ns_cbranch_scc1 {L}\ns_memrealtime s[100:101]\ns_waitcnt lgkmcnt(0)\nv_mov_b32 v{vt}, s100\nv_mov_b32 v{vt+1}, 0\ns_mov_b64 exec, 1")
        A(f"buffer_store_dword v{vt}, v{vt+1}, {s(S_WS,4)}, s{S_TS} offen\ns_mov_b64 exec, -1\ns_add_u32 s{S_TS}, s{S_TS}, 4")
        A.label(L)
    A(f"s_cmp_ge_u32 s2, 256\ns_cbranch_scc1 L_end")
    if stamps: A("s_memrealtime s[100:101]")
    A(f"s_load_dwordx4 s[88:91], s[0:1], 96\ns_load_dwordx16 s[64:79], s[0:1], 0\ns_load_dwordx8 s[80:87], s[0:1], 64\ns_load_dwordx2 s[92:93], s[0:1], 112")
    A(f"s_getreg_b32 s{S_VX}, hwreg(HW_REG_XCC_ID, 0, 3)\nv_lshrrev_b32 v1, 6, v0\nv_and_b32 v0, 63, v0\nv_readfirstlane_b32 s{S_W}, v1\nv_lshlrev_b32 v1, 4, v0")
    for i in range(2,32): A(f"v_mov_b32 v{i}, 0")
    A(f"s_mov_b32 s{S_BUD}, 200000\ns_mov_b32 s{S_RANK}, 0\ns_waitcnt lgkmcnt(0)")
    srd(A,S_DBG,P_DBG,256); srd(A,S_WS,P_WS,256*MB); srd(A,S_A,P_X,4*MB); srd(A,S_B0,P_WQ,8*MB); srd(A,S_B1,P_WK,8*MB); srd(A,S_OUT,P_OUT,4*MB)
    if opts.get('fakexcc'): A(f"s_lshr_b32 s{S_VX}, s2, 4\ns_mul_i32 s{S_VX}, s{S_VX}, s{S_VX}\ns_and_b32 s{S_VX}, s{S_VX}, 7")
    A(f"s_cmp_lg_u32 s{S_W}, 0\ns_cbranch_scc1 C_wait")
    A(f"s_lshl_b32 s32, s{S_VX}, 4\nv_mov_b32 v2, s32\nv_mov_b32 v3, 1\ns_mov_b64 exec, 1\nbuffer_atomic_add v3, v2, {s(S_DBG,4)}, 0 offen sc0\ns_waitcnt vmcnt(0)\ns_mov_b64 exec, -1\nv_readfirstlane_b32 s{S_RANK}, v3")
    A(f"s_cmp_lt_u32 s{S_RANK}, 32\ns_cbranch_scc1 C_got")
    A(f"v_mov_b32 v2, {D_OVF*4}\nv_mov_b32 v3, 1\ns_mov_b64 exec, 1\nbuffer_atomic_add v3, v2, {s(S_DBG,4)}, 0 offen sc0\ns_waitcnt vmcnt(0)\ns_mov_b64 exec, -1\nv_readfirstlane_b32 s33, v3\nv_and_b32 v2, 0x70, v1")
    A.label('C_sp')
    A(f"buffer_load_dword v3, v2, {s(S_DBG,4)}, 0 offen sc1\ns_waitcnt vmcnt(0)\ns_mov_b32 s34, 0")
    for i in range(8): A(f"v_readlane_b32 s{40+i}, v3, {i}\ns_add_u32 s34, s34, s{40+i}")
    A(f"s_cmp_ge_u32 s34, 256\ns_cbranch_scc1 C_all\ns_sleep 4\ns_sub_u32 s{S_BUD}, s{S_BUD}, 1\ns_cbranch_scc0 C_sp\ns_mov_b32 s{S_BUD}, 0")
    A.label('C_all')
    for i in range(8):
        A(f"s_min_u32 s35, s{40+i}, 32\ns_sub_u32 s36, 32, s35\ns_mov_b32 s{S_VX}, {i}\ns_add_u32 s{S_RANK}, s35, s33\ns_cmp_lt_u32 s33, s36\ns_cbranch_scc1 C_got\ns_sub_u32 s33, s33, s36")
    A.label('C_got')
    A(f"s_lshl_b32 s32, s{S_VX}, 8\ns_or_b32 s32, s32, s{S_RANK}\nv_mov_b32 v3, s32\nv_mov_b32 v2, 163836\nds_write_b32 v2, v3\ns_waitcnt lgkmcnt(0)")
    A.label('C_wait')
    A(f"s_barrier\nv_mov_b32 v2, 163836\nds_read_b32 v3, v2\ns_waitcnt lgkmcnt(0)\nv_readfirstlane_b32 s32, v3\ns_barrier")
    A(f"s_and_b32 s{S_RANK}, s32, 31\ns_lshr_b32 s{S_VX}, s32, 8\ns_and_b32 s{S_VX}, s{S_VX}, 7")
    if stamps:
        A(f"s_lshl_b32 s{S_TS}, s{S_VX}, 5\ns_add_u32 s{S_TS}, s{S_TS}, s{S_RANK}\ns_lshl_b32 s{S_TS}, s{S_TS}, 12\ns_add_u32 s{S_TS}, s{S_TS}, {WS_TS}")
        A(f"v_mov_b32 v16, s100\nv_mov_b32 v17, 0\nbuffer_store_dword v16, v17, {s(S_WS,4)}, s{S_TS} offen\ns_add_u32 s{S_TS}, s{S_TS}, 4")
        stamp(A)
    A(f"s_cmp_eq_u32 s{S_VX}, {XA}\ns_cbranch_scc1 R_start\ns_cmp_eq_u32 s{S_VX}, {XB}\ns_cbranch_scc1 R_start")
    A(f"s_sub_u32 s{S_Y}, s{S_VX}, 2\ns_cmp_eq_u32 s{S_VX}, 1\ns_cselect_b32 s{S_Y}, 0, s{S_Y}")
    A(f"s_cmp_lg_u32 s32, {7*256+31}\ns_cbranch_scc1 G_start\ns_cmp_lg_u32 s{S_W}, 3\ns_cbranch_scc1 G_start\nv_lshlrev_b32 v2, 7, v0\nv_mov_b32 v3, 0")
    for i in range(NFLAGS//64): A(f"s_mov_b32 s33, {WS_FL+i*8192}\nbuffer_store_dword v3, v2, {s(S_WS,4)}, s33 offen sc1")
    A(f"s_waitcnt vmcnt(0)\nv_mov_b32 v2, {D_INIT*4}\nv_mov_b32 v3, 1\nbuffer_store_dword v3, v2, {s(S_DBG,4)}, 0 offen sc1\ns_branch G_start")
    sched=opts.get('sched') or [
     [('sk',0,1,0),('up',0,3,0),('up',0,3,16),('flush',),('dn',0,2,0),('bq',4,2,0),('flush',)],
     [('sk',0,1,16),('up',0,3,4),('up',0,3,20),('flush',),('dn',4,2,0),('bq',4,2,8),('flush',)],
     [('sv',0,1,0),('up',0,3,8),('up',0,3,24),('flush',),('dn',8,2,0),('flush',)],
     [('sv',0,1,16),('up',0,3,12),('kv7',),('flush',),('dn',12,2,0),('flush',)],
     [('bk',1,1,0),('bk',3,1,0),('bk',5,1,0),('bq',0,2,0),('flush',)],
     [('bv',1,1,0),('bv',3,1,0),('bv',5,1,0),('bq',0,2,8),('flush',)]]
    gemm.gemm_role(A,sched,'T_start',stamp)
    A.label('T_start')
    if mode in('full','tail'):
        import tail; tail.tail_role(A,stamp,opts)
    A("s_branch L_fin")
    A.label('R_start')
    if mode in('full','rec'):
        import rec; rec.rec_role(A,stamp,opts)
    A.label('L_fin')
    A(f"s_cmp_lg_u32 s{S_BUD}, 0\ns_cbranch_scc1 L_end\nv_mov_b32 v2, {D_ERR*4}\nv_mov_b32 v3, 1\nbuffer_atomic_add v3, v2, {s(S_DBG,4)}, 0 offen")
    A.label('L_end')
    A("s_endpgm")
    ref=open(f"cdna_kernels/{K}.s.ref").read()
    head=ref[:ref.index("    ; v1 = byte offset")].replace("grid=(8192,1,1) block=(256,1,1) lds=0","grid=(256,1,1) block=(256,1,1) lds=163840")
    foot=ref[ref.index(".section .rodata"):].replace("next_free_vgpr 256","next_free_vgpr 512")
    return head+A.text()+foot
if __name__=='__main__':
    mode=sys.argv[1]; out=sys.argv[2]; st='ts' in sys.argv[3:]
    opts={k:eval(x) for k,x in (o.split('=') for o in sys.argv[3:] if '=' in o)}
    open(out,'w').write(build(mode,st,opts))
```

```python
from asm import *
MB=1<<20
WS_A=0; WS_C=2*MB; WS_FL=2*MB+512*1024; WS_B=3*MB; WS_TS=4*MB
WS_KM=8*MB; WS_VM=16*MB; WS_KX=32*MB; WS_VX=48*MB; WS_QX=64*MB; WS_O=80*MB; WS_H=96*MB; WS_BF=112*MB; WS_G=7*MB; WS_AP=128*MB
F_KV=0
F_Q=16
F_H=24
F_BF=56
F_PROG=64
F_O=128
F_P=320
NFLAGS=512
D_CNT=0
D_OVF=32; D_INIT=36; D_RDY=40; D_P0=44; D_P1=45; D_ERR=48
S_WS=4; S_A=8; S_B0=12; S_B1=16; S_DBG=20; S_OUT=24
S_VX=28; S_RANK=29; S_W=30; S_Y=31
P_X=64; P_MEM=66; P_WQ=68; P_WK=70; P_WV=72; P_WO=74; P_WG=80; P_WU=82; P_WD=84; P_GW=86; P_OUT=88; P_DBG=90; P_WS=92
S_BUD=94
XA=0; XB=2
def srd(A,d,p,size):
    A(f"s_mov_b32 s{d}, s{p}\ns_mov_b32 s{d+1}, s{p+1}\ns_mov_b32 s{d+2}, {hex(size)}\ns_mov_b32 s{d+3}, 0x20000")
def spin_ge(A,sr,off,target,vt,va,st,soff='0'):
    L=A.newlabel('spin'); E=A.newlabel('spun')
    A(f"v_mov_b32 v{va}, {hex(off)}")
    A.label(L)
    A(f"buffer_load_dword v{vt}, v{va}, {s(sr,4)}, {soff} offen sc1\ns_waitcnt vmcnt(0)\nv_readfirstlane_b32 s{st}, v{vt}")
    A(f"s_cmp_ge_u32 s{st}, {target}\ns_cbranch_scc1 {E}\ns_sleep 4\ns_sub_u32 s{S_BUD}, s{S_BUD}, 1\ns_cbranch_scc0 {L}\ns_mov_b32 s{S_BUD}, 0")
    A.label(E)
```

```python
from common import *
S_SA=32
S_SB=40
S_STA=44; S_STB=45; S_IT=46; S_CUR=47; S_PREV=48; S_RND=49; S_MB=50; S_CT=51
S_EO=52; S_EF=53; S_PEO=54; S_PEF=55; S_T=56
S_M0=95; S_NI=96; S_B1O=97
V_L=0; V_L16=1; V_AO=2; V_BO=3; V_RA=4; V_RB=6; V_T=16; V_FL=14; V_ONE=15; V_BO1=24
F0=128; F1=192; VE=64
LB=0; LA=65536
T_NONE=0;T_BK=1;T_BV=2;T_UP=3;T_SK=4;T_SV=5;T_DN=6;T_FLUSH=7
OPT={}
def dma(T,buf):
    g=[]
    nb=2 if T==8 else 1
    for i in range(T):
        g.append([f"s_add_u32 m0, s{S_M0}, {LA+buf*32768+i*4096}", f"buffer_load_dwordx4 v{V_AO}, {s(S_A,4)}, s{S_SA+i} offen SCA lds"])
    h=[]
    for j in range(nb):
        for i in range(4):
            h.append([f"s_add_u32 m0, s{S_M0}, {LB+buf*32768+j*16384+i*4096}", f"buffer_load_dwordx4 v{V_BO1 if j else V_BO}, {s(S_B1 if j else S_B0,4)}, s{S_SB+i} offen lds"])
    out=[]
    for x,y in zip(h,g): out+= [x,y]
    out[-1]=out[-1]+[f"v_add_u32 v{V_AO}, s{S_STA}, v{V_AO}", f"v_add_u32 v{V_BO}, s{S_STB}, v{V_BO}"]+([f"v_add_u32 v{V_BO1}, s{S_STB}, v{V_BO1}"] if nb==2 else [])
    return [[t.replace(' SCA',' sc1') for t in x] for x in out]
def reads(T,F,buf,sub):
    g=[]
    for i in range(T):
        g.append(f"ds_read_b128 {v(F+4*i,4)}, v{V_RA+sub} offset:{buf*32768+i*2048}")
        for half in range(2):
            g.append(f"ds_read_b64_tr_b16 {v(F+32+4*i+2*half,2)}, v{V_RB+i} offset:{buf*32768+(32*sub+4*half)*256}")
    return g
def mfmas(T,F,swap,first):
    g=[]
    for mt in range(T):
        for nt in range(T):
            x=v(F+4*mt,4); w=v(F+32+4*nt,4); d=a(4*(T*mt+nt),4)
            p,q=(w,x) if swap else (x,w)
            g.append(f"v_mfma_f32_16x16x32_bf16 {d}, {p}, {q}, {'0' if first else d}")
    return g
def flag_add(A):
    L=A.newlabel('nf')
    A(f"s_cmp_eq_u32 s{S_PEF}, 0\ns_cbranch_scc1 {L}\nv_mov_b32 v{V_FL}, s{S_PEF}\ns_mov_b64 exec, 1")
    A(f"buffer_atomic_add v{V_ONE}, v{V_FL}, {s(S_WS,4)}, 0 offen\ns_mov_b64 exec, -1\ns_mov_b32 s{S_PEF}, 0")
    A.label(L)
def iteration(A,T,swap,buf,first=False,vm=True,nxt=True,do_dma=True,flag=False):
    n=T*T
    for t in interleave(mfmas(T,F0,swap,first),reads(T,F1,buf,1),start=0,end=n*3//4): A(t)
    A("s_waitcnt vmcnt(0) lgkmcnt(0)" if vm else "s_waitcnt lgkmcnt(0)")
    A("s_barrier")
    if flag: flag_add(A)
    m=mfmas(T,F1,swap,False)
    if nxt: m=interleave(m,reads(T,F0,1-buf,0),start=0,end=n*3//4)
    if do_dma: m=interleave(m,dma(T,buf),start=1,end=len(m)-2)
    for t in m: A(t)
    if nxt: A("s_waitcnt lgkmcnt(0)")
def loop(A,T,swap,name):
    A.label(name)
    A("s_barrier")
    for t in reads(T,F0,0,0): A(t)
    A(f"s_sub_u32 s{S_IT}, s{S_NI}, 4\ns_waitcnt lgkmcnt(0)")
    iteration(A,T,swap,0,first=True,vm=False); iteration(A,T,swap,1,flag=True)
    A.label(name+'_l')
    iteration(A,T,swap,0); iteration(A,T,swap,1)
    A(f"s_sub_u32 s{S_IT}, s{S_IT}, 2\ns_cmp_lg_u32 s{S_IT}, 0\ns_cbranch_scc1 {name}_l")
    iteration(A,T,swap,0,do_dma=False); iteration(A,T,swap,1,vm=False,nxt=False,do_dma=False)
    A("s_branch G_next")
def cvt4(A,dst,accs,tmp):
    for j,ac in enumerate(accs):
        for i in range(4): A(f"v_accvgpr_read_b32 v{tmp+4*j+i}, a{ac+i}")
    for j in range(4): A(f"v_cvt_pk_bf16_f32 v{dst+j}, v{tmp+2*j}, v{tmp+2*j+1}")
def epilogue(A,typ):
    T=4 if typ in(T_SK,T_SV) else 8
    acc=lambda mt,nt:4*(T*mt+nt)
    st=[]
    if typ in(T_BK,T_SK): st=[((mt>>1)*262144+(mt&1)*4096,j*1024,(acc(mt,2*j),acc(mt,2*j+1))) for mt in range(T) for j in range(T//2)]
    if typ in(T_BV,T_SV): st=[(j*262144+(nt>>2)*4096,(nt&3)*1024,(acc(2*j,nt),acc(2*j+1,nt))) for j in range(T//2) for nt in range(T)]
    if typ==T_DN: st=[((mt>>1)*65536+(j>>1)*4096,(j&1)*2048+(mt&1)*1024,(acc(mt,2*j),acc(mt,2*j+1))) for m2 in range(4) for j2 in range(2) for mt in (2*m2,2*m2+1) for j in (2*j2,2*j2+1)]
    if typ==T_UP: st=[(mt*112*1024,j*1024,(acc(mt,2*j),acc(mt,2*j+1))) for mt in range(T) for j in range(2)]
    if typ==T_UP: A(f"s_mov_b32 s{S_T+1}, 0xbdd2d3e8\nv_mov_b32 v{VE+40}, 0xc0135761")
    last=None
    for k,(so,imm,ac) in enumerate(st):
        d=VE+4*(k&3); t=VE+16
        if so!=last: A(f"s_add_u32 s{S_T}, s{S_PEO}, {so}"); last=so
        if typ==T_UP:
            G=t; U=t+8; X=t+16
            for j in range(2):
                for i in range(4): A(f"v_accvgpr_read_b32 v{G+4*j+i}, a{ac[j]+i}")
            for i in range(8): A(f"v_mul_f32 v{X+i}, v{G+i}, v{G+i}")
            for i in range(8): A(f"v_fma_f32 v{X+i}, v{X+i}, s{S_T+1}, v{VE+40}")
            for i in range(8): A(f"v_mul_f32 v{X+i}, v{X+i}, v{G+i}")
            for i in range(8): A(f"v_exp_f32 v{X+i}, v{X+i}\nv_accvgpr_read_b32 v{U+i}, a{ac[i>>2]+16+(i&3)}")
            for i in range(8): A(f"v_add_f32 v{X+i}, 1.0, v{X+i}")
            for i in range(8): A(f"v_rcp_f32 v{X+i}, v{X+i}\nv_mul_f32 v{G+i}, v{G+i}, v{U+i}")
            for i in range(8): A(f"v_mul_f32 v{G+i}, v{G+i}, v{X+i}")
            for j in range(4): A(f"v_cvt_pk_bf16_f32 v{d+j}, v{G+2*j}, v{G+2*j+1}")
        else: cvt4(A,d,ac,t)
        A(f"buffer_store_dwordx4 {v(d,4)}, v{V_L16}, {s(S_WS,4)}, s{S_T} offen offset:{imm} sc1")
    A(f"s_waitcnt vmcnt({len(st)})")
def setup(A,typ,isq=False):
    T=4 if typ in(T_SK,T_SV) else 8
    t=V_T; w=S_W; q=S_T
    RS={T_UP:7168,T_DN:2048}.get(typ,8192)
    A(f"s_mov_b32 s{S_CUR}, {typ}\ns_mov_b32 s{S_NI}, {14 if typ==T_DN else 16}\ns_mov_b32 s{S_STB}, {64*RS}")
    A(f"s_lshr_b32 s{q}, s{w}, 1\ns_and_b32 s{q+1}, s{w}, 1")
    P={T_BK:P_WQ if isq else P_WK,T_SK:P_WK,T_BV:P_WV,T_SV:P_WV,T_UP:P_WG,T_DN:P_WD}[typ]
    size=7*MB if typ in(T_UP,T_DN) else 8*MB
    srd(A,S_B0,P,size); srd(A,S_B1,P_WU if typ==T_UP else P,size)
    for i in range(4): A(f"s_mov_b32 s{S_SB+i}, {(4*(2*(i&1)+8*(i>>1)) if typ==T_DN else 16*i)*RS}")
    A(f"v_lshrrev_b32 v{t}, 4, v{V_L}\ns_lshl_b32 s{q+2}, s{q}, 2\nv_or_b32 v{t+1}, s{q+2}, v{t}\nv_bfe_u32 v{t+2}, v{V_L}, 1, 3\nv_xor_b32 v{t+1}, v{t+1}, v{t+2}")
    A(f"v_lshlrev_b32 v{t+1}, 5, v{t+1}\nv_and_b32 v{t+2}, 1, v{V_L}\nv_lshl_add_u32 v{t+1}, v{t+2}, 4, v{t+1}")
    if typ==T_DN: A(f"s_lshl_b32 s{q+2}, s{q+1}, 2\ns_add_u32 s{q+2}, s{q+2}, s{q}\ns_lshl_b32 s{q+2}, s{q+2}, 2")
    else: A(f"s_lshl_b32 s{q+2}, s{w}, 2")
    A(f"v_add_u32 v{t}, s{q+2}, v{t}\nv_mul_u32_u24 v{t}, {RS}, v{t}")
    if typ==T_DN: A(f"s_lshr_b32 s{q+4}, s{S_CT}, 2\ns_and_b32 s{S_CT}, s{S_CT}, 3\ns_mul_i32 s{q+3}, s{q+4}, {896*2048}\nv_add_u32 v{t}, s{q+3}, v{t}")
    A(f"s_lshl_b32 s{q+2}, s{S_CT}, {9 if typ in(T_BK,T_BV,T_DN) else 8}")
    A(f"v_add3_u32 v{V_BO}, v{t}, v{t+1}, s{q+2}\nv_add_u32 v{V_BO1}, {0 if typ==T_UP else 256}, v{V_BO}")
    if typ==T_DN:
        srd(A,S_A,P_WS,256*MB)
        for i in range(8): A(f"s_mov_b32 s{S_SA+i}, {WS_H+2*i*112*1024}")
        A(f"s_mov_b32 s{S_STA}, 2048\ns_lshl_b32 s{q+2}, s{S_MB}, 4\ns_add_u32 s{q+2}, s{q+2}, s{q}\ns_mul_i32 s{q+2}, s{q+2}, 112\ns_add_u32 s{q+2}, s{q+2}, s{q+1}\ns_mul_i32 s{q+3}, s{q+4}, 28\ns_add_u32 s{q+2}, s{q+2}, s{q+3}\ns_lshl_b32 s{q+2}, s{q+2}, 10")
        A(f"v_add_u32 v{V_AO}, s{q+2}, v{V_L16}")
        A(f"s_lshl_b32 s{q+2}, s{q}, 14\ns_add_u32 s{q+2}, s{q+2}, {LA}\nv_add_u32 v{V_RA}, s{q+2}, v{V_L16}\nv_add_u32 v{V_RA+1}, 1024, v{V_RA}")
    else:
        srd(A,S_A,P_X,4*MB)
        for i in range(T): A(f"s_mov_b32 s{S_SA+i}, {i*65536}")
        A(f"s_mov_b32 s{S_STA}, 128\nv_lshrrev_b32 v{t}, 4, v{V_L}\ns_lshl_b32 s{q+2}, s{q+1}, 2\nv_or_b32 v{t}, s{q+2}, v{t}\nv_and_b32 v{t+1}, 7, v{V_L}\nv_xor_b32 v{t}, v{t}, v{t+1}")
        A(f"v_lshrrev_b32 v{t+1}, 3, v{V_L}\nv_lshlrev_b32 v{t+1}, 11, v{t+1}\nv_lshl_add_u32 v{t}, v{t}, 4, v{t+1}")
        A(f"s_lshl_b32 s{q+2}, s{S_MB}, {19 if T==8 else 18}\ns_lshl_b32 s{q+3}, s{w}, 14\ns_add_u32 s{q+2}, s{q+2}, s{q+3}\nv_add_u32 v{V_AO}, s{q+2}, v{t}")
        A(f"v_and_b32 v{t}, 15, v{V_L}\nv_lshrrev_b32 v{t+1}, 4, v{V_L}\nv_lshrrev_b32 v{t+2}, 1, v{t}\nv_xor_b32 v{t+1}, v{t+1}, v{t+2}\nv_lshlrev_b32 v{t}, 7, v{t}\nv_lshl_add_u32 v{t}, v{t+1}, 4, v{t}")
        A(f"s_mul_i32 s{q+2}, s{q}, {T*2048}\ns_add_u32 s{q+2}, s{q+2}, {LA}\nv_add_u32 v{V_RA}, s{q+2}, v{t}\nv_xor_b32 v{V_RA+1}, 64, v{V_RA}")
    for b in range(2):
        for g in dma(T,b):
            for x in g: A(x)
    tch=lambda sr,so='0':A(f"buffer_load_dword v{t+6}, v{t}, {s(sr,4)}, {so} offen")
    if OPT.get('tch',1):
        if typ==T_UP:
            A(f"s_lshl_b32 s{q+2}, s{S_MB}, 2\ns_add_u32 s{q+2}, s{q+2}, s{w}\ns_mul_i32 s{q+2}, s{q+2}, {32*RS}\ns_lshl_b32 s{q+3}, s{S_CT}, 8\ns_add_u32 s{q+2}, s{q+2}, s{q+3}")
            A(f"v_lshrrev_b32 v{t}, 1, v{V_L}\nv_mul_u32_u24 v{t}, {RS}, v{t}\nv_and_b32 v{t+1}, 1, v{V_L}\nv_lshl_add_u32 v{t}, v{t+1}, 7, v{t}")
            tch(S_B0,f"s{q+2}"); tch(S_B1,f"s{q+2}")
        if typ==T_DN:
            A(f"s_lshl_b32 s{q+2}, s{q+4}, 3\ns_add_u32 s{q+2}, s{q+2}, s{S_MB}\ns_lshl_b32 s{q+2}, s{q+2}, 2\ns_add_u32 s{q+2}, s{q+2}, s{w}\ns_mul_i32 s{q+2}, s{q+2}, {28*RS}\ns_lshl_b32 s{q+3}, s{S_CT}, 9\ns_add_u32 s{q+2}, s{q+2}, s{q+3}")
            A(f"v_lshrrev_b32 v{t}, 2, v{V_L}\nv_lshlrev_b32 v{t}, 11, v{t}\nv_and_b32 v{t+1}, 3, v{V_L}\nv_lshl_add_u32 v{t}, v{t+1}, 7, v{t}\ns_add_u32 s{q+3}, s{q+2}, {12*RS}")
            tch(S_B0,f"s{q+2}"); tch(S_B0,f"s{q+3}")
        if T==4 and OPT.get('tch',1)>1:
            A(f"s_lshl_b32 s{q+2}, s{S_MB}, 2\ns_add_u32 s{q+2}, s{q+2}, s{w}\ns_lshl_b32 s{q+2}, s{q+2}, 18\ns_lshl_b32 s{q+3}, s{S_CT}, 8\ns_add_u32 s{q+2}, s{q+2}, s{q+3}")
            A(f"v_lshrrev_b32 v{t}, 1, v{V_L}\nv_lshlrev_b32 v{t}, 13, v{t}\nv_and_b32 v{t+1}, 1, v{V_L}\nv_lshl_add_u32 v{t}, v{t+1}, 7, v{t}")
            for i in range(4): tch(S_B0,f"s{q+2}"); A(f"s_add_u32 s{q+2}, s{q+2}, {2*MB}")
        if typ!=T_DN:
            e=1 if T==8 else 0
            A(f"s_lshl_b32 s{q+2}, s{S_MB}, 4\ns_and_b32 s{q+3}, s{S_CT}, 15\ns_add_u32 s{q+2}, s{q+2}, s{q+3}\ns_lshl_b32 s{q+2}, s{q+2}, 2\ns_add_u32 s{q+2}, s{q+2}, s{w}\ns_lshl_b32 s{q+2}, s{q+2}, {12+e}\nv_lshlrev_b32 v{t}, {6+e}, v{V_L}")
            tch(S_A,f"s{q+2}")
    A(f"v_lshrrev_b32 v{t}, 4, v{V_L}\nv_bfe_u32 v{t+1}, v{V_L}, 2, 2\nv_lshl_add_u32 v{t}, v{t}, 3, v{t+1}\nv_lshlrev_b32 v{t}, 8, v{t}\nv_and_b32 v{t+1}, 3, v{V_L}\nv_lshl_add_u32 v{t}, v{t+1}, 3, v{t}")
    A(f"v_bfe_u32 v{t+1}, v{V_L}, 2, 3\nv_lshl_add_u32 v{t}, v{t+1}, 5, v{t}")
    if typ in(T_BK,T_BV,T_DN):
        A(f"s_lshl_b32 s{q+2}, s{q+1}, 14\nv_add_u32 v{t}, s{q+2}, v{t}")
        for i in range(8): A(f"v_xor_b32 v{V_RB+i}, {i*32}, v{t}")
    else:
        A(f"s_lshl_b32 s{q+2}, s{q+1}, 7\nv_xor_b32 v{t}, s{q+2}, v{t}")
        for i in range(T): A(f"v_xor_b32 v{V_RB+i}, {(i&3)*32+(i>>2)*16384}, v{t}")
    if typ in(T_BK,T_BV):
        base=WS_QX if isq else (WS_KX if typ==T_BK else WS_VX)
        A(f"s_lshl_b32 s{q+2}, s{S_MB}, 21\ns_lshl_b32 s{q+3}, s{q}, 20\ns_add_u32 s{q+2}, s{q+2}, s{q+3}\ns_lshl_b32 s{q+3}, s{S_CT}, 14\ns_add_u32 s{q+2}, s{q+2}, s{q+3}\ns_lshl_b32 s{q+3}, s{q+1}, 13")
        fl=F_Q if isq else F_KV+1
    elif typ in(T_SK,T_SV):
        base=WS_KX if typ==T_SK else WS_VX
        A(f"s_lshl_b32 s{q+2}, s{S_MB}, 20\ns_lshl_b32 s{q+3}, s{q}, 19\ns_add_u32 s{q+2}, s{q+2}, s{q+3}\ns_lshl_b32 s{q+3}, s{S_CT}, 13\ns_add_u32 s{q+2}, s{q+2}, s{q+3}\ns_lshl_b32 s{q+3}, s{q+1}, {11 if typ==T_SK else 12}")
        fl=F_KV
    elif typ==T_UP:
        base=WS_H
        A(f"s_lshl_b32 s{q+2}, s{S_MB}, 1\ns_add_u32 s{q+2}, s{q+2}, s{q}\ns_mul_i32 s{q+2}, s{q+2}, {8*112*1024}\ns_lshl_b32 s{q+3}, s{S_CT}, 12\ns_add_u32 s{q+2}, s{q+2}, s{q+3}\ns_lshl_b32 s{q+3}, s{q+1}, 11")
        fl=F_H
        A(f"s_mul_i32 s{q+4}, s{S_CT}, 37\ns_lshr_b32 s{q+4}, s{q+4}, 8\ns_lshl_b32 s{q+4}, s{q+4}, 3\ns_add_u32 s{S_MB}, s{S_MB}, s{q+4}")
    else:
        base=WS_BF
        A(f"s_lshl_b32 s{q+2}, s{S_MB}, 19\ns_lshl_b32 s{q+3}, s{q}, 18\ns_add_u32 s{q+2}, s{q+2}, s{q+3}\ns_lshl_b32 s{q+3}, s{S_CT}, 14\ns_add_u32 s{q+2}, s{q+2}, s{q+3}\ns_lshl_b32 s{q+3}, s{q+4}, 22\ns_add_u32 s{q+2}, s{q+2}, s{q+3}\ns_lshl_b32 s{q+3}, s{q+1}, 13")
        fl=F_BF
    A(f"s_add_u32 s{q+2}, s{q+2}, s{q+3}\ns_add_u32 s{S_EO}, s{q+2}, {base}")
    A(f"s_lshl_b32 s{q+2}, s{S_MB}, 7\ns_add_u32 s{q+2}, s{q+2}, {WS_FL+fl*128}\ns_cmp_eq_u32 s{w}, 0\ns_cselect_b32 s{S_EF}, s{q+2}, 0")
    A("s_branch G_epi")
def ts(A,slot):
    pass
def gemm_role(A,sched,after,stamp):
    A.label('G_start')
    A(f"s_mov_b32 s{S_EF}, 0\ns_mov_b32 s{S_EO}, 0\ns_mov_b32 s{S_PREV}, 0\ns_mov_b32 s{S_PEF}, 0\ns_mov_b32 s{S_PEO}, 0\ns_lshl_b32 s{S_RND}, s{S_Y}, 4\ns_lshl_b32 s{S_M0}, s{S_W}, 10\nv_mov_b32 v{V_ONE}, 1")
    A("s_branch G_disp")
    A.label('G_next')
    A(f"s_mov_b32 s{S_PREV}, s{S_CUR}\ns_mov_b32 s{S_PEO}, s{S_EO}\ns_mov_b32 s{S_PEF}, s{S_EF}")
    A.label('G_next2')
    stamp(A)
    A(f"s_add_u32 s{S_RND}, s{S_RND}, 1")
    A.label('G_disp')
    i=S_RANK
    for y,tasks in enumerate(sched):
        for r,tk in enumerate(tasks):
            L=A.newlabel('d')
            A(f"s_cmp_lg_u32 s{S_RND}, {y*16+r}\ns_cbranch_scc1 {L}")
            k=tk[0]
            if k=='flush': A(f"s_mov_b32 s{S_CUR}, {T_FLUSH}\ns_branch G_epi")
            elif k=='pf':
                srd(A,S_B0,tk[1],tk[2])
                A(f"s_lshl_b32 s{S_T}, s{i}, 2\ns_add_u32 s{S_T}, s{S_T}, s{S_W}\ns_lshl_b32 s{S_T}, s{S_T}, 13\ns_add_u32 s{S_T}, s{S_T}, {tk[3]}\nv_lshlrev_b32 v{V_T}, 7, v{V_L}")
                for j in range(tk[4]): A(f"buffer_load_dword v{V_T+6}, v{V_T}, {s(S_B0,4)}, s{S_T} offen\ns_add_u32 s{S_T}, s{S_T}, {MB}")
                A(f"s_add_u32 s{S_RND}, s{S_RND}, 1")
            elif k=='kv7': A(f"s_mov_b32 s{S_MB}, 7\ns_and_b32 s{S_CT}, s{i}, 15\ns_cmp_lt_u32 s{i}, 16\ns_cbranch_scc1 G_s_bk\ns_branch G_s_bv")
            else:
                mb0,lg,ct0=tk[1:]
                A(f"s_and_b32 s{S_MB}, s{i}, {(1<<lg)-1}\ns_add_u32 s{S_MB}, s{S_MB}, {mb0}\ns_lshr_b32 s{S_CT}, s{i}, {lg}\ns_add_u32 s{S_CT}, s{S_CT}, {ct0}\ns_branch G_s_{k}")
            A.label(L)
    A(f"s_branch {after}")
    for k,typ,isq in(('bk',T_BK,0),('bq',T_BK,1),('bv',T_BV,0),('up',T_UP,0),('sk',T_SK,0),('sv',T_SV,0),('dn',T_DN,0)):
        A.label('G_s_'+k)
        if k=='dn':
            A(f"s_lshr_b32 s{S_T}, s{S_CT}, 2\ns_lshl_b32 s{S_T}, s{S_T}, 3\ns_add_u32 s{S_T}, s{S_T}, s{S_MB}\ns_lshl_b32 s{S_T}, s{S_T}, 7")
            spin_ge(A,S_WS,WS_FL+F_H*128,7,V_T,V_T+1,S_T+1,soff=f"s{S_T}")
        setup(A,typ,isq)
    A.label('G_epi')
    for typ in(T_BK,T_BV,T_UP,T_SK,T_SV,T_DN): A(f"s_cmp_eq_u32 s{S_PREV}, {typ}\ns_cbranch_scc1 G_e_{typ}")
    spin_ge(A,S_DBG,D_INIT*4,1,V_T,V_T+1,S_T+1)
    A("s_waitcnt vmcnt(0)\ns_branch G_ld")
    for typ in(T_BK,T_BV,T_UP,T_SK,T_SV,T_DN):
        A.label(f'G_e_{typ}'); A.fence(); epilogue(A,typ); A("s_branch G_ld")
    A.label('G_ld')
    for typ,n in((T_BK,'bs'),(T_UP,'bs'),(T_BV,'bn'),(T_SK,'ss'),(T_DN,'bs'),(T_SV,'sn')): A(f"s_cmp_eq_u32 s{S_CUR}, {typ}\ns_cbranch_scc1 G_l_{n}")
    A("s_waitcnt vmcnt(0)\ns_barrier"); flag_add(A); A(f"s_mov_b32 s{S_PREV}, 0\ns_branch G_next2")
    loop(A,8,True,'G_l_bs'); loop(A,8,False,'G_l_bn'); loop(A,4,True,'G_l_ss'); loop(A,4,False,'G_l_sn')
```

```python
from common import *
L_MEM=131072; L_X=139264; L_VM=143360; L_KX=145408; L_VX=153600
IDX=2; MW=3; XW=7; XR=8; L8=9; VMR=10; VMW=11; KXR=12; WV=13; BS=15; BL=16; L4=17; T0=18; T1=19
SEL1=20; SEL2=24; NEG=28; SN1=30; PB1=32; PB2=36; SENT=40; ONES=44; M=48
S_X=32; S_S=33; S_AO=34; S_AI=35; S_AOV=36; S_AIV=37; S_B=38; S_B2=39; S_CL=40; S_CS=41; S_CC=42; S_KX=43; S_VXO=44
S_KM=45; S_VM=46; S_PR=47; S_FI=48; S_FT=49; S_SC=50; S_M0K=51; S_M0V=52; S_BC=53; S_AVC=54; S_HI=55; Q=56; S_CLB=62; S_CSB=63
WS=s(S_WS,4)
def smf(d,A_,B_): return f"v_smfmac_f32_16x16x64_bf16 {v(d,4)}, {v(A_,4)}, {B_}, v{IDX}"
def mf(d,A_,B_,c): return f"v_mfma_f32_16x16x32_bf16 {v(d,4)}, {v(A_,4)}, {v(B_,4)}, {c if isinstance(c,str) else v(c,4)}"
def trimm(ksl,m): return (64*ksl+8*(m>>1)+2*(m&1))*256
DRP=14; S_AP=95; S_TAG=96; L_Z=L_KX+16384
def wv_read(n,buf):
    r=[f"ds_read_b128 {v(buf+4*m,4)}, v{WV} offset:{(n&3)*2048+m*1024}" for m in range(2)]
    if n&3==3: r.append(f"v_xor_b32 v{WV}, {[1,3,1,3][n>>2]*32768}, v{WV}")
    return r
WBUF=[96,104,120]
def fill(A):
    for n in range(2):
        for t in wv_read(n,WBUF[n]): A(t)
    for r in list(range(80,96,2))+list(range(112,120,2)): A(f"v_mov_b64 {v(r,2)}, 0")
def gaps(A,ms,fl):
    for i,m in enumerate(ms):
        A(m)
        for t in (fl[i] if i<len(fl) else []): A(t)
def step_loop(A,name,slow,stamp,o):
    sc=' sc1' if slow else ''
    ph=o.get('ph') and not slow
    def P(k,b=None):
        if ph and o.get('ack'):
            if k in (2,3): return
            if k in (8,10):
                A(f"s_memtime s[{64+2*k}:{65+2*k}]\ns_waitcnt vmcnt(0)"); k={8:2,10:3}[k]
        if ph:
            A(f"s_memtime s[{64+2*k}:{65+2*k}]")
            if b is not None: A(f"s_mov_b32 s{88+b}, s{S_BUD}")
    def slp(k,d):
        n=o.get(k,d)
        if n>=64: A(f"s_sleep {n//64}")
        n%=64
        if n>=4: A(f"s_nop {n//4-1}")
    OUT=[]
    def bud(E):
        L=A.newlabel('bd'); return f"s_sub_u32 s{S_BUD}, s{S_BUD}, 1\ns_cbranch_scc0 {L}\ns_mov_b32 s{S_BUD}, 0\ns_branch {E}\n{L}:"
    cv=lambda d,r:f"v_cvt_pk_bf16_f32 v{d}, v{r}, v{r+1}"
    pa=lambda d,b:f"v_pk_add_f32 {v(d,2)}, {v(d,2)}, {v(b,2)}"
    sw=lambda a_,b_:f"v_permlane32_swap_b32 v{a_}, v{b_}"
    ldC=lambda r:f"buffer_load_dwordx4 {v(r,4)}, v1, {WS}, s{S_CL} offen sc1\nbuffer_load_dwordx4 {v(r+4,4)}, v1, {WS}, s{S_CL} offen offset:1024 sc1"
    chk8=lambda r:[f"v_max3_u32 v{T0}, v{r}, v{r+1}, v{r+2}",f"v_max3_u32 v{T1}, v{r+3}, v{r+4}, v{r+5}",f"v_max3_u32 v{T0}, v{T0}, v{r+6}, v{r+7}",f"v_max_u32 v{T0}, v{T0}, v{T1}",f"v_cmp_eq_u32 vcc, -1, v{T0}"]
    ad=lambda d,x_,y_:f"v_add_f32 v{d}, v{x_}, v{y_}"
    tag=lambda d,r:f"v_bfi_b32 v{d}, 1, s{S_TAG}, v{r}"
    bo=lambda d,x_,y_,z_,t:f"v_bitop3_b32 v{d}, {x_}, {y_}, {z_} bitop3:{hex(t)}"
    TG=f"s{S_TAG}"; N1=["s_nop 1"]
    drop=o.get('drop',1); c2=o.get('c2',0); a2=o.get('a2',1); b2=o.get('b2',1)
    A.label(name+'_top')
    A(f"s_bfe_u32 s{S_TAG}, s{S_S}, 0x10001")
    slp('dc',320); A(ldC(M))
    if c2: slp('dc2',64); A(ldC(120))
    A.label(name+'_cw')
    A(f"s_waitcnt vmcnt({2*c2})")
    A.label(name)
    A(f"ds_write_b128 v{MW}, {v(M,4)}\nds_write_b128 v{MW}, {v(M+4,4)} offset:1024")
    qk=lambda i:[smf(80,M+4*i,a((i*2)*8,8)),smf(84,M+4*i,a(128+(i*2)*8,8)),smf(88,M+4*i,a((i*2+1)*8,8)),smf(92,M+4*i,a(128+(i*2+1)*8,8))]
    c8=chk8(M)
    gaps(A,qk(0)[:2],[c8[:2],c8[2:]])
    Fc=A.newlabel('fc'); Ec=A.newlabel('ec'); Yc=A.newlabel('yc')
    A(f"s_cbranch_vccnz {Fc}"); A.label(Ec)
    t=f"{Fc}:\n{bud(Ec)}\ns_waitcnt lgkmcnt(0)\n{ldC(M)}\ns_nop 3\n"+"\n".join(f"v_mov_b64 {v(r,2)}, 0" for r in range(80,88,2))
    if c2: t+="\ns_waitcnt vmcnt(2)\n"+"\n".join(chk8(120))+f"\ns_cbranch_vccz {Yc}\n{ldC(120)}\ns_branch {name}_cw\n{Yc}:\n"+"\n".join(f"v_mov_b64 {v(M+r,2)}, {v(120+r,2)}" for r in range(0,8,2))+f"\ns_branch {name}"
    else: t=f"{Fc}:\ns_mov_b64 exec, vcc\n{ldC(M)}\ns_mov_b64 exec, -1\n{bud(Ec)}\n"+"\n".join(f"v_mov_b64 {v(r,2)}, 0" for r in range(80,88,2))+"\ns_waitcnt vmcnt(0)\n"+"\n".join(c8)+f"\ns_cbranch_vccz {name}\ns_branch {Fc}"
    OUT.append(t)
    P(0,0)
    A(qk(0)[2])
    A("s_waitcnt lgkmcnt(0)\ns_barrier")
    rd=[f"ds_read_b128 {v(M+4*i,4)}, v{MW+(i>>1)} offset:{(i&1)*1024}" for i in range(2,8)]
    A(rd[0]); A(rd[1])
    ex1=lambda m_,t:[f"s_mov_b64 exec, {m_}",t,"s_mov_b64 exec, -1"]
    gaps(A,[qk(0)[3]]+qk(1),[rd[2:4],rd[4:6]+[f"s_mov_b32 m0, s{S_M0V}"],[f"buffer_load_dwordx4 v1, {WS}, s{S_VXO} offen sc1 lds"],[f"buffer_load_dwordx4 v1, {WS}, s{S_VXO} offen offset:1024 sc1 lds"],[f"v_mov_b32 v{T1}, s{S_S}","s_waitcnt lgkmcnt(5)"]])
    gaps(A,qk(2)+qk(3),[ex1('0xfff',f"buffer_store_dword v{SN1}, v{DRP}, {WS}, s{S_AP} offen offset:4 sc1") if drop else [],ex1('0xffff',f"buffer_store_dword v{SN1}, v{L4}, {WS}, s{S_CC} offen{sc}"),
        ex1(1,f"buffer_load_dword v{T0}, off, {WS}, s{S_FI} sc1"),["s_waitcnt lgkmcnt(4)"],ex1(1,f"buffer_store_dword v{T1}, off, {WS}, s{S_PR} sc1"),[],[],[f"s_waitcnt lgkmcnt(0) vmcnt({5+drop})"]])
    vs=lambda n,buf:smf(112+4*(n&1),M+4*(n>>1),v(buf,8))
    w2=wv_read(2,WBUF[2]); D=PB2
    gaps(A,[qk(i)[j] for j in range(4) for i in range(4,8)]+[vs(0,WBUF[0]),vs(1,WBUF[1])],
         [w2[:1],w2[1:],[],[], N1,N1,N1,[ad(80,80,82)], [ad(81,81,83),"s_nop 0"],N1,[ad(82,84,86)],[ad(83,85,87)], [cv(D,80),"s_nop 0"],[cv(D+2,82),tag(D,D)],[ad(88,88,90)],[ad(89,89,91)], [cv(D+1,88),"s_nop 0"],[]])
    for t in (ad(90,92,94),ad(91,93,95),cv(D+3,90)): A(t)
    A(f"buffer_store_dwordx4 {v(D,4)}, v1, {WS}, s{S_AO} offen sc1")
    P(1)
    buf={2:WBUF[2]}; free=[WBUF[0],WBUF[1]]; nxt=3
    ldA=lambda r:f"buffer_load_dwordx4 {v(r,4)}, v1, {WS}, s{S_AI} offen sc1"
    for n in range(2,16):
        while free and nxt<16:
            b=free.pop(0); buf[nxt]=b
            for t in wv_read(nxt,b): A(t)
            nxt+=1
        A(f"s_waitcnt lgkmcnt({2*(nxt-1-n)})")
        A(vs(n,buf[n])); free.append(buf[n])
        if n&3==3 and n<8: free.append(M+8*(n>>2))
        if n==o.get('pa',15): A(ldA(SENT))
    for i in range(8): A(f"ds_read_b128 {v(M+4*i,4)}, v{KXR} offset:{i*1024}")
    if o.get('pa',15)==16: A(ldA(SENT))
    for t in (ad(112,112,114),ad(113,113,115),ad(116,116,118),ad(117,117,119),cv(D,112),cv(D+1,116),tag(120,D),f"v_mov_b32 v121, v{D+1}",f"ds_write_b64 v{VMW}, {v(D,2)}",sw(120,122),sw(121,123)): A(t)
    A(f"s_cmp_eq_u32 s{S_S}, 63\ns_cbranch_scc1 R_done\ns_mov_b32 m0, s{S_M0K}")
    if o.get('pa',15)==17: slp('da1',0); A(ldA(SENT))
    aov=f"s_mov_b32 exec_hi, 0\nbuffer_store_dwordx4 {v(120,4)}, v1, {WS}, s{S_AOV} offen sc1\ns_mov_b64 exec, -1"
    av=o.get('av',1)
    if av==0:
        if drop: A("s_waitcnt vmcnt(2)")
        A(aov)
    slp('da',128); A(ldA(124))
    P(2)
    if av==1:
        if drop: A("s_waitcnt vmcnt(3)")
        A(aov)
    A(f"s_waitcnt vmcnt({1 if av==2 else 2})")
    P(3)
    Fa=A.newlabel('fa'); Ea=A.newlabel('ea'); Sa=A.newlabel('sa')
    unp=lambda r:f"{bo(T1,v(r),TG,1,0x28)}\nv_cmp_ne_u32 vcc, 0, v{T1}\n"+"\n".join(f"v_lshlrev_b32 v{112+2*i}, 16, v{r+j}\nv_and_b32 v{113+2*i}, s{S_HI}, v{r+j}" for i,j in enumerate((0,2,1,3)))
    A(unp(SENT)); A(f"s_cbranch_vccnz {Fa}"); A.label(Ea)
    OUT.append(f"{Fa}:\n{ldA(SENT)}\ns_waitcnt vmcnt({2 if av==1 else 1})\n{Sa}:\n{bud(Ea)}\n{unp(124)}\ns_cbranch_vccz {Ea}\n{ldA(124)}\ns_waitcnt vmcnt(1)\n{unp(SENT)}\ns_cbranch_vccz {Ea}\n{ldA(SENT)}\ns_waitcnt vmcnt(1)\ns_branch {Sa}")
    P(4,1)
    for t in (pa(80,112),pa(82,114),cv(84,80),cv(85,82),f"ds_write_b64 v{XW}, {v(84,2)}",pa(88,116),pa(90,118),cv(86,88),cv(87,90),f"ds_write_b64 v{XW}, {v(86,2)} offset:512"): A(t)
    if av==2: A(aov)
    kvw=A.newlabel('kvw'); kvr=A.newlabel('kvr')
    A(f"v_readfirstlane_b32 s{Q}, v{T0}\ns_mov_b32 vcc_lo, 0x33333333\ns_mov_b32 vcc_hi, 0x33333333\ns_cmp_lt_u32 s{Q}, s{S_FT}\ns_waitcnt lgkmcnt(0)\ns_barrier")
    P(5)
    for i in range(8): A(f"ds_read_b64_tr_b16 {v(80+2*i,2)}, v{XR} offset:{i*512}")
    A(f"s_cbranch_scc1 {kvw}"); A.label(kvr)
    ldV=[f"buffer_load_dwordx2 {v(98+4*p,2)}, v{L8}, {WS}, s{S_AIV} offen offset:{p*512} sc1" for p in range(4)]
    ldK=[f"buffer_load_dwordx4 v1, {WS}, s{S_KX} offen offset:{p*1024} sc1 lds" for p in range(2)]
    vx=lambda i:f"ds_read_b128 {v(M+4*i,4)}, v{KXR} offset:{L_VX-L_KX+i*1024}"
    vm=lambda p:f"ds_read_b64 {v(96+4*p,2)}, v{VMR} offset:{p*512}"
    m=[]
    for ks in range(4):
        X=80+4*ks
        m+=[f"s_waitcnt lgkmcnt({[6,4,5,6][ks]})\n"+mf(112,M+4*ks,X,'0' if ks==0 else 112),mf(116,M+16+4*ks,X,'0' if ks==0 else 116),mf(120,X,X,NEG-2 if ks==0 else 120)]
    fl=[[],[],[],[vx(0)],[vx(4)],[vx(1)],[vx(5)],[vx(2)],[vx(6)],[vm(0),vm(1)],[vx(3)],[vx(7),vm(2),vm(3)]]
    pv=o.get('pv',0)
    stE=f"buffer_store_dwordx4 {v(D,4)}, v1, {WS}, s{S_VM} offen sc1"; kp=o.get('kp',1)
    for k,t in enumerate(ldV+(ldK+[stE] if kp==0 else [])): fl[min(pv+k*o.get('pw',1),11)].append(t)
    gaps(A,m,fl)
    qp=lambda k:f"quad_perm:{k} row_mask:0xf bank_mask:0xf"
    for i in range(4): A(f"v_cndmask_b32_dpp v{112+i}, v{116+i}, v{112+i}, vcc {qp('[0,1,0,1]')}")
    A(f"""v_max3_f32 v116, v112, v122, v123
    s_not_b64 vcc, vcc
    v_max3_f32 v116, v116, v113, v114
    v_max_f32 v116, v116, v115
    {ldK[0] if kp else ''}
    v_max_f32_dpp v116, v116, v116 {qp('[2,3,0,1]')}
    v_mov_b32 v117, v116
    {ldK[1] if kp else ''}
    v_permlane16_swap_b32 v116, v117
    v_max_f32 v116, v116, v117
    v_mov_b32 v117, v116
    {stE if kp else ''}
    s_waitcnt vmcnt({8 if av==2 else 7})
    v_permlane32_swap_b32 v116, v117
    v_max_f32 v116, v116, v117
    v_mul_f32 v127, s{S_SC}, v116""")
    fm=lambda r:f"v_fma_f32 v{r}, v{r}, s{S_SC}, -v127"
    ex=lambda r:f"v_exp_f32 v{r}, v{r}"
    p1=lambda i:f"v_cndmask_b32_dpp v{PB1+i}, v{124+(i&1)}, v{PB1+i}, vcc {qp('[0,1,2,3]' if i<2 else '[2,3,2,3]')}"
    mv=lambda d,r:f"v_mov_b32_dpp v{d}, v{r} {qp('[2,3,0,1]')}"
    for t in (fm(112),fm(113),fm(114),fm(115),ex(112),ex(113),ex(114),ex(115),cv(124,112),cv(125,114),fm(122),p1(0),p1(2),p1(1),p1(3),fm(123),"s_waitcnt lgkmcnt(0)"): A(t)
    zl=lambda T:f"ds_read_b128 {v(M+4*T,4)}, v{KXR} offset:{L_Z-L_KX}"
    gaps(A,[mf(80,M,PB1,'0'),mf(84,M+8,PB1,'0'),mf(116,ONES,PB1,'0'),mf(80,M+4,PB2,80),mf(84,M+12,PB2,84),mf(116,ONES,PB2,116),mf(88,M+16,PB1,'0')],
         [[mv(PB2,PB1),mv(PB2+2,PB1+2)],[mv(PB2+1,PB1+1),mv(PB2+3,PB1+3),zl(0)],[ex(122),zl(2)],[ex(123)],[cv(120,122),zl(1)],[mv(121,120),f"v_mov_b64 {v(122,2)}, {v(120,2)}"],[zl(3)]])
    P(6)
    LV=A.newlabel('pv'); Fv=A.newlabel('fv'); Ev=A.newlabel('ev')
    A(f"v_mfma_f32_16x16x16_bf16 {v(116,4)}, {v(ONES,2)}, {v(120,2)}, {v(116,4)}\n{zl(4)}\ns_waitcnt vmcnt(3)")
    ckv=[bo(124,'v98','v102',TG,0x7e),bo(125,'v106','v110',TG,0x7e),bo(124,'v124','v125',1,0xa8),"v_cmp_ne_u32 vcc, 0, v124"]
    A(ckv[0]); A(ckv[1]); A(mf(92,M+24,PB1,'0')); A(ckv[2]); A(ckv[3]); A(zl(6))
    A(f"s_cbranch_vccnz {Fv}"); A.label(Ev)
    OUT.append(f"{Fv}:\n{bud(Ev)}\n"+"\n".join(ldV)+"\ns_waitcnt vmcnt(0)\n"+"\n".join(ckv)+f"\ns_cbranch_vccz {Ev}\ns_branch {Fv}")
    P(7,2)
    mu=lambda r:f"v_mul_f32 v{r}, v126, v{r}"
    g2=lambda T,u:smf(M+4*T,112 if u==0 else 120,v(128+(T*2+u)*8,8))
    fo=lambda T:[ad(M+4*T,M+4*T,M+4*T+2),ad(M+4*T+1,M+4*T+1,M+4*T+3),cv(96+T,M+4*T)]+([tag(96+T,96+T)] if T&3==0 else [])
    st=lambda r,so:f"buffer_store_dwordx4 {v(r,4)}, v{BS}, {WS}, s{so} offen{sc}"
    gaps(A,[mf(80,96,120,80),mf(84,100,120,84),mf(88,M+20,PB2,88),mf(92,M+28,PB2,92),mf(88,104,120,88),mf(92,108,120,92)],
         [["v_rcp_f32 v126, v116"],N1,N1,[zl(5),mu(80),mu(81),mu(82),mu(83)],[zl(7),mu(84),mu(85),mu(86),mu(87)],[cv(112,80),cv(113,82),cv(114,84),cv(115,86),"s_waitcnt lgkmcnt(2)"]])
    gaps(A,[g2(T,u) for u in range(2) for T in range(8)],
         [[mu(88),mu(89)],[mu(90),mu(91)],[mu(92),mu(93)],[mu(94),mu(95)],[cv(120,88),cv(121,90),"s_waitcnt lgkmcnt(0)"],[cv(122,92)],[cv(123,94)],[],
          N1,N1,N1,fo(0),fo(1),fo(2),fo(3)+[st(96,S_B)],fo(4)+fo(5)+fo(6)+fo(7)])
    A(st(100,S_B2))
    P(8)
    X=M+8; R=M+24
    ldB=lambda so:f"buffer_load_dwordx4 {v(X,4)}, v{BL}, {WS}, s{so} offen sc1\nbuffer_load_dwordx4 {v(X+4,4)}, v{BL}, {WS}, s{so} offen offset:1024 sc1"
    bp=o.get('bp',3)
    if bp==0: slp('db',0); A(ldB(S_B))
    A(f"""s_add_u32 s{S_S}, s{S_S}, 1
    s_add_u32 s{S_VM}, s{S_VM}, 0x40000
    s_add_u32 s{S_KX}, s{S_KX}, {0 if o.get('xk') else 0x40000}
    s_add_u32 s{S_VXO}, s{S_VXO}, {0 if o.get('xk') else 0x40000}
    s_mov_b32 s{S_AP}, s{S_AI}
    s_xor_b32 s{S_AO}, s{S_AO}, 0x8000
    s_xor_b32 s{S_AI}, s{S_AI}, 0x8000
    s_xor_b32 s{S_AOV}, s{S_AOV}, 0x8000
    s_xor_b32 s{S_AIV}, s{S_AIV}, 0x8000
    s_mov_b32 s{S_BC}, s{S_B}
    s_xor_b32 s{S_B}, s{S_B}, 0x80000
    s_xor_b32 s{S_B2}, s{S_B2}, 0x80000""")
    if bp==1: slp('db',0); A(ldB(S_BC))
    fill(A)
    if bp==2: slp('db',0); A(ldB(S_BC))
    A(f"""s_mov_b32 s{S_CC}, s{S_CS}
    s_and_b32 s{Q}, s{S_S}, 3
    s_lshl_b32 s{Q}, s{Q}, 14
    s_add_u32 s{S_CL}, s{S_CLB}, s{Q}
    s_add_u32 s{S_CS}, s{S_CSB}, s{Q}
    s_add_u32 s{Q}, s{S_S}, 1
    s_min_u32 s{Q}, s{Q}, 63
    s_lshr_b32 s{Q+1}, s{Q}, 3
    s_add_u32 s{Q+1}, s{Q+1}, 1
    s_lshr_b32 s{Q+2}, s{Q}, 2
    s_cmp_lt_u32 s{Q}, 8
    s_cselect_b32 s{Q+1}, s{Q+2}, s{Q+1}
    s_cselect_b32 s{S_FT}, 64, 32
    s_lshl_b32 s{Q+1}, s{Q+1}, 7
    s_add_u32 s{S_FI}, s{Q+1}, {WS_FL+F_KV*128}""")
    if bp==3: slp('db',0); A(ldB(S_BC))
    LB_=A.newlabel('pb'); Fb=A.newlabel('fb'); Eb=A.newlabel('eb')
    A.label(LB_)
    A(f"s_waitcnt vmcnt(0)\n{mf(R,X,SEL1,'0')}\n{bo(T0,v(X),v(X+4),TG,0x7e)}\nv_and_b32 v{T0}, 1, v{T0}\nv_cmp_ne_u32 vcc, 0, v{T0}\n{mf(R,X+4,SEL1,R)}\ns_cbranch_vccnz {Fb}")
    A.label(Eb)
    A(f"{mf(R+4,X,SEL2,'0')}\n{mf(R+4,X+4,SEL2,R+4)}")
    OUT.append(f"{Fb}:\ns_mov_b64 exec, vcc\n{ldB(S_BC)}\ns_mov_b64 exec, -1\n{bud(Eb)}\ns_branch {LB_}")
    P(9,3)
    A(f"""{ad(R,R,R+1)}
    {ad(R+2,R+2,R+3)}
    {ad(R,R,R+2)}
    {pa(R+4,R+6)}
    v_add_f32 v{R+4}, v{R+4}, v{R+5}
    {sw(R,R+4)}
    v_add_f32 v{R}, v{R}, v{R+4}
    v_mov_b32 v{R+4}, v{R}
    v_permlane16_swap_b32 v{R}, v{R+4}
    v_add_f32 v{R}, v{R}, v{R+4}
    v_mov_b32 v{R+4}, v{R}
    {sw(R,R+4)}
    s_mov_b64 exec, 0xffff
    v_cvt_pk_bf16_f32 v{T1}, v{R}, v{R+4}
    buffer_store_dword v{T1}, v{L4}, {WS}, s{S_CS} offen{sc}
    s_mov_b64 exec, -1""")
    P(10)
    if ph:
        A("s_waitcnt lgkmcnt(0)")
        for k in range(11): A(f"v_writelane_b32 v{T0}, s{64+2*k}, {k}")
        for k in range(4): A(f"v_writelane_b32 v{T0}, s{88+k}, {11+k}")
        A(f"s_mov_b64 exec, 0xffff\nbuffer_store_dword v{T0}, v{L4}, {WS}, s92 offen\ns_mov_b64 exec, -1\ns_add_u32 s92, s92, 64")
    elif o.get('rs'): stamp(A,T0)
    A(f"s_branch {name}_top")
    for t in OUT: A(t)
    A.label(kvw)
    spin_ge(A,S_WS,0,f"s{S_FT}",T0,T1,Q,soff=f"s{S_FI}")
    A(f"s_branch {kvr}")
def rec_role(A,stamp,o):
    h=S_RANK; w=S_W; x=S_X; t=112
    A(f"s_cmp_eq_u32 s{S_VX}, {XB}\ns_cselect_b32 s{x}, 1, 0")
    srd(A,S_A,P_WV,8*MB); srd(A,S_OUT,P_WO,8*MB)
    for i in range(4): A(f"v_mov_b32 v{SENT+i}, -1")
    A(f"v_lshlrev_b32 v{L8}, 3, v0\nv_lshlrev_b32 v{L4}, 2, v0")
    DQ=16+t-14; DO=DQ+1
    A(f"""v_lshrrev_b32 v{t}, 4, v0
    v_and_b32 v{t+1}, 1, v{t}
    s_lshl_b32 s{Q}, s{w}, 1
    v_or_b32 v{t+1}, s{Q}, v{t+1}
    v_bfe_u32 v{t+4}, v0, 1, 3
    v_xor_b32 v{t+1}, v{t+1}, v{t+4}
    v_lshlrev_b32 v{t+1}, 5, v{t+1}
    v_and_b32 v{t+4}, 1, v0
    v_lshl_add_u32 v{t+1}, v{t+4}, 4, v{t+1}
    s_lshl_b32 s{Q}, s{w}, 4
    v_add_u32 v{t}, s{Q}, v{t}
    s_lshl_b32 s{Q}, s{x}, 22
    s_lshl_b32 s{Q+1}, s{h}, 8
    s_add_u32 s{Q}, s{Q}, s{Q+1}
    v_lshl_add_u32 v{DQ}, v{t}, 13, v{t+1}
    v_add_u32 v{DQ}, s{Q}, v{DQ}
    s_lshl_b32 s{Q}, s{h}, 18
    s_lshl_b32 s{Q+1}, s{x}, 10
    s_add_u32 s{Q}, s{Q}, s{Q+1}
    v_lshl_add_u32 v{DO}, v{t}, 11, v{t+1}
    v_add_u32 v{DO}, s{Q}, v{DO}
    s_lshl_b32 s{S_M0K}, s{w}, 12""")
    def chunk(n):
        mat,j=n>>2,n&3
        for aa in range(2):
            for b in range(4):
                rows=64*aa+4*b
                so=(j*256+rows*2048) if mat==2 else (128*j+rows)*8192
                A(f"s_add_u32 m0, s{S_M0K}, {j*32768+aa*16384+b*1024}\ns_mov_b32 s{Q}, {so}\nbuffer_load_dwordx4 v{DO if mat==2 else DQ}, {s([S_B0,S_B1,S_OUT,S_A][mat],4)}, s{Q} offen lds")
    A(f"""s_lshl_b32 s{Q}, s{h}, 16
    s_lshl_b32 s{Q+1}, s{x}, 14
    s_add_u32 s{S_AO}, s{Q}, s{Q+1}
    s_xor_b32 s{S_AI}, s{S_AO}, 0x4000
    s_lshl_b32 s{Q}, s{x}, 18
    s_add_u32 s{S_B}, s{Q}, {WS_B}
    s_add_u32 s{S_B2}, s{S_B}, 0x8000
    s_xor_b32 s{S_BC}, s{S_B}, 0x80000
    s_lshl_b32 s{Q}, s{h}, 2
    s_add_u32 s{Q}, s{Q}, s{w}
    s_lshl_b32 s{Q+1}, s{Q}, 11
    v_and_b32 v{t}, 15, v0
    v_lshrrev_b32 v{t+1}, 4, v0
    v_lshlrev_b32 v{BL}, 6, v{t}
    v_lshl_add_u32 v{BL}, v{t+1}, 4, v{BL}
    v_add_u32 v{BL}, s{Q+1}, v{BL}
    s_lshl_b32 s{Q}, s{Q}, 6
    s_lshl_b32 s{Q+1}, s{x}, 13
    s_add_u32 s{Q+1}, s{Q+1}, {WS_C}
    s_add_u32 s{S_CSB}, s{Q+1}, s{Q}
    s_lshl_b32 s{Q}, s{w}, 11
    s_add_u32 s{S_CLB}, s{Q+1}, s{Q}""")
    A(f"s_or_b32 s{Q}, s{x}, s{w}\ns_cmp_lg_u32 s{Q}, 0\ns_cbranch_scc1 R_nop\ns_add_u32 s{Q}, s{S_AO}, 7168\ns_add_u32 s{Q+1}, s{Q}, 8192\ns_mov_b64 exec, 1\nv_mov_b32 v{t+4}, 0\nv_mov_b32 v{t+5}, 0")
    for rep in range(3):
        A(f"buffer_store_dword v{SENT}, off, {WS}, s{Q} sc1\nbuffer_store_dword v{SENT}, off, {WS}, s{Q+1} sc1\ns_waitcnt vmcnt(0)")
        for p in range(2):
            A(f"s_memtime s[{Q+2}:{Q+3}]\ns_waitcnt lgkmcnt(0)\nbuffer_load_dword v{t+6}, off, {WS}, s{Q+p} sc1\ns_waitcnt vmcnt(0)\ns_memtime s[{Q+4}:{Q+5}]\ns_waitcnt lgkmcnt(0)")
            A(f"s_sub_u32 s{Q+2}, s{Q+2}, s{Q+4}\nv_max_u32 v{t+4+p}, s{Q+2}, v{t+4+p}")
    A(f"buffer_atomic_umax v{t+4}, off, {s(S_DBG,4)}, 0 offset:{D_P0*4}\nbuffer_atomic_umax v{t+5}, off, {s(S_DBG,4)}, 0 offset:{D_P1*4}\ns_mov_b64 exec, -1")
    A.label('R_nop')
    A(f"s_lshl_b32 s{Q}, s{w}, 10\ns_add_u32 s{Q}, s{Q}, s{S_AI}\ns_lshl_b32 s{Q+1}, s{w}, 9\ns_add_u32 s{Q+1}, s{Q+1}, s{S_AI}\ns_add_u32 s{Q+1}, s{Q+1}, 4096")
    for off in (0,8192,32768,40960):
        A(f"s_add_u32 s{Q+2}, s{Q}, {off}\nbuffer_store_dwordx4 {v(SENT,4)}, v1, {WS}, s{Q+2} offen sc1\ns_add_u32 s{Q+2}, s{Q+1}, {off}\nbuffer_store_dwordx2 {v(SENT,2)}, v{L8}, {WS}, s{Q+2} offen sc1")
    for r in (S_B,S_BC):
        A(f"buffer_store_dwordx4 {v(SENT,4)}, v{BL}, {WS}, s{r} offen sc1\nbuffer_store_dwordx4 {v(SENT,4)}, v{BL}, {WS}, s{r} offen offset:1024 sc1")
    A(f"v_lshlrev_b32 v{t+4}, 2, v{t}\nv_lshl_add_u32 v{t+4}, v{t+1}, 14, v{t+4}\nbuffer_store_dword v{SENT}, v{t+4}, {WS}, s{S_CSB} offen sc1")
    for n in range(4): chunk(n)
    c=t; g=t+1; u=t+4
    A(f"""v_and_b32 v{u}, 2, v{c}
    v_cmp_eq_u32 vcc, 0, v{u}
    v_mov_b32 v{u}, 0x44444444
    v_mov_b32 v{u+1}, 0xeeeeeeee
    v_cndmask_b32 v{IDX}, v{u+1}, v{u}, vcc
    v_mov_b32 v{u}, 0xf149f2ca
    v_cndmask_b32 v{NEG}, v{u}, 0, vcc""".replace(f"v_cndmask_b32 v{NEG}, v{u}, 0, vcc",f"v_cndmask_b32_e64 v{NEG}, v{u}, 0, vcc"))
    A(f"v_mov_b32 v{NEG+1}, v{NEG}\nv_mov_b32 v{SN1}, -1")
    for i in range(4): A(f"v_mov_b32 v{PB1+i}, 0\nv_mov_b32 v{PB2+i}, 0\nv_mov_b32 v{ONES+i}, 0x3f803f80")
    A(f"""v_bfe_u32 v{u}, v{c}, 2, 1
    v_lshlrev_b32 v{u}, 4, v{u}
    v_mov_b32 v{u+1}, 0x3f80
    v_lshlrev_b32 v{u}, v{u}, v{u+1}
    v_and_b32 v{u+1}, 2, v{c}
    v_lshrrev_b32 v{u+2}, 3, v{c}
    v_add_u32 v{u+1}, v{u+1}, v{u+2}
    v_and_b32 v{u+2}, 1, v{c}
    v_lshlrev_b32 v{u+2}, 1, v{u+2}
    v_xor_b32 v{u+2}, v{u+2}, v{g}
    v_lshl_add_u32 v{u+1}, v{u+2}, 2, v{u+1}""")
    for i in range(8): A(f"v_cmp_eq_u32 vcc, {i}, v{u+1}\nv_cndmask_b32 v{SEL1+i}, 0, v{u}, vcc")
    A(f"s_lshl_b32 s{Q}, s{w}, 11\ns_add_u32 s{Q}, s{Q}, {L_MEM}\nv_add_u32 v{MW}, s{Q}, v1")
    for p in range(1,4): A(f"v_xor_b32 v{MW+p}, {p*2048}, v{MW}")
    A(f"""v_lshrrev_b32 v{u}, 2, v{c}
    v_xor_b32 v{u+1}, v{u}, v{g}
    v_lshlrev_b32 v{u+1}, 3, v{u+1}
    v_lshl_add_u32 v{u+1}, v{c}, 5, v{u+1}
    s_lshl_b32 s{Q}, s{w}, 10
    s_add_u32 s{Q}, s{Q}, {L_X}
    v_add_u32 v{XW}, s{Q}, v{u+1}
    v_and_b32 v{u+1}, 3, v0
    v_xor_b32 v{u+2}, v{u+1}, v{g}
    v_lshlrev_b32 v{u+2}, 3, v{u+2}
    v_lshrrev_b32 v{u+3}, 2, v0
    v_lshl_add_u32 v{u+2}, v{u+3}, 5, v{u+2}
    v_add_u32 v{XR}, {L_X}, v{u+2}
    v_add_u32 v{VMR}, {L_VM}, v{L8}
    s_lshl_b32 s{Q}, s{w}, 9
    v_add_u32 v{VMW}, s{Q}, v{VMR}
    v_add_u32 v{KXR}, {L_KX}, v1
    ds_write_b128 v{KXR}, {v(PB1,4)} offset:{L_Z-L_KX}
    v_and_b32 v{L8}, 0x1f0, v1
    v_lshrrev_b32 v{DRP}, 5, v0
    v_lshl_add_u32 v{L8}, v{DRP}, 3, v{L8}
    v_lshlrev_b32 v{DRP}, 7, v0
    s_sub_u32 s{Q}, 3072, s{Q}
    v_add_u32 v{u+2}, s{Q}, v{DRP}
    v_cmp_gt_u32 vcc, 8, v0
    v_cndmask_b32 v{DRP}, v{u+2}, v{DRP}, vcc
    v_lshl_add_u32 v{u+2}, v{u}, 2, v{g}
    v_lshlrev_b32 v{u+2}, 11, v{u+2}
    v_lshl_add_u32 v{u+2}, v{u+1}, 4, v{u+2}
    s_lshl_b32 s{Q}, s{w}, 16
    s_lshl_b32 s{Q+1}, s{h}, 6
    s_add_u32 s{Q}, s{Q}, s{Q+1}
    v_add_u32 v{BS}, s{Q}, v{u+2}""")
    TB=t+8
    A(f"""v_and_b32 v{u+2}, 1, v{g}
    v_lshlrev_b32 v{TB}, 5, v{u+2}
    v_lshrrev_b32 v{u+2}, 1, v{g}
    v_lshl_add_u32 v{TB}, v{u+2}, 2, v{TB}
    v_lshrrev_b32 v{u+2}, 1, v{u}
    v_lshl_add_u32 v{TB}, v{u+2}, 4, v{TB}
    v_and_b32 v{u+2}, 1, v{u}
    v_add_u32 v{TB}, v{TB}, v{u+2}
    v_lshlrev_b32 v{TB}, 8, v{TB}
    v_lshl_add_u32 v{TB}, v{u+1}, 3, v{TB}
    v_bfe_u32 v{u+2}, v0, 2, 3
    v_lshl_add_u32 v{TB}, v{u+2}, 5, v{TB}
    s_mul_i32 s{Q}, s{w}, {32768+8192}
    v_add_u32 v{WV}, s{Q}, v1""")
    A(f"""s_mov_b32 s{S_S}, 0
    s_mov_b32 s{S_SC}, 0x3e0293ee
    s_mov_b32 s{S_HI}, 0xffff0000
    s_lshl_b32 s{Q}, s{h}, 13
    s_lshl_b32 s{Q+1}, s{w}, 11
    s_add_u32 s{Q}, s{Q}, s{Q+1}
    s_add_u32 s{S_KX}, s{Q}, {WS_KX}
    s_add_u32 s{S_VXO}, s{Q}, {WS_VX}
    s_add_u32 s{S_M0V}, s{Q+1}, {L_VX}
    s_lshl_b32 s{Q}, s{h}, 1
    s_add_u32 s{Q}, s{Q}, s{x}
    s_lshl_b32 s{Q+1}, s{Q}, 7
    s_add_u32 s{S_PR}, s{Q+1}, {WS_FL+F_PROG*128}
    s_cmp_eq_u32 s{w}, 0
    s_cselect_b32 s{S_PR}, s{S_PR}, 0x10000000
    s_mov_b32 s{S_TAG}, 0
    s_add_u32 s{S_CC}, s{S_CSB}, 0xc000
    s_mov_b32 s{S_CS}, s{S_CSB}
    s_mov_b32 s{S_CL}, s{S_CLB}
    s_lshl_b32 s{Q}, s{Q}, 12
    s_lshl_b32 s{Q+1}, s{w}, 10
    s_add_u32 s{Q}, s{Q}, s{Q+1}
    s_add_u32 s{S_VM}, s{Q}, {WS_KM}
    s_mov_b32 s{S_FI}, {WS_FL+F_KV*128}
    s_mov_b32 s{S_FT}, 64""")
    for n in range(12):
        mat,j=n>>2,n&3
        A("s_waitcnt vmcnt(24)\ns_barrier")
        if n==4:
            A(f"s_cmp_lg_u32 s{w}, 0\ns_cbranch_scc1 R_na\nv_mov_b32 v{T0}, 1\ns_mov_b64 exec, 1\nbuffer_atomic_add v{T0}, off, {s(S_DBG,4)}, 0 offset:{D_RDY*4}\ns_mov_b64 exec, -1")
            A.label('R_na')
        E=A.newlabel('wl')
        for ww in range(4):
            if mat==2 and ww!=j: continue
            N=A.newlabel('wn')
            A(f"s_cmp_lg_u32 s{w}, {ww}\ns_cbranch_scc1 {N}")
            for T in (range(8) if mat==2 else range(2)):
                A(f"v_xor_b32 v{u}, {j*32768+(T if mat==2 else 2*ww+T)*32}, v{TB}")
                for kl in range(2):
                    for m_ in range(4):
                        d=v(128+(T*2+kl)*8+2*m_,2) if mat==2 else a(mat*128+((((2*j+kl)^(2*ww))*2+T)*8)+2*m_,2)
                        A(f"ds_read_b64_tr_b16 {d}, v{u} offset:{trimm(kl,m_)}")
            A(f"s_branch {E}"); A.label(N)
        A.label(E)
        A("s_waitcnt lgkmcnt(0)\ns_barrier")
        chunk(n+4)
    A(f"s_lshl_b32 s{Q}, s{w}, 6\nv_xor_b32 v{TB}, s{Q}, v{TB}\ns_lshl_b32 s{Q}, s{w}, 13\nv_add_u32 v{u+1}, s{Q}, v1")
    for j in range(4):
        A(f"s_waitcnt vmcnt({24-8*j})\ns_barrier")
        for T in range(2):
            A(f"v_xor_b32 v{u}, {j*32768+T*32}, v{TB}")
            for kl in range(2):
                for m_ in range(4): A(f"ds_read_b64_tr_b16 {v(64+(kl*2+T)*8+2*m_,2)}, v{u} offset:{trimm(kl,m_)}")
        A("s_waitcnt lgkmcnt(0)\ns_barrier")
        for k in range(8): A(f"ds_write_b128 v{u+1}, {v(64+4*k,4)} offset:{k*1024}")
        A(f"v_add_u32 v{u+1}, 0x8000, v{u+1}\ns_waitcnt lgkmcnt(0)")
    srd(A,S_B0,P_MEM,16384)
    A(f"""v_lshrrev_b32 v{u}, 2, v{c}
    v_and_b32 v{u+1}, 1, v{c}
    v_lshl_add_u32 v{u}, v{u}, 1, v{u+1}
    v_lshlrev_b32 v{u}, 11, v{u}
    v_bfe_u32 v{u+1}, v{c}, 1, 1
    v_lshl_add_u32 v{u}, v{u+1}, 5, v{u}
    v_lshl_add_u32 v{u}, v{g}, 3, v{u}
    s_lshl_b32 s{Q}, s{x}, 10
    s_lshl_b32 s{Q+1}, s{w}, 8
    s_add_u32 s{Q}, s{Q}, s{Q+1}""")
    for i in range(4): A(f"buffer_load_dwordx2 {v(M+2*i,2)}, v{u}, {s(S_B0,4)}, s{Q} offen offset:{64*i}")
    stamp(A,T0)
    spin_ge(A,S_DBG,D_RDY*4,64,T0,T1,Q)
    spin_ge(A,S_DBG,D_INIT*4,1,T0,T1,Q)
    A(f"buffer_load_dwordx2 {v(u,2)}, off, {s(S_DBG,4)}, 0 offset:{D_P0*4} sc1\nbuffer_load_dword v{u+2}, off, {s(S_DBG,4)}, 0 offset:{XA*16} sc1\nbuffer_load_dword v{u+3}, off, {s(S_DBG,4)}, 0 offset:{XB*16} sc1")
    stamp(A,T0)
    if not o.get('nokv'): spin_ge(A,S_WS,WS_FL+F_KV*128,64,T0,T1,Q)
    A(f"s_waitcnt vmcnt(0)\ns_lshl_b32 s{Q}, s{w}, 11\ns_add_u32 s{S_M0K}, s{Q}, {L_KX}\ns_mov_b32 m0, s{S_M0K}")
    A(f"buffer_load_dwordx4 v1, {WS}, s{S_KX} offen sc1 lds\nbuffer_load_dwordx4 v1, {WS}, s{S_KX} offen offset:1024 sc1 lds\ns_add_u32 s{S_KX}, s{S_KX}, 0x40000")
    A(f"""v_readfirstlane_b32 s{Q}, v{u}
    v_readfirstlane_b32 s{Q+1}, v{u+1}
    v_min_u32 v{u+2}, v{u+2}, v{u+3}
    s_cmp_gt_u32 s{Q+1}, s{Q}
    s_cselect_b32 s{Q}, {8192 if not o.get('badpol') else 0}, {0 if not o.get('badpol') else 8192}
    s_add_u32 s{S_AO}, s{S_AO}, s{Q}
    s_add_u32 s{S_AI}, s{S_AI}, s{Q}
    s_add_u32 s{S_AIV}, s{S_AI}, 4096
    s_lshl_b32 s{Q}, s{w}, 9
    s_add_u32 s{S_AOV}, s{S_AO}, s{Q}
    s_add_u32 s{S_AOV}, s{S_AOV}, 4096
    s_lshl_b32 s{Q}, s{w}, 10
    s_add_u32 s{S_AO}, s{S_AO}, s{Q}
    s_add_u32 s{S_AI}, s{S_AI}, s{Q}
    s_xor_b32 s{S_AP}, s{S_AI}, 0x8000
    v_readfirstlane_b32 s{Q}, v{u+2}
    s_waitcnt vmcnt(0)
    s_barrier""")
    if o.get('xe'): A(f"s_mov_b32 s{S_VM}, 0x10000000")
    if o.get('xp'): A(f"s_mov_b32 s{S_PR}, 0x10000000")
    fill(A)
    stamp(A,T0)
    if o.get('ph'): A(f"s_lshl_b32 s92, s{x}, 5\ns_add_u32 s92, s92, s{h}\ns_lshl_b32 s92, s92, 2\ns_add_u32 s92, s92, s{w}\ns_lshl_b32 s92, s92, 12\ns_add_u32 s92, s92, {5*MB}")
    A(f"s_cmp_lt_u32 s{Q}, 32\ns_cbranch_scc1 R_slow\ns_branch R_fast")
    step_loop(A,'R_fast',False,stamp,o)
    step_loop(A,'R_slow',True,stamp,o)
    A.label('R_done')
    A(f"buffer_store_dwordx4 {v(PB2,4)}, v1, {WS}, s{S_VM} offen sc1")
    A(f"s_waitcnt vmcnt(0) lgkmcnt(0)\ns_barrier\ns_cmp_lg_u32 s{w}, 0\ns_cbranch_scc1 L_fin\nv_mov_b32 v{T1}, 64\ns_mov_b64 exec, 1\nbuffer_store_dword v{T1}, off, {WS}, s{S_PR} sc1\ns_mov_b64 exec, -1")
    stamp(A,T0)
```

```python
from common import *
WS=s(S_WS,4)
S_S=32; S_SC=33; S_HI=34; S_RT=35; S_EH=36; S_SA=37; S_GO=38; S_FO=39; S_OO=40; Q=56
L8=2; OA=3; RW=4; RR=5; GA=6; BA=7; L32=8; T0=10; T1=11; ONE=9
NEG0=12; NEG1=16; NEGM=20; ONES=24; GW=28
ACC=44
def mf(d,A_,B_,c): return f"v_mfma_f32_16x16x32_bf16 {v(d,4)}, {A_ if isinstance(A_,str) else v(A_,4)}, {v(B_,4)}, {c if isinstance(c,str) else v(c,4)}"
cv=lambda d,r:f"v_cvt_pk_bf16_f32 v{d}, v{r}, v{r+1}"
def xred(A,r,t,op):
    A(f"v_mov_b32 v{t}, v{r}\nv_permlane16_swap_b32 v{r}, v{t}\n{op} v{r}, v{r}, v{t}\nv_mov_b32 v{t}, v{r}\nv_permlane32_swap_b32 v{r}, v{t}\n{op} v{r}, v{r}, v{t}")
XW=20; XR=21; FA=22; FT=23; FR=60; LS=61; L_X=147456
QR=64; KX=80; VX=112; VM=176; KP=184; XI=188
S_SP=41; S_FM=42; S_DF=43; S_JA=44; S_JS=45; S_EA=46; S_MD=47; S_OOB=48; S_DP=49; S_SF=50; S_LB=51; S_PO=52; S_OI=53; S_FP=54; S_HS=55
poll=f"s_mov_b64 exec, 0xfff1f\nbuffer_load_dword v{FR}, v{FA}, {WS}, 0 offen sc1\ns_mov_b64 exec, -1"
chk=f"v_cmp_lt_u32 vcc, v{FR}, v{FT}\ns_mov_b32 s{S_FM}, vcc_lo"
def need(A,mask,then=None):
    L=A.newlabel('fw'); E=A.newlabel('fe'); D=A.newlabel('fd')
    A(f"s_and_b32 s{Q+6}, s{S_FM}, {mask}\ns_cbranch_scc0 {E}")
    A.label(L)
    A(f"{poll}\ns_waitcnt vmcnt(0)\n{chk}\ns_and_b32 s{Q+6}, s{S_FM}, {mask}\ns_cbranch_scc0 {D}")
    A(f"s_sleep 1\ns_sub_u32 s{S_BUD}, s{S_BUD}, 1\ns_cbranch_scc0 {L}\ns_mov_b32 s{S_BUD}, 0")
    A.label(D)
    if then: then()
    A.label(E)
def wl(r,k,x): return f"v_writelane_b32 v{r}, {x}, {k}"
ld=lambda d,so,off:f"buffer_load_dwordx4 {v(d,4)}, v1, {WS}, s{so} offen offset:{off}"
def set_a(A): A(f"s_add_u32 s{Q}, s{S_SA}, 1\n{wl(FT,0,f's{Q}')}\n{wl(FT,1,f's{Q}')}\ns_or_b32 s{S_FM}, s{S_FM}, 3")
def set_p(A): A(f"""s_lshr_b32 s{Q}, s{S_SP}, 3
    s_lshl_b32 s{Q+1}, s{Q}, 7
    s_add_u32 s{Q+1}, s{Q+1}, {WS_FL+F_Q*128}
    s_add_u32 s{Q}, s{Q}, 1
    s_lshr_b32 s{Q+2}, s{S_SP}, 2
    s_cmp_lt_u32 s{S_SP}, 8
    s_cselect_b32 s{Q}, s{Q+2}, s{Q}
    s_cselect_b32 s{Q+2}, 64, 32
    s_lshl_b32 s{Q}, s{Q}, 7
    s_add_u32 s{Q}, s{Q}, {WS_FL+F_KV*128}
    {wl(FA,2,f's{Q+1}')}
    {wl(FA,3,f's{Q}')}
    {wl(FT,3,f's{Q+2}')}
    s_or_b32 s{S_FM}, s{S_FM}, 12""")
MO=0xff00; MF=0xf0010
def set_s(A): A(f"s_mov_b64 exec, {MO}\nv_add_u32 v{FT}, 1, v{FT}\ns_mov_b64 exec, -1\ns_or_b32 s{S_FM}, s{S_FM}, {MO}")
def set_f(A): A(f"""s_lshr_b32 s{Q+6}, s{S_SF}, 3
    s_lshl_b32 s{Q+6}, s{Q+6}, 7
    s_add_u32 s{Q+6}, s{Q+6}, {WS_FL+F_BF*128}
    {wl(FA,4,f's{Q+6}')}
    {wl(FT,4,16)}
    s_mov_b64 exec, 0xf0000
    v_add_u32 v{FT}, 1, v{FT}
    s_mov_b64 exec, -1
    s_or_b32 s{S_FM}, s{S_FM}, {MF}""")
def sig(r):
    return f"s_barrier\ns_mov_b64 exec, 1\nv_mov_b32 v{ONE}, s{S_JA if r==S_DF else S_JS}\nbuffer_store_dword v{ONE}, off, {WS}, s{r} sc1\ns_mov_b64 exec, -1\ns_mov_b32 s{r}, s{S_OOB}"
def pre(A):
    i=S_RANK
    need(A,12)
    A(f"s_lshl_b32 s{Q}, s{S_SP}, 5\ns_add_u32 s{Q}, s{Q}, s{i}\ns_lshl_b32 s{Q+1}, s{Q}, 13\ns_lshl_b32 s{Q+2}, s{S_RT}, 12\ns_add_u32 s{Q+2}, s{Q+2}, s{Q+1}\ns_add_u32 s{Q+2}, s{Q+2}, {WS_QX}")
    for k in range(4): A(ld(QR+4*k,Q+2,k*1024))
    A(f"s_add_u32 s{Q+2}, s{Q+1}, {WS_KX}\ns_add_u32 s{Q+3}, s{Q+2}, 4096")
    for k in range(4): A(ld(KX+4*k,Q+2,k*1024)); A(ld(KX+16+4*k,Q+3,k*1024))
    A(f"s_lshl_b32 s{Q+2}, s{S_EH}, 12\ns_add_u32 s{Q+2}, s{Q+2}, s{Q+1}\ns_add_u32 s{Q+2}, s{Q+2}, {WS_VX}")
    for k in range(4): A(ld(VX+4*k,Q+2,k*1024))
    A(f"s_lshl_b32 s{Q}, s{Q}, 11\nbuffer_load_dwordx4 {v(XI,4)}, v{L32}, {s(S_A,4)}, s{Q} offen\nbuffer_load_dwordx4 {v(XI+4,4)}, v{L32}, {s(S_A,4)}, s{Q} offen offset:16")
    A(f"s_add_u32 s{Q}, s{S_JA}, 1\nv_readlane_b32 s{S_SP}, v{LS}, s{Q}")
    set_p(A)
def ldx(A,spec):
    q=Q+4
    A(f"s_lshl_b32 s{q}, s{S_SA}, 5\ns_add_u32 s{q}, s{q}, s{S_RANK}")
    A(f"s_lshl_b32 s{q}, s{q}, 13\ns_add_u32 s{q}, s{q}, {WS_KM}")
    if spec: A(f"s_and_b32 s{q+1}, s{S_FM}, 3\ns_cselect_b32 s{q}, s{S_OOB}, s{q}")
    A(f"s_lshl_b32 s{q+1}, s{S_W}, 10\ns_add_u32 s{q+1}, s{q+1}, s{q}\ns_add_u32 s{q+2}, s{q+1}, 4096")
    for x in range(2): A(f"buffer_load_dwordx2 {v(KP+2*x,2)}, v1, {WS}, s{q+1+x} offen offset:8")
    A(f"s_lshl_b32 s{q+1}, s{S_EH}, 11\ns_add_u32 s{q+1}, s{q+1}, s{q}\ns_add_u32 s{q+2}, s{q+1}, 4096")
    for p in range(2):
        for x in range(2): A(f"buffer_load_dwordx2 {v(VM+4*p+2*x,2)}, v1, {WS}, s{q+1+x} offen offset:{p*1024}")
def att(A):
    i=S_RANK; w=S_W
    KM=128; S0=144; S1=148; SM=152; P=156; BH=160; BL=164; Lr=168; R=172; O=196; XU=212
    G=R+2
    for k in range(8):
        A(mf(S1 if k&1 else S0,KX+16*(k&1)+4*(k>>1),QR+4*(k>>1),(NEG1 if k&1 else NEG0) if k<2 else (S1 if k&1 else S0)))
        A(f"v_lshlrev_b32 v{XU+2*k}, 16, v{XI+k}\nv_and_b32 v{XU+2*k+1}, s{S_HI}, v{XI+k}")
    A(f"v_mul_f32 v{G}, v{XU}, v{GW}\nv_mul_f32 v{G+1}, v{XU+1}, v{GW+1}")
    for k in range(2,16): A(f"v_fmac_f32 v{G+(k&1)}, v{XU+k}, v{GW+k}")
    A(f"v_add_f32 v{G}, v{G}, v{G+1}")
    A(f"v_max3_f32 v{R}, v{S0}, v{S0+1}, v{S0+2}\nv_max3_f32 v{R+1}, v{S0+3}, v{S1}, v{S1+1}\nv_max3_f32 v{R}, v{R}, v{S1+2}, v{S1+3}\nv_max_f32 v{R}, v{R}, v{R+1}\nv_mov_b32 v{BL}, 0\nv_mov_b32 v{BH+1}, 0")
    A(f"s_or_b32 s{S_FM}, s{S_FM}, s{S_EA}")
    need(A,3,lambda:(ldx(A,False),A("s_waitcnt vmcnt(0)")))
    A(f"ds_write2_b32 v{XW}, v{KP}, v{KP+2} offset0:0 offset1:1\nds_write2_b32 v{XW}, v{KP+1}, v{KP+3} offset0:128 offset1:129\ns_waitcnt vmcnt(16) lgkmcnt(0)\ns_barrier")
    for k in range(8): A(f"ds_read_b64_tr_b16 {v(KM+2*k,2)}, v{XR} offset:{k*512}")
    A(sig(S_DP)[10:])
    for k,sh in enumerate((8,4,2,1)):
        A(f"v_add_f32_dpp v{G}, v{G}, v{G} row_ror:{sh} row_mask:0xf bank_mask:0xf")
        A(f"s_waitcnt lgkmcnt({6-2*k})"); A(mf(SM,KM+4*k,QR+4*k,'0' if k==0 else SM))
    xred(A,G,G+1,'v_add_f32')
    A(f"v_add_f32 v{SM}, v{SM}, v{SM+2}\nv_add_f32 v{SM+1}, v{SM+1}, v{SM+3}\nv_max3_f32 v{R}, v{R}, v{SM}, v{SM+1}")
    xred(A,R,R+1,'v_max_f32')
    A(f"v_mul_f32 v{R}, s{S_SC}, v{R}")
    for r in range(S0,S0+10): A(f"v_fma_f32 v{r}, v{r}, s{S_SC}, -v{R}")
    for r in range(S0,S0+10): A(f"v_exp_f32 v{r}, v{r}")
    for j in range(5): A(cv(P+j,S0+2*j))
    A(f"v_mov_b32 v{BL+1}, v{BH}")
    A(mf(Lr,ONES,P,'0'))
    A(f"v_mov_b64 {v(BH+2,2)}, {v(BH,2)}\nv_mov_b64 {v(BL+2,2)}, {v(BL,2)}")
    gt=[f"v_mul_f32 v{G}, 0xbfb8aa3b, v{G}",f"v_exp_f32 v{G}, v{G}",f"v_mfma_f32_16x16x16_bf16 {v(Lr,4)}, {v(ONES,2)}, {v(BH,2)}, {v(Lr,4)}\nv_add_f32 v{G}, 1.0, v{G}",f"v_rcp_f32 v{G}, v{G}"]
    for j in range(4):
        A(mf(O+4*j,VX+4*j,P,'0'))
        if j<2: A(gt[2*j])
        A(mf(O+4*j,VM+4*(j>>1),BL if j&1 else BH,O+4*j))
        if j<2: A(gt[2*j+1])
    A(f"""s_lshl_b32 s{Q}, s{S_SA}, 5
    s_add_u32 s{Q}, s{Q}, s{i}
    s_lshl_b32 s{Q}, s{Q}, 2
    s_add_u32 s{Q}, s{Q}, s{S_GO}
    v_rcp_f32 v{R}, v{Lr}
    s_lshl_b32 s{Q+2}, s{S_SA}, 18
    s_add_u32 s{Q+2}, s{Q+2}, s{S_OO}
    s_mov_b32 s{S_DF}, s{S_FO}""")
    for jj in range(2):
        for r in range(O+8*jj,O+8*jj+8): A(f"v_mul_f32 v{r}, v{R}, v{r}")
        for j in range(4): A(cv(S0+4*jj+j,O+8*jj+2*j))
        A(f"buffer_store_dwordx4 {v(S0+4*jj,4)}, v1, {WS}, s{Q+2} offen offset:{jj*1024} sc1")
    A(f"s_mov_b64 exec, 1\nbuffer_store_dword v{G}, off, {WS}, s{Q} sc1\ns_mov_b64 exec, -1")
    A(f"s_add_u32 s{S_JA}, s{S_JA}, 1\ns_mov_b32 s{S_SA}, s{S_SP}\ns_mov_b32 s{S_EA}, 3")
    set_a(A)
FB=228; Gv=244; RING=128
def dma(A):
    need(A,MO)
    A(f"s_xor_b32 s{S_LB}, s{S_LB}, 0x10000\nv_xor_b32 v{RR}, 0x10000, v{RR}\ns_lshl_b32 s{Q}, s{S_S}, 18\ns_add_u32 s{Q}, s{Q}, s{S_OI}")
    for c in range(4):
        A(f"s_add_u32 m0, s{S_LB}, {c*16384}\ns_add_u32 s{Q+1}, s{Q}, {(c>>1)*131072+(c&1)*16384}")
        for k in range(4): A(f"buffer_load_dwordx4 v1, {WS}, s{Q+1} offen offset:{k*1024} sc1 lds")
def fld(A):
    need(A,MF)
    A(f"s_lshl_b32 s{Q+2}, s{S_SF}, 16\ns_lshl_b32 s{Q+3}, s{S_SF}, 7")
    for k in range(8): A(f"s_add_u32 s{Q+1}, s{Q+2}, {k*4*MB}\nbuffer_load_dwordx2 {v(FB+2*k,2)}, v{BA}, {WS}, s{Q+1} offen")
    A(f"buffer_load_dword v{Gv}, v{GA}, {WS}, s{Q+3} offen sc1")
def fin(A):
    t=RING
    for k in range(16): A(f"v_lshlrev_b32 v{t+2*k}, 16, v{FB+k}\nv_and_b32 v{t+2*k+1}, s{S_HI}, v{FB+k}")
    for u in (t,t+16):
        for k in range(4): A(f"v_add_f32 v{u+k}, v{u+k}, v{u+4+k}\nv_add_f32 v{u+8+k}, v{u+8+k}, v{u+12+k}")
        for k in range(4): A(f"v_add_f32 v{u+k}, v{u+k}, v{u+8+k}")
    for k in range(4): A(f"v_sub_f32 v{t+16+k}, v{t+16+k}, v{t+k}")
    for k in range(4): A(f"v_fma_f32 v{t+k}, v{t+16+k}, v{Gv}, v{t+k}")
    A(cv(t,t)); A(cv(t+1,t+2))
    A(f"buffer_store_dwordx2 {v(t,2)}, v{OA}, {s(S_OUT,4)}, s{Q+2} offen")
def gstage(A,last):
    D=6; PK=160
    rd=lambda n:A(f"ds_read_b128 {v(RING+4*(n&7),4)}, v{RR} offset:{n*1024}")
    def put(rt):
        for j in range(4): A(cv(PK+4*rt+j,ACC+8*rt+2*j))
        A(f"buffer_store_dwordx4 {v(PK+4*rt,4)}, v1, {WS}, s{Q+7} offen offset:{rt*1024} sc1")
    A(f"s_lshl_b32 s{Q+7}, s{S_S}, 16\ns_add_u32 s{Q+7}, s{Q+7}, s{S_PO}\ns_mov_b32 s{S_DP}, s{S_FP}\ns_mov_b32 s{S_HS}, s{S_S}\ns_add_u32 s{S_JS}, s{S_JS}, 1")
    if not last: A(f"v_readlane_b32 s{S_S}, v{LS}, s{S_JS}"); set_s(A)
    A(f"s_waitcnt vmcnt({12 if last else 22})\ns_barrier")
    nr=0
    for n in range(64):
        rt,k=n>>5,n&31
        while nr<min(64,n+D):
            if last and nr and nr%16==0: A(f"s_waitcnt vmcnt({12-nr//4})\ns_barrier")
            rd(nr); nr+=1
        A(f"s_waitcnt lgkmcnt({nr-1-n})")
        for nt in range(2): A(mf(ACC+8*rt+4*nt,a((k*2+nt)*4,4),RING+4*(n&7),'0' if k==0 else ACC+8*rt+4*nt))
        if last:
            if n==44: put(0)
        else:
            if n==10: A("s_waitcnt vmcnt(18)"); A(sig(S_DF)); A(poll)
            if n==34: A("s_waitcnt vmcnt(0)"); A(chk); fld(A); ldx(A,True); A(f"s_and_b32 s{S_EA}, s{S_FM}, 3")
            if n==52: A(poll)
    if not last: put(0)
    put(1)
    if not last: A("s_waitcnt vmcnt(2)"); A(chk); fin(A)
    A(f"s_mov_b32 s{S_SF}, s{S_HS}"); set_f(A)
def tail_role(A,stamp,o):
    i=S_RANK; w=S_W; c=64; g=65; u=66
    segs=[[] for y in range(6)]; fr=list(o.get('tf',[103,103,139,139,116,125]))
    for sg in range(64):
        y=min(range(6),key=lambda y:(fr[y],y)); segs[y].append(sg); fr[y]=max(fr[y],o.get('t0',25)+o.get('t1',2.42)*(sg+1))+o.get('tc',4.2)
    if o.get('v'): print(segs)
    assert sorted(sum(segs,[]))==list(range(64)) and all(len(L)!=1 for L in segs)
    A(f"v_mov_b32 v{LS}, 64")
    for y,L in enumerate(segs):
        N=A.newlabel('sl')
        A(f"s_cmp_lg_u32 s{S_Y}, {y}\ns_cbranch_scc1 {N}")
        if not L: A("s_branch L_fin")
        for j,sg in enumerate(L): A(wl(LS,j,sg))
        A.label(N)
    srd(A,S_B0,P_WO,8*MB); srd(A,S_B1,P_GW,2048); srd(A,S_A,P_X,4*MB)
    A(f"""v_lshrrev_b32 v{u}, 2, v0
    v_lshlrev_b32 v{u}, 11, v{u}
    v_and_b32 v{u+1}, 3, v0
    v_lshl_add_u32 v{u}, v{u+1}, 4, v{u}
    s_lshr_b32 s{Q+3}, s{i}, 3
    s_lshl_b32 s{Q}, s{Q+3}, 21
    s_and_b32 s{Q+4}, s{i}, 7
    s_lshl_b32 s{Q+4}, s{Q+4}, 2
    s_add_u32 s{Q+4}, s{Q+4}, s{w}
    s_lshl_b32 s{Q+1}, s{Q+4}, 6
    s_add_u32 s{Q}, s{Q}, s{Q+1}
    s_lshl_b32 s{Q+1}, s{i}, 6
    s_lshl_b32 s{S_PO}, s{Q+3}, 22
    s_lshl_b32 s{Q+4}, s{Q+4}, 11
    s_add_u32 s{S_PO}, s{S_PO}, s{Q+4}
    s_add_u32 s{S_PO}, s{S_PO}, {WS_AP}
    s_lshl_b32 s{S_LB}, s{w}, 12
    s_lshl_b32 s{S_OI}, s{Q+3}, 15
    s_add_u32 s{S_OI}, s{S_OI}, s{S_LB}
    s_add_u32 s{S_OI}, s{S_OI}, {WS_O}
    v_add_u32 v{u}, s{Q}, v{u}
    s_lshl_b32 s{Q+2}, s{w}, 15
    v_lshrrev_b32 v{u+2}, 2, v0
    v_lshlrev_b32 v{u+2}, 6, v{u+2}
    v_lshl_add_u32 v{u+2}, v{u+1}, 3, v{u+2}
    v_add_u32 v{u+2}, s{Q+2}, v{u+2}
    v_lshlrev_b32 v{L32}, 5, v0
    buffer_load_dwordx4 {v(ACC,4)}, v{L32}, {s(S_B1,4)}, 0 offen
    buffer_load_dwordx4 {v(ACC+4,4)}, v{L32}, {s(S_B1,4)}, 0 offen offset:16""")
    def dm(n): A(f"s_add_u32 m0, s{Q+2}, {(n&31)*1024}\ns_mov_b32 s{Q}, {n*32768}\nbuffer_load_dwordx4 v{u}, {s(S_B0,4)}, s{Q} offen lds")
    for n in range(32): dm(n)
    A(f"""s_mov_b32 s{S_SC}, 0x3e0293ee
    s_mov_b32 s{S_HI}, 0xffff0000
    s_lshr_b32 s{S_RT}, s{w}, 1
    s_and_b32 s{S_EH}, s{w}, 1
    v_mov_b32 v{ONE}, 1
    v_lshlrev_b32 v{L8}, 3, v0
    v_and_b32 v{c}, 15, v0
    v_lshrrev_b32 v{g}, 4, v0
    s_lshl_b32 s{Q}, s{S_RT}, 4
    v_add_u32 v{u+3}, s{Q}, v{c}
    v_lshlrev_b32 v{GA}, 2, v{u+3}
    v_add_u32 v{GA}, {WS_G}, v{GA}
    v_lshlrev_b32 v{OA}, 11, v{u+3}
    v_lshl_add_u32 v{OA}, v{g}, 3, v{OA}
    s_lshl_b32 s{Q}, s{S_EH}, 5
    s_add_u32 s{Q}, s{Q}, s{Q+1}
    v_add_u32 v{OA}, s{Q}, v{OA}
    s_lshl_b32 s{Q}, s{i}, 11
    s_lshl_b32 s{Q+1}, s{S_RT}, 10
    s_add_u32 s{Q}, s{Q}, s{Q+1}
    s_lshl_b32 s{Q+1}, s{S_EH}, 3
    s_add_u32 s{Q}, s{Q}, s{Q+1}
    s_add_u32 s{Q}, s{Q}, {WS_BF}
    v_add_u32 v{BA}, s{Q}, v1
    v_mov_b32 v{RR}, v1
    v_lshlrev_b32 v{u+4}, 2, v{g}
    v_sub_u32 v{u+3}, v{u+3}, v{u+4}
    v_mov_b32 v{u+4}, 0xf149f2ca""")
    for k in range(8): A(f"v_cmp_gt_i32 vcc, {(k>>2)*16+(k&3)}, v{u+3}\nv_cndmask_b32 v{NEG0+k}, 0, v{u+4}, vcc")
    for k in range(4): A(f"v_mov_b32 v{ONES+k}, 0x3f803f80")
    A(f"""v_lshrrev_b32 v{u+3}, 2, v{c}
    v_xor_b32 v{u+3}, v{u+3}, v{g}
    v_lshlrev_b32 v{u+3}, 3, v{u+3}
    v_lshl_add_u32 v{u+3}, v{c}, 5, v{u+3}
    s_lshl_b32 s{Q}, s{w}, 10
    s_add_u32 s{Q}, s{Q}, {L_X}
    v_add_u32 v{XW}, s{Q}, v{u+3}
    v_xor_b32 v{u+3}, v{u+1}, v{g}
    v_lshlrev_b32 v{u+3}, 3, v{u+3}
    v_lshrrev_b32 v{u+4}, 2, v0
    v_lshl_add_u32 v{u+3}, v{u+4}, 5, v{u+3}
    v_add_u32 v{XR}, {L_X}, v{u+3}
    s_mov_b32 s{Q}, 0x10000000
    s_cmp_eq_u32 s{w}, 0
    s_cselect_b32 s{S_GO}, {WS_G}, s{Q}
    s_cselect_b32 s{S_FO}, {WS_FL+F_O*128}, s{Q}
    s_lshl_b32 s{Q}, s{S_Y}, 5
    s_add_u32 s{Q}, s{Q}, s{i}
    s_lshl_b32 s{Q}, s{Q}, 7
    s_add_u32 s{S_FO}, s{S_FO}, s{Q}
    s_add_u32 s{S_FP}, s{S_FO}, {(F_P-F_O)*128}
    s_lshl_b32 s{S_OO}, s{S_RT}, 17
    s_lshl_b32 s{Q}, s{i}, 12
    s_add_u32 s{S_OO}, s{S_OO}, s{Q}
    s_lshl_b32 s{Q}, s{S_EH}, 11
    s_add_u32 s{S_OO}, s{S_OO}, s{Q}
    s_add_u32 s{S_OO}, s{S_OO}, {WS_O}""")
    A("s_waitcnt vmcnt(32)")
    for k in range(8): A(f"v_lshlrev_b32 v{GW+2*k}, 16, v{ACC+k}\nv_and_b32 v{GW+2*k+1}, s{S_HI}, v{ACC+k}")
    for grp in range(8):
        A(f"s_waitcnt vmcnt({24 if grp<5 else 8*(7-grp)})")
        for ks in range(4*grp,4*grp+4):
            for nt in range(2):
                for hf in range(2): A(f"ds_read_b64_tr_b16 {a((ks*2+nt)*4+2*hf,2)}, v{u+2} offset:{(ks&15)*2048+hf*1024+nt*32}")
        if grp<4:
            A("s_waitcnt lgkmcnt(0)")
            for n in range(32+8*grp,40+8*grp): dm(n)
    A(f"""s_waitcnt lgkmcnt(0)
    v_readlane_b32 s{S_S}, v{LS}, 0
    s_mov_b32 s{S_OOB}, 0x10000000
    s_mov_b32 s{S_DF}, s{S_OOB}
    s_mov_b32 s{S_DP}, s{S_OOB}
    s_mov_b32 s{S_SF}, 0x1000
    s_mov_b32 s{S_MD}, 0
    s_mov_b32 s{S_JA}, 0
    s_mov_b32 s{S_JS}, 0
    s_mov_b32 s{S_EA}, 3
    s_mov_b32 s{S_FM}, 0
    s_mov_b32 s{S_SA}, s{S_S}
    s_mov_b32 s{S_SP}, s{S_S}
    s_lshl_b32 s{Q}, s{i}, 8
    s_add_u32 s{Q}, s{Q}, {WS_FL+F_PROG*128}
    v_mov_b32 v{FA}, s{Q}
    s_add_u32 s{Q}, s{Q}, 128
    {wl(FA,1,f's{Q}')}
    v_mov_b32 v{FT}, 0
    v_mov_b32 v{FR}, 0
    {wl(FT,2,16)}
    s_lshl_b32 s{Q}, s{S_Y}, 5
    s_and_b32 s{Q+1}, s{i}, 24
    s_add_u32 s{Q+1}, s{Q+1}, s{Q}
    s_lshl_b32 s{Q+1}, s{Q+1}, 7
    s_add_u32 s{Q+1}, s{Q+1}, {WS_FL+(F_O-8)*128}
    s_mov_b64 exec, {MO}
    v_lshl_add_u32 v{FA}, v0, 7, s{Q+1}
    s_lshr_b32 s{Q+1}, s{i}, 2
    s_add_u32 s{Q+1}, s{Q+1}, s{Q}
    s_lshl_b32 s{Q+1}, s{Q+1}, 7
    s_add_u32 s{Q+1}, s{Q+1}, {WS_FL+(F_P-128)*128}
    s_mov_b64 exec, 0xf0000
    v_lshl_add_u32 v{FA}, v0, 10, s{Q+1}
    s_mov_b64 exec, -1""")
    set_a(A); set_p(A); set_s(A)
    stamp(A,T0)
    A.label('T_pre')
    pre(A)
    A(f"s_cmp_eq_u32 s{S_MD}, 2\ns_cbranch_scc1 T_g\ns_waitcnt vmcnt(0)\ns_cmp_eq_u32 s{S_MD}, 0\ns_cbranch_scc1 T_att\ns_mov_b32 s{S_MD}, 2")
    A.label('T_loop')
    dma(A)
    A(f"s_cmp_lt_u32 s{S_SP}, 64\ns_cbranch_scc1 T_att\ns_waitcnt vmcnt(0)\n{sig(S_DP)}\ns_branch T_g")
    A.label('T_att')
    att(A)
    A(f"s_cmp_eq_u32 s{S_MD}, 2\ns_cbranch_scc1 T_pre\ns_waitcnt vmcnt(0)\n{sig(S_DF)}\ns_add_u32 s{S_MD}, s{S_MD}, 1\ns_cmp_eq_u32 s{S_MD}, 1\ns_cbranch_scc1 T_pre")
    dma(A); gstage(A,True)
    A("s_branch T_fb")
    A.label('T_g')
    gstage(A,False)
    stamp(A,T0)
    A(f"s_cmp_lg_u32 s{S_JS}, s{S_JA}\ns_cbranch_scc1 T_loop\ns_mov_b32 s{S_MD}, 3")
    A.label('T_fb')
    A(f"s_waitcnt vmcnt(0)\n{sig(S_DP)}")
    fld(A); A("s_waitcnt vmcnt(0)"); fin(A)
    stamp(A,T0)
    A(f"s_cmp_eq_u32 s{S_MD}, 3\ns_cbranch_scc1 T_att")
```

```python
import sys
from common import *
import gemm
K="gated_mix__memory_aug_recurrent_mem_tr__geglu_ffn__prompt"
S_TS=98
def build(mode='full',stamps=False,opts={}):
    A=Asm()
    def stamp(A,vt=16):
        if not stamps: return
        L=A.newlabel('ts')
        A(f"s_cmp_lg_u32 s{S_W}, 0\ns_cbranch_scc1 {L}\ns_memrealtime s[100:101]\ns_waitcnt lgkmcnt(0)\nv_mov_b32 v{vt}, s100\nv_mov_b32 v{vt+1}, 0\ns_mov_b64 exec, 1")
        A(f"buffer_store_dword v{vt}, v{vt+1}, {s(S_WS,4)}, s{S_TS} offen\ns_mov_b64 exec, -1\ns_add_u32 s{S_TS}, s{S_TS}, 4")
        A.label(L)
    A(f"s_cmp_ge_u32 s2, 256\ns_cbranch_scc1 L_end")
    if stamps: A("s_memrealtime s[100:101]")
    A(f"s_load_dwordx4 s[88:91], s[0:1], 96\ns_load_dwordx16 s[64:79], s[0:1], 0\ns_load_dwordx8 s[80:87], s[0:1], 64\ns_load_dwordx2 s[92:93], s[0:1], 112")
    A(f"s_getreg_b32 s{S_VX}, hwreg(HW_REG_XCC_ID, 0, 3)\nv_lshrrev_b32 v1, 6, v0\nv_and_b32 v0, 63, v0\nv_readfirstlane_b32 s{S_W}, v1\nv_lshlrev_b32 v1, 4, v0")
    for i in range(2,32): A(f"v_mov_b32 v{i}, 0")
    A(f"s_mov_b32 s{S_BUD}, 200000\ns_mov_b32 s{S_RANK}, 0\ns_waitcnt lgkmcnt(0)")
    srd(A,S_DBG,P_DBG,256); srd(A,S_WS,P_WS,256*MB); srd(A,S_A,P_X,4*MB); srd(A,S_B0,P_WQ,8*MB); srd(A,S_B1,P_WK,8*MB); srd(A,S_OUT,P_OUT,4*MB)
    if opts.get('fakexcc'): A(f"s_lshr_b32 s{S_VX}, s2, 4\ns_mul_i32 s{S_VX}, s{S_VX}, s{S_VX}\ns_and_b32 s{S_VX}, s{S_VX}, 7")
    A(f"s_cmp_lg_u32 s{S_W}, 0\ns_cbranch_scc1 C_wait")
    A(f"s_lshl_b32 s32, s{S_VX}, 4\nv_mov_b32 v2, s32\nv_mov_b32 v3, 1\ns_mov_b64 exec, 1\nbuffer_atomic_add v3, v2, {s(S_DBG,4)}, 0 offen sc0\ns_waitcnt vmcnt(0)\ns_mov_b64 exec, -1\nv_readfirstlane_b32 s{S_RANK}, v3")
    A(f"s_cmp_lt_u32 s{S_RANK}, 32\ns_cbranch_scc1 C_got")
    A(f"v_mov_b32 v2, {D_OVF*4}\nv_mov_b32 v3, 1\ns_mov_b64 exec, 1\nbuffer_atomic_add v3, v2, {s(S_DBG,4)}, 0 offen sc0\ns_waitcnt vmcnt(0)\ns_mov_b64 exec, -1\nv_readfirstlane_b32 s33, v3\nv_and_b32 v2, 0x70, v1")
    A.label('C_sp')
    A(f"buffer_load_dword v3, v2, {s(S_DBG,4)}, 0 offen sc1\ns_waitcnt vmcnt(0)\ns_mov_b32 s34, 0")
    for i in range(8): A(f"v_readlane_b32 s{40+i}, v3, {i}\ns_add_u32 s34, s34, s{40+i}")
    A(f"s_cmp_ge_u32 s34, 256\ns_cbranch_scc1 C_all\ns_sleep 4\ns_sub_u32 s{S_BUD}, s{S_BUD}, 1\ns_cbranch_scc0 C_sp\ns_mov_b32 s{S_BUD}, 0")
    A.label('C_all')
    for i in range(8):
        A(f"s_min_u32 s35, s{40+i}, 32\ns_sub_u32 s36, 32, s35\ns_mov_b32 s{S_VX}, {i}\ns_add_u32 s{S_RANK}, s35, s33\ns_cmp_lt_u32 s33, s36\ns_cbranch_scc1 C_got\ns_sub_u32 s33, s33, s36")
    A.label('C_got')
    A(f"s_lshl_b32 s32, s{S_VX}, 8\ns_or_b32 s32, s32, s{S_RANK}\nv_mov_b32 v3, s32\nv_mov_b32 v2, 163836\nds_write_b32 v2, v3\ns_waitcnt lgkmcnt(0)")
    A.label('C_wait')
    A(f"s_barrier\nv_mov_b32 v2, 163836\nds_read_b32 v3, v2\ns_waitcnt lgkmcnt(0)\nv_readfirstlane_b32 s32, v3\ns_barrier")
    A(f"s_and_b32 s{S_RANK}, s32, 31\ns_lshr_b32 s{S_VX}, s32, 8\ns_and_b32 s{S_VX}, s{S_VX}, 7")
    if stamps:
        A(f"s_lshl_b32 s{S_TS}, s{S_VX}, 5\ns_add_u32 s{S_TS}, s{S_TS}, s{S_RANK}\ns_lshl_b32 s{S_TS}, s{S_TS}, 12\ns_add_u32 s{S_TS}, s{S_TS}, {WS_TS}")
        A(f"v_mov_b32 v16, s100\nv_mov_b32 v17, 0\nbuffer_store_dword v16, v17, {s(S_WS,4)}, s{S_TS} offen\ns_add_u32 s{S_TS}, s{S_TS}, 4")
        stamp(A)
    A(f"s_cmp_eq_u32 s{S_VX}, {XA}\ns_cbranch_scc1 R_start\ns_cmp_eq_u32 s{S_VX}, {XB}\ns_cbranch_scc1 R_start")
    A(f"s_sub_u32 s{S_Y}, s{S_VX}, 2\ns_cmp_eq_u32 s{S_VX}, 1\ns_cselect_b32 s{S_Y}, 0, s{S_Y}")
    A(f"s_cmp_lg_u32 s32, {7*256+31}\ns_cbranch_scc1 G_start\ns_cmp_lg_u32 s{S_W}, 3\ns_cbranch_scc1 G_start\nv_lshlrev_b32 v2, 7, v0\nv_mov_b32 v3, 0")
    for i in range(NFLAGS//64): A(f"s_mov_b32 s33, {WS_FL+i*8192}\nbuffer_store_dword v3, v2, {s(S_WS,4)}, s33 offen sc1")
    A(f"s_waitcnt vmcnt(0)\nv_mov_b32 v2, {D_INIT*4}\nv_mov_b32 v3, 1\nbuffer_store_dword v3, v2, {s(S_DBG,4)}, 0 offen sc1\ns_branch G_start")
    F=('flush',)
    sched=opts.get('sched') or [
     [('sk',0,1,0),F,('up',0,3,0),('bk',3,1,0),('bq',0,2,0),F],
     [('sk',0,1,16),F,('up',0,3,4),('bv',3,1,0),('bq',0,2,8),F],
     [('sv',0,1,0),F,('up',0,3,8),('up',0,3,24),F,('dn',0,3,12),('kv7',),F],
     [('sv',0,1,16),F,('up',0,3,12),F,('dn',0,3,0),('bq',4,2,0),('bq',4,2,8),F],
     [('pf',P_WO,8*MB,0,opts.get('pf',0)),('bk',1,1,0),('up',0,3,16),('dn',0,3,4),('bk',5,1,0),F],
     [('pf',P_WO,8*MB,4*MB,opts.get('pf',0)),('bv',1,1,0),('up',0,3,20),F,('dn',0,3,8),('bv',5,1,0),F]]
    gemm.OPT=opts
    gemm.gemm_role(A,sched,'T_start',stamp)
    A.label('T_start')
    if mode in('full','tail'):
        import tail; tail.tail_role(A,stamp,opts)
    A("s_branch L_fin")
    A.label('R_start')
    if mode in('full','rec'):
        import rec; rec.rec_role(A,stamp,opts)
    A.label('L_fin')
    A(f"s_cmp_lg_u32 s{S_BUD}, 0\ns_cbranch_scc1 L_end\nv_mov_b32 v2, {D_ERR*4}\nv_mov_b32 v3, 1\nbuffer_atomic_add v3, v2, {s(S_DBG,4)}, 0 offen")
    A.label('L_end')
    A("s_endpgm")
    ref=open(f"cdna_kernels/{K}.s.ref").read()
    head=ref[:ref.index("    ; v1 = byte offset")].replace("grid=(8192,1,1) block=(256,1,1) lds=0","grid=(256,1,1) block=(256,1,1) lds=163840")
    foot=ref[ref.index(".section .rodata"):].replace("next_free_vgpr 256","next_free_vgpr 512")
    return head+'; opts '+' '.join(f'{k}={x}' for k,x in opts.items() if k!='sched')+'\n'+A.text()+foot
if __name__=='__main__':
    mode=sys.argv[1]; out=sys.argv[2]; st='ts' in sys.argv[3:]
    opts={k:eval(x) for k,x in (o.split('=') for o in sys.argv[3:] if '=' in o)}
    open(out,'w').write(build(mode,st,opts))
```

```python
from common import *
S_SA=32
S_SB=40
S_STA=44; S_STB=45; S_IT=46; S_CUR=47; S_PREV=48; S_RND=49; S_MB=50; S_CT=51
S_EO=52; S_EF=53; S_PEO=54; S_PEF=55; S_T=56
S_M0=95; S_NI=96; S_B1O=97
V_L=0; V_L16=1; V_AO=2; V_BO=3; V_RA=4; V_RB=6; V_T=16; V_FL=14; V_ONE=15; V_BO1=24
F0=128; F1=192; VE=64
LB=0; LA=98304; S_BS=97; S_BP=62; S_BD=63
T_NONE=0;T_BK=1;T_BV=2;T_UP=3;T_SK=4;T_SV=5;T_DN=6;T_FLUSH=7
OPT={}; NTB=['']
def dma(T,buf):
    g=[]
    nb=2 if T==8 else 1; buf=buf*T/8
    for i in range(T):
        g.append([f"s_add_u32 m0, s{S_M0}, {int(LA+buf*32768+i*4096)}", f"buffer_load_dwordx4 v{V_AO}, {s(S_A,4)}, s{S_SA+i} offen SCA lds"])
    h=[]
    for j in range(nb):
        for i in range(4):
            h.append([f"s_add_u32 m0, s{S_M0}, {int(LB+buf*32768+j*16384+i*4096)}", f"buffer_load_dwordx4 v{V_BO1 if j else V_BO}, {s(S_B1 if j else S_B0,4)}, s{S_SB+i} offen {NTB[0]} lds"])
    out=[]
    for x,y in zip(h,g): out+= [x,y]
    out[-1]=out[-1]+[f"v_add_u32 v{V_AO}, s{S_STA}, v{V_AO}", f"v_add_u32 v{V_BO}, s{S_STB}, v{V_BO}"]+([f"v_add_u32 v{V_BO1}, s{S_STB}, v{V_BO1}"] if nb==2 else [])
    return [[t.replace(' SCA',' sc1') for t in x] for x in out]
def reads(T,F,buf,sub):
    g=[]
    for i in range(T):
        g.append(f"ds_read_b128 {v(F+4*i,4)}, v{V_RA+sub} offset:{buf*4096*T+i*2048}")
        for half in range(2):
            g.append(f"ds_read_b64_tr_b16 {v(F+32+4*i+2*half,2)}, v{V_RB+i} offset:{buf*4096*T+(32*sub+4*half)*256}")
    return g
def mfmas(T,F,swap,first):
    g=[]
    for mt in range(T):
        for nt in range(T):
            x=v(F+4*mt,4); w=v(F+32+4*nt,4); d=a(4*(T*mt+nt),4)
            p,q=(w,x) if swap else (x,w)
            g.append(f"v_mfma_f32_16x16x32_bf16 {d}, {p}, {q}, {'0' if first else d}")
    return g
def flag_add(A):
    L=A.newlabel('nf')
    A(f"s_cmp_eq_u32 s{S_PEF}, 0\ns_cbranch_scc1 {L}\nv_mov_b32 v{V_FL}, s{S_PEF}\ns_mov_b64 exec, 1")
    A(f"buffer_atomic_add v{V_ONE}, v{V_FL}, {s(S_WS,4)}, 0 offen\ns_mov_b64 exec, -1\ns_mov_b32 s{S_PEF}, 0")
    A.label(L)
def iteration(A,swap,buf,first=False,vm=8,nxt=True,do_dma=True,flag=False):
    T=8; n=64
    rd=lambda F,b,sub:[t for k,t in enumerate(reads(T,F,b,sub)) if k%3==0]
    rb=lambda F,sub:[t for k,t in enumerate(reads(T,F,0,sub)) if k%3]
    mix=lambda x,y:[t for i in range(8) for t in (x[i],y[2*i],y[2*i+1])]
    da=[[f"s_add_u32 m0, s{S_M0}, {LA+buf*32768+i*4096}", f"buffer_load_dwordx4 v{V_AO}, {s(S_A,4)}, s{S_SA+i} offen sc1 lds"] for i in range(8)]
    da[-1].append(f"v_add_u32 v{V_AO}, s{S_STA}, v{V_AO}")
    db=[[f"s_add_u32 m0, s{S_BP}, {j*16384+i*4096}", f"buffer_load_dwordx4 v{V_BO1 if j else V_BO}, {s(S_B1 if j else S_B0,4)}, s{S_SB+i} offen {NTB[0]} lds"] for i in range(4) for j in range(2)]
    db[-1]+=[f"v_add_u32 v{V_BO}, s{S_STB}, v{V_BO}",f"v_add_u32 v{V_BO1}, s{S_STB}, v{V_BO1}"]
    m=interleave(mfmas(T,F0,swap,first),mix(rd(F1,buf,1),rb(F1,1)),start=0,end=48)
    if do_dma: m=interleave(m,db,start=1,end=len(m)-OPT.get('eb',12))
    if nxt:
        rot=[[f"s_add_u32 s{S_BP}, s{S_M0}, s{S_BS}",f"s_cmp_eq_u32 s{S_BS}, 0x10000"],[f"s_cselect_b32 s{S_BD}, 0xffff0000, s{S_T+5}",f"s_add_u32 s{S_BS}, s{S_BS}, s{S_BD}"]]+[[f"v_add_u32 v{V_RB+i}, s{S_BD}, v{V_RB+i}" for i in (2*k,2*k+1)] for k in range(4)]
        m=m[:-8]+interleave(m[-8:],rot,start=0,every=1)
    for t in m: A(t)
    A(f"s_waitcnt vmcnt({vm}) lgkmcnt(0)" if vm is not None else "s_waitcnt lgkmcnt(0)")
    A("s_barrier")
    if flag: flag_add(A)
    m=mfmas(T,F1,swap,False)
    if nxt: m=interleave(m,mix(rd(F0,1-buf,0),rb(F0,0)),start=0,end=48)
    if do_dma: m=interleave(m,da,start=1,end=len(m)-OPT.get('ea',30))
    for t in m: A(t)
    if nxt: A("s_waitcnt lgkmcnt(0)")
def loop(A,T,swap,name):
    A.label(name)
    A("s_barrier")
    for t in reads(T,F0,0,0): A(t)
    A(f"s_sub_u32 s{S_IT}, s{S_NI}, 4\ns_mov_b32 s{S_BS}, 0\ns_add_u32 s{S_BP}, s{S_M0}, 0x10000\ns_mov_b32 s{S_T+5}, 0x8000\ns_waitcnt lgkmcnt(0)")
    iteration(A,swap,0,first=True,vm=None); iteration(A,swap,1,flag=True)
    A.label(name+'_l')
    iteration(A,swap,0); iteration(A,swap,1)
    A(f"s_sub_u32 s{S_IT}, s{S_IT}, 2\ns_cmp_lg_u32 s{S_IT}, 0\ns_cbranch_scc1 {name}_l")
    iteration(A,swap,0,vm=0,do_dma=False); iteration(A,swap,1,vm=None,nxt=False,do_dma=False)
    A("s_branch G_next")
def loop4(A,swap,name):
    T=4
    A.label(name)
    for i in range(64): A(f"v_accvgpr_write_b32 a{i}, 0")
    A(f"s_mov_b32 s{S_IT}, 3\ns_waitcnt vmcnt({24+NT4()})\ns_barrier")
    for t in reads(T,F0,0,0): A(t)
    A("s_waitcnt lgkmcnt(0)")
    A.label(name+'_l')
    A(f"s_cmp_eq_u32 s{S_IT}, 0\ns_cselect_b32 s{S_A+2}, 0, s{S_A+2}\ns_cselect_b32 s{S_B0+2}, 0, s{S_B0+2}")
    for b in range(4):
        for t in interleave(mfmas(T,F0,swap,False),reads(T,F1,b,1),start=0,end=12): A(t)
        A("s_waitcnt vmcnt(16) lgkmcnt(0)\ns_barrier")
        m=interleave(mfmas(T,F1,swap,False),reads(T,F0,(b+1)&3,0),start=0,end=12)
        for t in interleave(m,dma(T,b),start=1,end=len(m)-2): A(t)
        A("s_waitcnt lgkmcnt(0)")
    A(f"s_sub_u32 s{S_IT}, s{S_IT}, 1\ns_cbranch_scc0 {name}_l\ns_branch G_next")
def NT4(): return {0:0,1:1,2:5}[OPT.get('tch4',0)]
def cvt4(A,dst,accs,tmp):
    for j,ac in enumerate(accs):
        for i in range(4): A(f"v_accvgpr_read_b32 v{tmp+4*j+i}, a{ac+i}")
    for j in range(4): A(f"v_cvt_pk_bf16_f32 v{dst+j}, v{tmp+2*j}, v{tmp+2*j+1}")
def epilogue(A,typ):
    T=4 if typ in(T_SK,T_SV) else 8
    acc=lambda mt,nt:4*(T*mt+nt)
    st=[]
    if typ in(T_BK,T_SK): st=[((mt>>1)*262144+(mt&1)*4096,j*1024,(acc(mt,2*j),acc(mt,2*j+1))) for mt in range(T) for j in range(T//2)]
    if typ in(T_BV,T_SV): st=[(j*262144+(nt>>2)*4096,(nt&3)*1024,(acc(2*j,nt),acc(2*j+1,nt))) for j in range(T//2) for nt in range(T)]
    if typ==T_DN: st=[((mt>>1)*65536+(j>>1)*4096,(j&1)*2048+(mt&1)*1024,(acc(mt,2*j),acc(mt,2*j+1))) for m2 in range(4) for j2 in range(2) for mt in (2*m2,2*m2+1) for j in (2*j2,2*j2+1)]
    if typ==T_UP: st=[(mt*112*1024,j*1024,(acc(mt,2*j),acc(mt,2*j+1))) for mt in range(T) for j in range(2)]
    if typ==T_UP: A(f"s_mov_b32 s{S_T+1}, 0xbdd2d3e8\nv_mov_b32 v{VE+40}, 0xc0135761")
    last=None
    for k,(so,imm,ac) in enumerate(st):
        d=VE+4*(k&3); t=VE+16
        if so!=last: A(f"s_add_u32 s{S_T}, s{S_PEO}, {so}"); last=so
        if typ==T_UP:
            G=t; U=t+8; X=t+16
            for j in range(2):
                for i in range(4): A(f"v_accvgpr_read_b32 v{G+4*j+i}, a{ac[j]+i}")
            for i in range(8): A(f"v_mul_f32 v{X+i}, v{G+i}, v{G+i}")
            for i in range(8): A(f"v_fma_f32 v{X+i}, v{X+i}, s{S_T+1}, v{VE+40}")
            for i in range(8): A(f"v_mul_f32 v{X+i}, v{X+i}, v{G+i}")
            for i in range(8): A(f"v_exp_f32 v{X+i}, v{X+i}\nv_accvgpr_read_b32 v{U+i}, a{ac[i>>2]+16+(i&3)}")
            for i in range(8): A(f"v_add_f32 v{X+i}, 1.0, v{X+i}")
            for i in range(8): A(f"v_rcp_f32 v{X+i}, v{X+i}\nv_mul_f32 v{G+i}, v{G+i}, v{U+i}")
            for i in range(8): A(f"v_mul_f32 v{G+i}, v{G+i}, v{X+i}")
            for j in range(4): A(f"v_cvt_pk_bf16_f32 v{d+j}, v{G+2*j}, v{G+2*j+1}")
        else: cvt4(A,d,ac,t)
        A(f"buffer_store_dwordx4 {v(d,4)}, v{V_L16}, {s(S_WS,4)}, s{S_T} offen offset:{imm} sc1 {OPT.get('nts','')}")
    A(f"s_waitcnt vmcnt({len(st)})")
def setup(A,typ,isq=False):
    T=4 if typ in(T_SK,T_SV) else 8
    NTB[0]=OPT.get('ntu','nt') if typ in(T_UP,T_DN) else OPT.get('nt4','') if T==4 else ''
    t=V_T; w=S_W; q=S_T
    RS={T_UP:7168,T_DN:2048}.get(typ,8192)
    A(f"s_mov_b32 s{S_CUR}, {typ}\ns_mov_b32 s{S_NI}, {14 if typ==T_DN else 16}\ns_mov_b32 s{S_STB}, {64*RS}")
    A(f"s_lshr_b32 s{q}, s{w}, 1\ns_and_b32 s{q+1}, s{w}, 1")
    P={T_BK:P_WQ if isq else P_WK,T_SK:P_WK,T_BV:P_WV,T_SV:P_WV,T_UP:P_WG,T_DN:P_WD}[typ]
    size=7*MB if typ in(T_UP,T_DN) else 8*MB
    srd(A,S_B0,P,size); srd(A,S_B1,P_WU if typ==T_UP else P,size)
    for i in range(4): A(f"s_mov_b32 s{S_SB+i}, {(4*(2*(i&1)+8*(i>>1)) if typ==T_DN else 16*i)*RS}")
    A(f"v_lshrrev_b32 v{t}, 4, v{V_L}\ns_lshl_b32 s{q+2}, s{q}, 2\nv_or_b32 v{t+1}, s{q+2}, v{t}\nv_bfe_u32 v{t+2}, v{V_L}, 1, 3\nv_xor_b32 v{t+1}, v{t+1}, v{t+2}")
    A(f"v_lshlrev_b32 v{t+1}, 5, v{t+1}\nv_and_b32 v{t+2}, 1, v{V_L}\nv_lshl_add_u32 v{t+1}, v{t+2}, 4, v{t+1}")
    if typ==T_DN: A(f"s_lshl_b32 s{q+2}, s{q+1}, 2\ns_add_u32 s{q+2}, s{q+2}, s{q}\ns_lshl_b32 s{q+2}, s{q+2}, 2")
    else: A(f"s_lshl_b32 s{q+2}, s{w}, 2")
    A(f"v_add_u32 v{t}, s{q+2}, v{t}\nv_mul_u32_u24 v{t}, {RS}, v{t}")
    if typ==T_DN: A(f"s_lshr_b32 s{q+4}, s{S_CT}, 2\ns_and_b32 s{S_CT}, s{S_CT}, 3\ns_mul_i32 s{q+3}, s{q+4}, {896*2048}\nv_add_u32 v{t}, s{q+3}, v{t}")
    A(f"s_lshl_b32 s{q+2}, s{S_CT}, {9 if typ in(T_BK,T_BV,T_DN) else 8}")
    A(f"v_add3_u32 v{V_BO}, v{t}, v{t+1}, s{q+2}\nv_add_u32 v{V_BO1}, {0 if typ==T_UP else 256}, v{V_BO}")
    if typ==T_DN:
        srd(A,S_A,P_WS,256*MB)
        for i in range(8): A(f"s_mov_b32 s{S_SA+i}, {WS_H+2*i*112*1024}")
        A(f"s_mov_b32 s{S_STA}, 2048\ns_lshl_b32 s{q+2}, s{S_MB}, 4\ns_add_u32 s{q+2}, s{q+2}, s{q}\ns_mul_i32 s{q+2}, s{q+2}, 112\ns_add_u32 s{q+2}, s{q+2}, s{q+1}\ns_mul_i32 s{q+3}, s{q+4}, 28\ns_add_u32 s{q+2}, s{q+2}, s{q+3}\ns_lshl_b32 s{q+2}, s{q+2}, 10")
        A(f"v_add_u32 v{V_AO}, s{q+2}, v{V_L16}")
        A(f"s_lshl_b32 s{q+2}, s{q}, 14\ns_add_u32 s{q+2}, s{q+2}, {LA}\nv_add_u32 v{V_RA}, s{q+2}, v{V_L16}\nv_add_u32 v{V_RA+1}, 1024, v{V_RA}")
    else:
        srd(A,S_A,P_X,4*MB)
        for i in range(T): A(f"s_mov_b32 s{S_SA+i}, {i*65536}")
        A(f"s_mov_b32 s{S_STA}, 128\nv_lshrrev_b32 v{t}, 4, v{V_L}\ns_lshl_b32 s{q+2}, s{q+1}, 2\nv_or_b32 v{t}, s{q+2}, v{t}\nv_and_b32 v{t+1}, 7, v{V_L}\nv_xor_b32 v{t}, v{t}, v{t+1}")
        A(f"v_lshrrev_b32 v{t+1}, 3, v{V_L}\nv_lshlrev_b32 v{t+1}, 11, v{t+1}\nv_lshl_add_u32 v{t}, v{t}, 4, v{t+1}")
        A(f"s_lshl_b32 s{q+2}, s{S_MB}, {19 if T==8 else 18}\ns_lshl_b32 s{q+3}, s{w}, 14\ns_add_u32 s{q+2}, s{q+2}, s{q+3}\nv_add_u32 v{V_AO}, s{q+2}, v{t}")
        A(f"v_and_b32 v{t}, 15, v{V_L}\nv_lshrrev_b32 v{t+1}, 4, v{V_L}\nv_lshrrev_b32 v{t+2}, 1, v{t}\nv_xor_b32 v{t+1}, v{t+1}, v{t+2}\nv_lshlrev_b32 v{t}, 7, v{t}\nv_lshl_add_u32 v{t}, v{t+1}, 4, v{t}")
        A(f"s_mul_i32 s{q+2}, s{q}, {T*2048}\ns_add_u32 s{q+2}, s{q+2}, {LA}\nv_add_u32 v{V_RA}, s{q+2}, v{t}\nv_xor_b32 v{V_RA+1}, 64, v{V_RA}")
    for b in range(2 if T==8 else 4):
        for g in dma(T,b):
            for x in g: A(x)
    tch=lambda sr,so='0':A(f"buffer_load_dword v{t+6}, v{t}, {s(sr,4)}, {so} offen {OPT.get('ntt','') if sr!=S_A else ''}")
    if OPT.get('tch',2):
        if typ==T_UP and OPT.get('tch',2)&1:
            A(f"s_lshl_b32 s{q+2}, s{S_MB}, 2\ns_add_u32 s{q+2}, s{q+2}, s{w}\ns_mul_i32 s{q+2}, s{q+2}, {32*RS}\ns_lshl_b32 s{q+3}, s{S_CT}, 8\ns_add_u32 s{q+2}, s{q+2}, s{q+3}")
            A(f"v_lshrrev_b32 v{t}, 1, v{V_L}\nv_mul_u32_u24 v{t}, {RS}, v{t}\nv_and_b32 v{t+1}, 1, v{V_L}\nv_lshl_add_u32 v{t}, v{t+1}, 7, v{t}")
            tch(S_B0,f"s{q+2}"); tch(S_B1,f"s{q+2}")
        if typ==T_DN and OPT.get('tch',2)&1:
            A(f"s_lshl_b32 s{q+2}, s{q+4}, 3\ns_add_u32 s{q+2}, s{q+2}, s{S_MB}\ns_lshl_b32 s{q+2}, s{q+2}, 2\ns_add_u32 s{q+2}, s{q+2}, s{w}\ns_mul_i32 s{q+2}, s{q+2}, {28*RS}\ns_lshl_b32 s{q+3}, s{S_CT}, 9\ns_add_u32 s{q+2}, s{q+2}, s{q+3}")
            A(f"v_lshrrev_b32 v{t}, 2, v{V_L}\nv_lshlrev_b32 v{t}, 11, v{t}\nv_and_b32 v{t+1}, 3, v{V_L}\nv_lshl_add_u32 v{t}, v{t+1}, 7, v{t}\ns_add_u32 s{q+3}, s{q+2}, {12*RS}")
            tch(S_B0,f"s{q+2}"); tch(S_B0,f"s{q+3}")
        if T==4 and NT4()>1:
            A(f"s_lshl_b32 s{q+2}, s{S_MB}, 2\ns_add_u32 s{q+2}, s{q+2}, s{w}\ns_lshl_b32 s{q+2}, s{q+2}, 18\ns_lshl_b32 s{q+3}, s{S_CT}, 8\ns_add_u32 s{q+2}, s{q+2}, s{q+3}")
            A(f"v_lshrrev_b32 v{t}, 1, v{V_L}\nv_lshlrev_b32 v{t}, 13, v{t}\nv_and_b32 v{t+1}, 1, v{V_L}\nv_lshl_add_u32 v{t}, v{t+1}, 7, v{t}")
            for i in range(4): tch(S_B0,f"s{q+2}"); A(f"s_add_u32 s{q+2}, s{q+2}, {2*MB}")
        if typ!=T_DN and (T==8 or NT4()):
            e=1 if T==8 else 0
            A(f"s_lshl_b32 s{q+2}, s{S_MB}, 4\ns_and_b32 s{q+3}, s{S_CT}, 15\ns_add_u32 s{q+2}, s{q+2}, s{q+3}\ns_lshl_b32 s{q+2}, s{q+2}, 2\ns_add_u32 s{q+2}, s{q+2}, s{w}\ns_lshl_b32 s{q+2}, s{q+2}, {12+e}\nv_lshlrev_b32 v{t}, {6+e}, v{V_L}")
            tch(S_A,f"s{q+2}")
    A(f"v_lshrrev_b32 v{t}, 4, v{V_L}\nv_bfe_u32 v{t+1}, v{V_L}, 2, 2\nv_lshl_add_u32 v{t}, v{t}, 3, v{t+1}\nv_lshlrev_b32 v{t}, 8, v{t}\nv_and_b32 v{t+1}, 3, v{V_L}\nv_lshl_add_u32 v{t}, v{t+1}, 3, v{t}")
    A(f"v_bfe_u32 v{t+1}, v{V_L}, 2, 3\nv_lshl_add_u32 v{t}, v{t+1}, 5, v{t}")
    if typ in(T_BK,T_BV,T_DN):
        A(f"s_lshl_b32 s{q+2}, s{q+1}, 14\nv_add_u32 v{t}, s{q+2}, v{t}")
        for i in range(8): A(f"v_xor_b32 v{V_RB+i}, {i*32}, v{t}")
    else:
        A(f"s_lshl_b32 s{q+2}, s{q+1}, 7\nv_xor_b32 v{t}, s{q+2}, v{t}")
        for i in range(T): A(f"v_xor_b32 v{V_RB+i}, {(i&3)*32+(i>>2)*16384}, v{t}")
    if typ in(T_BK,T_BV):
        base=WS_QX if isq else (WS_KX if typ==T_BK else WS_VX)
        A(f"s_lshl_b32 s{q+2}, s{S_MB}, 21\ns_lshl_b32 s{q+3}, s{q}, 20\ns_add_u32 s{q+2}, s{q+2}, s{q+3}\ns_lshl_b32 s{q+3}, s{S_CT}, 14\ns_add_u32 s{q+2}, s{q+2}, s{q+3}\ns_lshl_b32 s{q+3}, s{q+1}, 13")
        fl=F_Q if isq else F_KV+1
    elif typ in(T_SK,T_SV):
        base=WS_KX if typ==T_SK else WS_VX
        A(f"s_lshl_b32 s{q+2}, s{S_MB}, 20\ns_lshl_b32 s{q+3}, s{q}, 19\ns_add_u32 s{q+2}, s{q+2}, s{q+3}\ns_lshl_b32 s{q+3}, s{S_CT}, 13\ns_add_u32 s{q+2}, s{q+2}, s{q+3}\ns_lshl_b32 s{q+3}, s{q+1}, {11 if typ==T_SK else 12}")
        fl=F_KV
    elif typ==T_UP:
        base=WS_H
        A(f"s_lshl_b32 s{q+2}, s{S_MB}, 1\ns_add_u32 s{q+2}, s{q+2}, s{q}\ns_mul_i32 s{q+2}, s{q+2}, {8*112*1024}\ns_lshl_b32 s{q+3}, s{S_CT}, 12\ns_add_u32 s{q+2}, s{q+2}, s{q+3}\ns_lshl_b32 s{q+3}, s{q+1}, 11")
        fl=F_H
        A(f"s_mul_i32 s{q+4}, s{S_CT}, 37\ns_lshr_b32 s{q+4}, s{q+4}, 8\ns_lshl_b32 s{q+4}, s{q+4}, 3\ns_add_u32 s{S_MB}, s{S_MB}, s{q+4}")
    else:
        base=WS_BF
        A(f"s_lshl_b32 s{q+2}, s{S_MB}, 19\ns_lshl_b32 s{q+3}, s{q}, 18\ns_add_u32 s{q+2}, s{q+2}, s{q+3}\ns_lshl_b32 s{q+3}, s{S_CT}, 14\ns_add_u32 s{q+2}, s{q+2}, s{q+3}\ns_lshl_b32 s{q+3}, s{q+4}, 22\ns_add_u32 s{q+2}, s{q+2}, s{q+3}\ns_lshl_b32 s{q+3}, s{q+1}, 13")
        fl=F_BF
    A(f"s_add_u32 s{q+2}, s{q+2}, s{q+3}\ns_add_u32 s{S_EO}, s{q+2}, {base}")
    A(f"s_lshl_b32 s{q+2}, s{S_MB}, 7\ns_add_u32 s{q+2}, s{q+2}, {WS_FL+fl*128}\ns_cmp_eq_u32 s{w}, 0\ns_cselect_b32 s{S_EF}, s{q+2}, 0")
    A({T_SK:"s_branch G_l_ss",T_SV:"s_branch G_l_sn"}.get(typ,"s_branch G_epi"))
def ts(A,slot):
    pass
def gemm_role(A,sched,after,stamp):
    A.label('G_start')
    A(f"s_mov_b32 s{S_EF}, 0\ns_mov_b32 s{S_EO}, 0\ns_mov_b32 s{S_PREV}, 0\ns_mov_b32 s{S_PEF}, 0\ns_mov_b32 s{S_PEO}, 0\ns_lshl_b32 s{S_RND}, s{S_Y}, 4\ns_lshl_b32 s{S_M0}, s{S_W}, 10\nv_mov_b32 v{V_ONE}, 1")
    A("s_branch G_disp")
    A.label('G_next')
    A(f"s_mov_b32 s{S_PREV}, s{S_CUR}\ns_mov_b32 s{S_PEO}, s{S_EO}\ns_mov_b32 s{S_PEF}, s{S_EF}")
    A.label('G_next2')
    stamp(A)
    A(f"s_add_u32 s{S_RND}, s{S_RND}, 1")
    A.label('G_disp')
    i=S_RANK
    for y,tasks in enumerate(sched):
        for r,tk in enumerate(tasks):
            L=A.newlabel('d')
            A(f"s_cmp_lg_u32 s{S_RND}, {y*16+r}\ns_cbranch_scc1 {L}")
            k=tk[0]
            if k=='flush': A(f"s_mov_b32 s{S_CUR}, {T_FLUSH}\ns_branch G_epi")
            elif k=='pf':
                srd(A,S_B0,tk[1],tk[2])
                A(f"s_lshl_b32 s{S_T}, s{i}, 2\ns_add_u32 s{S_T}, s{S_T}, s{S_W}\ns_lshl_b32 s{S_T}, s{S_T}, {6+tk[3]}\nv_lshlrev_b32 v{V_T}, {tk[3]}, v{V_L}")
                for j in range(tk[4]): A(f"buffer_load_dword v{V_T+6}, v{V_T}, {s(S_B0,4)}, s{S_T} offen\ns_add_u32 s{S_T}, s{S_T}, {2*MB}")
                A(f"s_add_u32 s{S_RND}, s{S_RND}, 1")
            elif k=='kv7': A(f"s_mov_b32 s{S_MB}, 7\ns_and_b32 s{S_CT}, s{i}, 15\ns_cmp_lt_u32 s{i}, 16\ns_cbranch_scc1 G_s_bk\ns_branch G_s_bv")
            else:
                mb0,lg,ct0=tk[1:]
                A(f"s_and_b32 s{S_MB}, s{i}, {(1<<lg)-1}\ns_add_u32 s{S_MB}, s{S_MB}, {mb0}\ns_lshr_b32 s{S_CT}, s{i}, {lg}\ns_add_u32 s{S_CT}, s{S_CT}, {ct0}\ns_branch G_s_{k}")
            A.label(L)
    A(f"s_branch {after}")
    for k,typ,isq in(('bk',T_BK,0),('bq',T_BK,1),('bv',T_BV,0),('up',T_UP,0),('sk',T_SK,0),('sv',T_SV,0),('dn',T_DN,0)):
        A.label('G_s_'+k)
        if k=='dn':
            A(f"s_lshr_b32 s{S_T}, s{S_CT}, 2\ns_lshl_b32 s{S_T}, s{S_T}, 3\ns_add_u32 s{S_T}, s{S_T}, s{S_MB}\ns_lshl_b32 s{S_T}, s{S_T}, 7")
            spin_ge(A,S_WS,WS_FL+F_H*128,7,V_T,V_T+1,S_T+1,soff=f"s{S_T}")
        setup(A,typ,isq)
    A.label('G_epi')
    for typ in(T_BK,T_BV,T_UP,T_SK,T_SV,T_DN): A(f"s_cmp_eq_u32 s{S_PREV}, {typ}\ns_cbranch_scc1 G_e_{typ}")
    spin_ge(A,S_DBG,D_INIT*4,1,V_T,V_T+1,S_T+1)
    A("s_waitcnt vmcnt(0)\ns_branch G_ld")
    for typ in(T_BK,T_BV,T_UP,T_SK,T_SV,T_DN):
        A.label(f'G_e_{typ}'); A.fence(); epilogue(A,typ); A("s_branch G_ld")
    A.label('G_ld'); U='us' if OPT.get('ntu','nt') else 'bs'
    for typ,n in((T_BK,'bs'),(T_UP,U),(T_BV,'bn'),(T_DN,U)): A(f"s_cmp_eq_u32 s{S_CUR}, {typ}\ns_cbranch_scc1 G_l_{n}")
    spin_ge(A,S_DBG,D_INIT*4,1,V_T,V_T+1,S_T+1)
    A("s_barrier"); flag_add(A); A(f"s_mov_b32 s{S_PREV}, 0\ns_branch G_next2")
    NTB[0]=''; loop(A,8,True,'G_l_bs'); loop(A,8,False,'G_l_bn')
    if U=='us': NTB[0]='nt'; loop(A,8,True,'G_l_us')
    NTB[0]=OPT.get('nt4',''); loop4(A,True,'G_l_ss'); loop4(A,False,'G_l_sn')
```

```python
from common import *
L_MEM=131072; L_X=139264; L_VM=143360; L_KX=145408; L_VX=153600
IDX=2; MW=3; XW=7; XR=8; L8=9; VMR=10; VMW=11; KXR=12; WV=13; BS=15; BL=16; L4=17; T0=18; T1=19
SEL1=20; SEL2=24; NEG=28; SN1=30; PB1=32; PB2=36; SENT=40; ONES=44; M=48
S_X=32; S_S=33; S_AO=34; S_AI=35; S_AOV=36; S_AIV=37; S_B=38; S_B2=39; S_CL=40; S_CS=41; S_CC=42; S_KX=43; S_VXO=44
S_KM=45; S_VM=46; S_PR=47; S_FI=48; S_FT=49; S_SC=50; S_M0K=51; S_M0V=52; S_BC=53; S_AVC=54; S_HI=55; Q=56; S_CLB=62; S_CSB=63
WS=s(S_WS,4)
def smf(d,A_,B_): return f"v_smfmac_f32_16x16x64_bf16 {v(d,4)}, {v(A_,4)}, {B_}, v{IDX}"
def mf(d,A_,B_,c): return f"v_mfma_f32_16x16x32_bf16 {v(d,4)}, {v(A_,4)}, {v(B_,4)}, {c if isinstance(c,str) else v(c,4)}"
def trimm(ksl,m): return (64*ksl+8*(m>>1)+2*(m&1))*256
DRP=14; S_AP=95; S_TAG=96; L_Z=L_KX+16384
def wv_read(n,buf):
    r=[f"ds_read_b128 {v(buf+4*m,4)}, v{WV} offset:{(n&3)*2048+m*1024}" for m in range(2)]
    if n&3==3: r.append(f"v_xor_b32 v{WV}, {[1,3,1,3][n>>2]*32768}, v{WV}")
    return r
WBUF=[96,104,120]
def fill(A):
    for n in range(2):
        for t in wv_read(n,WBUF[n]): A(t)
    for r in list(range(80,96,2))+list(range(112,120,2)): A(f"v_mov_b64 {v(r,2)}, 0")
def gaps(A,ms,fl):
    for i,m in enumerate(ms):
        A(m)
        for t in (fl[i] if i<len(fl) else []): A(t)
def step_loop(A,name,slow,stamp,o):
    sc=' sc1' if slow else ''
    ph=o.get('ph') and not slow
    def P(k,b=None):
        if ph and o.get('ack'):
            if k in (2,3): return
            if k in (8,10):
                A(f"s_memtime s[{64+2*k}:{65+2*k}]\ns_waitcnt vmcnt(0)"); k={8:2,10:3}[k]
        if ph:
            A(f"s_memtime s[{64+2*k}:{65+2*k}]")
            if b is not None: A(f"s_mov_b32 s{88+b}, s{S_BUD}")
    def slp(k,d):
        n=o.get(k,d)
        if n>=64: A(f"s_sleep {n//64}")
        n%=64
        if n>=4: A(f"s_nop {n//4-1}")
    OUT=[]
    def bud(E):
        L=A.newlabel('bd'); return f"s_sub_u32 s{S_BUD}, s{S_BUD}, 1\ns_cbranch_scc0 {L}\ns_mov_b32 s{S_BUD}, 0\ns_branch {E}\n{L}:"
    cv=lambda d,r:f"v_cvt_pk_bf16_f32 v{d}, v{r}, v{r+1}"
    pa=lambda d,b:f"v_pk_add_f32 {v(d,2)}, {v(d,2)}, {v(b,2)}"
    sw=lambda a_,b_:f"v_permlane32_swap_b32 v{a_}, v{b_}"
    ldC=lambda r:f"buffer_load_dwordx4 {v(r,4)}, v1, {WS}, s{S_CL} offen sc1\nbuffer_load_dwordx4 {v(r+4,4)}, v1, {WS}, s{S_CL} offen offset:1024 sc1"
    chk8=lambda r:[f"v_max3_u32 v{T0}, v{r}, v{r+1}, v{r+2}",f"v_max3_u32 v{T1}, v{r+3}, v{r+4}, v{r+5}",f"v_max3_u32 v{T0}, v{T0}, v{r+6}, v{r+7}",f"v_max_u32 v{T0}, v{T0}, v{T1}",f"v_cmp_eq_u32 vcc, -1, v{T0}"]
    ad=lambda d,x_,y_:f"v_add_f32 v{d}, v{x_}, v{y_}"
    tag=lambda d,r:f"v_bfi_b32 v{d}, 1, s{S_TAG}, v{r}"
    bo=lambda d,x_,y_,z_,t:f"v_bitop3_b32 v{d}, {x_}, {y_}, {z_} bitop3:{hex(t)}"
    TG=f"s{S_TAG}"; N1=["s_nop 1"]
    drop=o.get('drop',1); c2=o.get('c2',0); a2=o.get('a2',1); b2=o.get('b2',1)
    def nops(n): return "".join(f"s_nop {min(n-k,64)//4-1}\n" for k in range(0,n-3,64))
    def piped(F,E,sets,ld,ck,d,pre,done):
        k=len(sets); L=A.newlabel('pl'); Y=[A.newlabel('py') for r in sets]; G=A.newlabel('pg')
        x=f"{F}:\ns_mov_b64 exec, vcc\n{ld(sets[0])}\n"
        if pre: x+=f"s_mov_b64 exec, -1\n{pre}\ns_mov_b64 exec, vcc\n"
        x+="".join(nops(d)+ld(r)+"\n" for r in sets[1:])+f"{L}:\n"
        for j,r in enumerate(sets):
            x+=f"s_waitcnt vmcnt({2*k-2})\n"+"\n".join(ck(r))+f"\ns_cbranch_vccz {Y[j]}\n"+("s_mov_b64 exec, vcc\n" if j==0 else "")+ld(r)+"\n"
        x+=f"s_sub_u32 s{S_BUD}, s{S_BUD}, 1\ns_cbranch_scc0 {L}\ns_mov_b32 s{S_BUD}, 0\ns_mov_b64 exec, -1\ns_branch {E}\n"
        for j,r in enumerate(sets):
            x+=f"{Y[j]}:\n"+("".join(f"v_mov_b64 {v(sets[0]+q,2)}, {v(r+q,2)}\n" for q in range(0,8,2)) if j else "")+f"s_mov_b64 exec, -1\n{done}\n"
        return x
    A.label(name+'_top')
    A(f"s_bfe_u32 s{S_TAG}, s{S_S}, 0x10001")
    slp('dc',320); A(ldC(M))
    if c2: slp('dc2',64); A(ldC(120))
    A.label(name+'_cw')
    A(f"s_waitcnt vmcnt({2*c2})")
    A.label(name)
    A(f"ds_write_b128 v{MW}, {v(M,4)}\nds_write_b128 v{MW}, {v(M+4,4)} offset:1024")
    qk=lambda i:[smf(80,M+4*i,a((i*2)*8,8)),smf(84,M+4*i,a(128+(i*2)*8,8)),smf(88,M+4*i,a((i*2+1)*8,8)),smf(92,M+4*i,a(128+(i*2+1)*8,8))]
    c8=chk8(M)
    gaps(A,qk(0)[:2],[c8[:2],c8[2:]])
    Fc=A.newlabel('fc'); Ec=A.newlabel('ec'); Yc=A.newlabel('yc')
    A(f"s_cbranch_vccnz {Fc}"); A.label(Ec)
    t=f"{Fc}:\n{bud(Ec)}\ns_waitcnt lgkmcnt(0)\n{ldC(M)}\ns_nop 3\n"+"\n".join(f"v_mov_b64 {v(r,2)}, 0" for r in range(80,88,2))
    if c2: t+="\ns_waitcnt vmcnt(2)\n"+"\n".join(chk8(120))+f"\ns_cbranch_vccz {Yc}\n{ldC(120)}\ns_branch {name}_cw\n{Yc}:\n"+"\n".join(f"v_mov_b64 {v(M+r,2)}, {v(120+r,2)}" for r in range(0,8,2))+f"\ns_branch {name}"
    else: t=f"{Fc}:\ns_mov_b64 exec, vcc\n{ldC(M)}\ns_mov_b64 exec, -1\n{bud(Ec)}\n"+"\n".join(f"v_mov_b64 {v(r,2)}, 0" for r in range(80,88,2))+"\ns_waitcnt vmcnt(0)\n"+"\n".join(c8)+f"\ns_cbranch_vccz {name}\ns_branch {Fc}"
    if o.get('pc',1)>1: t=piped(Fc,Ec,[M,120,PB2][:o['pc']],ldC,chk8,o.get('pcd',128),"s_nop 3\n"+"\n".join(f"v_mov_b64 {v(r,2)}, 0" for r in range(80,88,2)),f"s_branch {name}")
    OUT.append(t)
    P(0,0)
    A(qk(0)[2])
    A("s_waitcnt lgkmcnt(0)\ns_barrier")
    rd=[f"ds_read_b128 {v(M+4*i,4)}, v{MW+(i>>1)} offset:{(i&1)*1024}" for i in range(2,8)]
    A(rd[0]); A(rd[1])
    ex1=lambda m_,t:[f"s_mov_b64 exec, {m_}",t,"s_mov_b64 exec, -1"]
    gaps(A,[qk(0)[3]]+qk(1),[rd[2:4],rd[4:6]+[f"s_mov_b32 m0, s{S_M0V}"],[f"buffer_load_dwordx4 v1, {WS}, s{S_VXO} offen sc1 lds"],[f"buffer_load_dwordx4 v1, {WS}, s{S_VXO} offen offset:1024 sc1 lds"],[f"v_mov_b32 v{T1}, s{S_S}","s_waitcnt lgkmcnt(5)"]])
    gaps(A,qk(2)+qk(3),[ex1('0xfff',f"buffer_store_dword v{SN1}, v{DRP}, {WS}, s{S_AP} offen offset:4 sc1") if drop else [],ex1('0xffff',f"buffer_store_dword v{SN1}, v{L4}, {WS}, s{S_CC} offen{sc}"),
        ex1(1,f"buffer_load_dword v{T0}, off, {WS}, s{S_FI} sc1"),["s_waitcnt lgkmcnt(4)"],ex1(1,f"buffer_store_dword v{T1}, off, {WS}, s{S_PR} sc1"),[],[],[f"s_waitcnt lgkmcnt(0) vmcnt({5+drop})"]])
    vs=lambda n,buf:smf(112+4*(n&1),M+4*(n>>1),v(buf,8))
    w2=wv_read(2,WBUF[2]); D=PB2
    gaps(A,[qk(i)[j] for j in range(4) for i in range(4,8)]+[vs(0,WBUF[0]),vs(1,WBUF[1])],
         [w2[:1],w2[1:],[],[], N1,N1,N1,[ad(80,80,82)], [ad(81,81,83),"s_nop 0"],N1,[ad(82,84,86)],[ad(83,85,87)], [cv(D,80),"s_nop 0"],[cv(D+2,82),tag(D,D)],[ad(88,88,90)],[ad(89,89,91)], [cv(D+1,88),"s_nop 0"],[]])
    for t in (ad(90,92,94),ad(91,93,95),cv(D+3,90)): A(t)
    A(f"buffer_store_dwordx4 {v(D,4)}, v1, {WS}, s{S_AO} offen sc1")
    P(1)
    buf={2:WBUF[2]}; free=[WBUF[0],WBUF[1]]; nxt=3
    ldA=lambda r:f"buffer_load_dwordx4 {v(r,4)}, v1, {WS}, s{S_AI} offen sc1"
    for n in range(2,16):
        while free and nxt<16:
            b=free.pop(0); buf[nxt]=b
            for t in wv_read(nxt,b): A(t)
            nxt+=1
        A(f"s_waitcnt lgkmcnt({2*(nxt-1-n)})")
        A(vs(n,buf[n])); free.append(buf[n])
        if n&3==3 and n<8: free.append(M+8*(n>>2))
        if n==o.get('pa',15): A(ldA(SENT))
    for i in range(8): A(f"ds_read_b128 {v(M+4*i,4)}, v{KXR} offset:{i*1024}")
    if o.get('pa',15)==16: A(ldA(SENT))
    for t in (ad(112,112,114),ad(113,113,115),ad(116,116,118),ad(117,117,119),cv(D,112),cv(D+1,116),tag(120,D),f"v_mov_b32 v121, v{D+1}",f"ds_write_b64 v{VMW}, {v(D,2)}",sw(120,122),sw(121,123)): A(t)
    A(f"s_cmp_eq_u32 s{S_S}, 63\ns_cbranch_scc1 R_done\ns_mov_b32 m0, s{S_M0K}")
    if o.get('pa',15)==17: slp('da1',0); A(ldA(SENT))
    aov=f"s_mov_b32 exec_hi, 0\nbuffer_store_dwordx4 {v(120,4)}, v1, {WS}, s{S_AOV} offen sc1\ns_mov_b64 exec, -1"
    av=o.get('av',1)
    if av==0:
        if drop: A("s_waitcnt vmcnt(2)")
        A(aov)
    slp('da',128); A(ldA(124))
    P(2)
    if av==1:
        if drop: A("s_waitcnt vmcnt(3)")
        A(aov)
    A(f"s_waitcnt vmcnt({1 if av==2 else 2})")
    P(3)
    Fa=A.newlabel('fa'); Ea=A.newlabel('ea'); Sa=A.newlabel('sa')
    unp=lambda r:f"{bo(T1,v(r),TG,1,0x28)}\nv_cmp_ne_u32 vcc, 0, v{T1}\n"+"\n".join(f"v_lshlrev_b32 v{112+2*i}, 16, v{r+j}\nv_and_b32 v{113+2*i}, s{S_HI}, v{r+j}" for i,j in enumerate((0,2,1,3)))
    A(unp(SENT)); A(f"s_cbranch_vccnz {Fa}"); A.label(Ea)
    OUT.append(f"{Fa}:\n{ldA(SENT)}\ns_waitcnt vmcnt({2 if av==1 else 1})\n{Sa}:\n{bud(Ea)}\n{unp(124)}\ns_cbranch_vccz {Ea}\n{ldA(124)}\ns_waitcnt vmcnt(1)\n{unp(SENT)}\ns_cbranch_vccz {Ea}\n{ldA(SENT)}\ns_waitcnt vmcnt(1)\ns_branch {Sa}")
    P(4,1)
    for t in (pa(80,112),pa(82,114),cv(84,80),cv(85,82),f"ds_write_b64 v{XW}, {v(84,2)}",pa(88,116),pa(90,118),cv(86,88),cv(87,90),f"ds_write_b64 v{XW}, {v(86,2)} offset:512"): A(t)
    if av==2: A(aov)
    kvw=A.newlabel('kvw'); kvr=A.newlabel('kvr')
    A(f"v_readfirstlane_b32 s{Q}, v{T0}\ns_mov_b32 vcc_lo, 0x33333333\ns_mov_b32 vcc_hi, 0x33333333\ns_cmp_lt_u32 s{Q}, s{S_FT}\ns_waitcnt lgkmcnt(0)\ns_barrier")
    P(5)
    for i in range(8): A(f"ds_read_b64_tr_b16 {v(80+2*i,2)}, v{XR} offset:{i*512}")
    A(f"s_cbranch_scc1 {kvw}"); A.label(kvr)
    ldV=[f"buffer_load_dwordx2 {v(98+4*p,2)}, v{L8}, {WS}, s{S_AIV} offen offset:{p*512} sc1" for p in range(4)]
    ldK=[f"buffer_load_dwordx4 v1, {WS}, s{S_KX} offen offset:{p*1024} sc1 lds" for p in range(2)]
    vx=lambda i:f"ds_read_b128 {v(M+4*i,4)}, v{KXR} offset:{L_VX-L_KX+i*1024}"
    vm=lambda p:f"ds_read_b64 {v(96+4*p,2)}, v{VMR} offset:{p*512}"
    m=[]
    for ks in range(4):
        X=80+4*ks
        m+=[f"s_waitcnt lgkmcnt({[6,4,5,6][ks]})\n"+mf(112,M+4*ks,X,'0' if ks==0 else 112),mf(116,M+16+4*ks,X,'0' if ks==0 else 116),mf(120,X,X,NEG-2 if ks==0 else 120)]
    fl=[[],[],[],[vx(0)],[vx(4)],[vx(1)],[vx(5)],[vx(2)],[vx(6)],[vm(0),vm(1)],[vx(3)],[vx(7),vm(2),vm(3)]]
    pv=o.get('pv',0)
    stE=f"buffer_store_dwordx4 {v(D,4)}, v1, {WS}, s{S_VM} offen sc1 {o.get('nte','')}"; kp=o.get('kp',1)
    for k,t in enumerate(ldV+(ldK+[stE] if kp==0 else [])): fl[min(pv+k*o.get('pw',1),11)].append(t)
    gaps(A,m,fl)
    qp=lambda k:f"quad_perm:{k} row_mask:0xf bank_mask:0xf"
    for i in range(4): A(f"v_cndmask_b32_dpp v{112+i}, v{116+i}, v{112+i}, vcc {qp('[0,1,0,1]')}")
    A(f"""v_max3_f32 v116, v112, v122, v123
    s_not_b64 vcc, vcc
    v_max3_f32 v116, v116, v113, v114
    v_max_f32 v116, v116, v115
    {ldK[0] if kp else ''}
    v_max_f32_dpp v116, v116, v116 {qp('[2,3,0,1]')}
    v_mov_b32 v117, v116
    {ldK[1] if kp else ''}
    v_permlane16_swap_b32 v116, v117
    v_max_f32 v116, v116, v117
    v_mov_b32 v117, v116
    {stE if kp else ''}
    s_waitcnt vmcnt({8 if av==2 else 7})
    v_permlane32_swap_b32 v116, v117
    v_max_f32 v116, v116, v117
    v_mul_f32 v127, s{S_SC}, v116""")
    fm=lambda r:f"v_fma_f32 v{r}, v{r}, s{S_SC}, -v127"
    ex=lambda r:f"v_exp_f32 v{r}, v{r}"
    p1=lambda i:f"v_cndmask_b32_dpp v{PB1+i}, v{124+(i&1)}, v{PB1+i}, vcc {qp('[0,1,2,3]' if i<2 else '[2,3,2,3]')}"
    mv=lambda d,r:f"v_mov_b32_dpp v{d}, v{r} {qp('[2,3,0,1]')}"
    for t in (fm(112),fm(113),fm(114),fm(115),ex(112),ex(113),ex(114),ex(115),cv(124,112),cv(125,114),fm(122),p1(0),p1(2),p1(1),p1(3),fm(123),"s_waitcnt lgkmcnt(0)"): A(t)
    zl=lambda T:f"ds_read_b128 {v(M+4*T,4)}, v{KXR} offset:{L_Z-L_KX}"
    gaps(A,[mf(80,M,PB1,'0'),mf(84,M+8,PB1,'0'),mf(116,ONES,PB1,'0'),mf(80,M+4,PB2,80),mf(84,M+12,PB2,84),mf(116,ONES,PB2,116),mf(88,M+16,PB1,'0')],
         [[mv(PB2,PB1),mv(PB2+2,PB1+2)],[mv(PB2+1,PB1+1),mv(PB2+3,PB1+3),zl(0)],[ex(122),zl(2)],[ex(123)],[cv(120,122),zl(1)],[mv(121,120),f"v_mov_b64 {v(122,2)}, {v(120,2)}"],[zl(3)]])
    P(6)
    LV=A.newlabel('pv'); Fv=A.newlabel('fv'); Ev=A.newlabel('ev')
    A(f"v_mfma_f32_16x16x16_bf16 {v(116,4)}, {v(ONES,2)}, {v(120,2)}, {v(116,4)}\n{zl(4)}\ns_waitcnt vmcnt(3)")
    ckv=[bo(124,'v98','v102',TG,0x7e),bo(125,'v106','v110',TG,0x7e),bo(124,'v124','v125',1,0xa8),"v_cmp_ne_u32 vcc, 0, v124"]
    A(ckv[0]); A(ckv[1]); A(mf(92,M+24,PB1,'0')); A(ckv[2]); A(ckv[3]); A(zl(6))
    A(f"s_cbranch_vccnz {Fv}"); A.label(Ev)
    OUT.append(f"{Fv}:\n{bud(Ev)}\n"+"\n".join(ldV)+"\ns_waitcnt vmcnt(0)\n"+"\n".join(ckv)+f"\ns_cbranch_vccz {Ev}\ns_branch {Fv}")
    P(7,2)
    mu=lambda r:f"v_mul_f32 v{r}, v126, v{r}"
    g2=lambda T,u:smf(M+4*T,112 if u==0 else 120,v(128+(T*2+u)*8,8))
    fo=lambda T:[ad(M+4*T,M+4*T,M+4*T+2),ad(M+4*T+1,M+4*T+1,M+4*T+3),cv(96+T,M+4*T)]+([tag(96+T,96+T)] if T&3==0 else [])
    st=lambda r,so:f"buffer_store_dwordx4 {v(r,4)}, v{BS}, {WS}, s{so} offen{sc}"
    gaps(A,[mf(80,96,120,80),mf(84,100,120,84),mf(88,M+20,PB2,88),mf(92,M+28,PB2,92),mf(88,104,120,88),mf(92,108,120,92)],
         [["v_rcp_f32 v126, v116"],N1,N1,[zl(5),mu(80),mu(81),mu(82),mu(83)],[zl(7),mu(84),mu(85),mu(86),mu(87)],[cv(112,80),cv(113,82),cv(114,84),cv(115,86),"s_waitcnt lgkmcnt(2)"]])
    gaps(A,[g2(T,u) for u in range(2) for T in range(8)],
         [[mu(88),mu(89)],[mu(90),mu(91)],[mu(92),mu(93)],[mu(94),mu(95)],[cv(120,88),cv(121,90),"s_waitcnt lgkmcnt(0)"],[cv(122,92)],[cv(123,94)],[],
          N1,N1,N1,fo(0),fo(1),fo(2),fo(3)+[st(96,S_B)],fo(4)+fo(5)+fo(6)+fo(7)])
    A(st(100,S_B2))
    P(8)
    X=M+8; R=M+24
    ldB=lambda so,X=X:f"buffer_load_dwordx4 {v(X,4)}, v{BL}, {WS}, s{so} offen sc1\nbuffer_load_dwordx4 {v(X+4,4)}, v{BL}, {WS}, s{so} offen offset:1024 sc1"
    bp=o.get('bp',3)
    if bp==0: slp('db',0); A(ldB(S_B))
    A(f"""s_add_u32 s{S_S}, s{S_S}, 1
    s_add_u32 s{S_VM}, s{S_VM}, 0x40000
    s_add_u32 s{S_KX}, s{S_KX}, {0 if o.get('xk') else 0x40000}
    s_add_u32 s{S_VXO}, s{S_VXO}, {0 if o.get('xk') else 0x40000}
    s_mov_b32 s{S_AP}, s{S_AI}
    s_xor_b32 s{S_AO}, s{S_AO}, 0x8000
    s_xor_b32 s{S_AI}, s{S_AI}, 0x8000
    s_xor_b32 s{S_AOV}, s{S_AOV}, 0x8000
    s_xor_b32 s{S_AIV}, s{S_AIV}, 0x8000
    s_mov_b32 s{S_BC}, s{S_B}
    s_xor_b32 s{S_B}, s{S_B}, 0x80000
    s_xor_b32 s{S_B2}, s{S_B2}, 0x80000""")
    if bp==1: slp('db',0); A(ldB(S_BC))
    fill(A)
    if bp==2: slp('db',0); A(ldB(S_BC))
    A(f"""s_mov_b32 s{S_CC}, s{S_CS}
    s_and_b32 s{Q}, s{S_S}, 3
    s_lshl_b32 s{Q}, s{Q}, 14
    s_add_u32 s{S_CL}, s{S_CLB}, s{Q}
    s_add_u32 s{S_CS}, s{S_CSB}, s{Q}
    s_add_u32 s{Q}, s{S_S}, 1
    s_min_u32 s{Q}, s{Q}, 63
    s_lshr_b32 s{Q+1}, s{Q}, 3
    s_add_u32 s{Q+1}, s{Q+1}, 1
    s_lshr_b32 s{Q+2}, s{Q}, 2
    s_cmp_lt_u32 s{Q}, 8
    s_cselect_b32 s{Q+1}, s{Q+2}, s{Q+1}
    s_cselect_b32 s{S_FT}, 64, 32
    s_lshl_b32 s{Q+1}, s{Q+1}, 7
    s_add_u32 s{S_FI}, s{Q+1}, {WS_FL+F_KV*128}""")
    if bp==3: slp('db',0); A(ldB(S_BC))
    LB_=A.newlabel('pb'); Fb=A.newlabel('fb'); Eb=A.newlabel('eb')
    A.label(LB_)
    A(f"s_waitcnt vmcnt(0)\n{mf(R,X,SEL1,'0')}\n{bo(T0,v(X),v(X+4),TG,0x7e)}\nv_and_b32 v{T0}, 1, v{T0}\nv_cmp_ne_u32 vcc, 0, v{T0}\n{mf(R,X+4,SEL1,R)}\ns_cbranch_vccnz {Fb}")
    A.label(Eb)
    A(f"{mf(R+4,X,SEL2,'0')}\n{mf(R+4,X+4,SEL2,R+4)}")
    if o.get('pb',1)>1: OUT.append(piped(Fb,Eb,[X,X+8,M][:o['pb']],lambda r:ldB(S_BC,r),lambda r:[bo(T0,v(r),v(r+4),TG,0x7e),f"v_and_b32 v{T0}, 1, v{T0}",f"v_cmp_ne_u32 vcc, 0, v{T0}"],o.get('pbd',128),None,f"{mf(R,X,SEL1,'0')}\n{mf(R,X+4,SEL1,R)}\ns_branch {Eb}"))
    else: OUT.append(f"{Fb}:\ns_mov_b64 exec, vcc\n{ldB(S_BC)}\ns_mov_b64 exec, -1\n{bud(Eb)}\ns_branch {LB_}")
    P(9,3)
    A(f"""{ad(R,R,R+1)}
    {ad(R+2,R+2,R+3)}
    {ad(R,R,R+2)}
    {pa(R+4,R+6)}
    v_add_f32 v{R+4}, v{R+4}, v{R+5}
    {sw(R,R+4)}
    v_add_f32 v{R}, v{R}, v{R+4}
    v_mov_b32 v{R+4}, v{R}
    v_permlane16_swap_b32 v{R}, v{R+4}
    v_add_f32 v{R}, v{R}, v{R+4}
    v_mov_b32 v{R+4}, v{R}
    {sw(R,R+4)}
    s_mov_b64 exec, 0xffff
    v_cvt_pk_bf16_f32 v{T1}, v{R}, v{R+4}
    buffer_store_dword v{T1}, v{L4}, {WS}, s{S_CS} offen{sc}
    s_mov_b64 exec, -1""")
    P(10)
    if ph:
        A("s_waitcnt lgkmcnt(0)")
        for k in range(11): A(f"v_writelane_b32 v{T0}, s{64+2*k}, {k}")
        for k in range(4): A(f"v_writelane_b32 v{T0}, s{88+k}, {11+k}")
        A(f"s_mov_b64 exec, 0xffff\nbuffer_store_dword v{T0}, v{L4}, {WS}, s92 offen\ns_mov_b64 exec, -1\ns_add_u32 s92, s92, 64")
    elif o.get('rs'): stamp(A,T0)
    A(f"s_branch {name}_top")
    for t in OUT: A(t)
    A.label(kvw)
    spin_ge(A,S_WS,0,f"s{S_FT}",T0,T1,Q,soff=f"s{S_FI}")
    A(f"s_branch {kvr}")
def rec_role(A,stamp,o):
    ORD=o.get('ord',[1,0,2,3])
    h=S_RANK; w=S_W; x=S_X; t=112
    A(f"s_cmp_eq_u32 s{S_VX}, {XB}\ns_cselect_b32 s{x}, 1, 0")
    srd(A,S_A,P_WV,8*MB); srd(A,S_OUT,P_WO,8*MB)
    for i in range(4): A(f"v_mov_b32 v{SENT+i}, -1")
    A(f"v_lshlrev_b32 v{L8}, 3, v0\nv_lshlrev_b32 v{L4}, 2, v0")
    DQ=16+t-14; DO=DQ+1
    A(f"""v_lshrrev_b32 v{t}, 4, v0
    v_and_b32 v{t+1}, 1, v{t}
    s_lshl_b32 s{Q}, s{w}, 1
    v_or_b32 v{t+1}, s{Q}, v{t+1}
    v_bfe_u32 v{t+4}, v0, 1, 3
    v_xor_b32 v{t+1}, v{t+1}, v{t+4}
    v_lshlrev_b32 v{t+1}, 5, v{t+1}
    v_and_b32 v{t+4}, 1, v0
    v_lshl_add_u32 v{t+1}, v{t+4}, 4, v{t+1}
    s_lshl_b32 s{Q}, s{w}, 4
    v_add_u32 v{t}, s{Q}, v{t}
    s_lshl_b32 s{Q}, s{x}, 22
    s_lshl_b32 s{Q+1}, s{h}, 8
    s_add_u32 s{Q}, s{Q}, s{Q+1}
    v_lshl_add_u32 v{DQ}, v{t}, 13, v{t+1}
    v_add_u32 v{DQ}, s{Q}, v{DQ}
    s_lshl_b32 s{Q}, s{h}, 18
    s_lshl_b32 s{Q+1}, s{x}, 10
    s_add_u32 s{Q}, s{Q}, s{Q+1}
    v_lshl_add_u32 v{DO}, v{t}, 11, v{t+1}
    v_add_u32 v{DO}, s{Q}, v{DO}
    s_lshl_b32 s{S_M0K}, s{w}, 12""")
    def chunk(n):
        mat,j=ORD[n>>2],n&3
        for aa in range(2):
            for b in range(4):
                rows=64*aa+4*b
                so=(j*256+rows*2048) if mat==2 else (128*j+rows)*8192
                A(f"s_add_u32 m0, s{S_M0K}, {j*32768+aa*16384+b*1024}\ns_mov_b32 s{Q}, {so}\nbuffer_load_dwordx4 v{DO if mat==2 else DQ}, {s([S_B0,S_B1,S_OUT,S_A][mat],4)}, s{Q} offen {'nt' if mat in o.get('ntm',()) else ''} lds")
    W=o.get('win',4)
    for n in range(W): chunk(n)
    A(f"""s_lshl_b32 s{Q}, s{h}, 16
    s_lshl_b32 s{Q+1}, s{x}, 14
    s_add_u32 s{S_AO}, s{Q}, s{Q+1}
    s_xor_b32 s{S_AI}, s{S_AO}, 0x4000
    s_lshl_b32 s{Q}, s{x}, 18
    s_add_u32 s{S_B}, s{Q}, {WS_B}
    s_add_u32 s{S_B2}, s{S_B}, 0x8000
    s_xor_b32 s{S_BC}, s{S_B}, 0x80000
    s_lshl_b32 s{Q}, s{h}, 2
    s_add_u32 s{Q}, s{Q}, s{w}
    s_lshl_b32 s{Q+1}, s{Q}, 11
    v_and_b32 v{t}, 15, v0
    v_lshrrev_b32 v{t+1}, 4, v0
    v_lshlrev_b32 v{BL}, 6, v{t}
    v_lshl_add_u32 v{BL}, v{t+1}, 4, v{BL}
    v_add_u32 v{BL}, s{Q+1}, v{BL}
    s_lshl_b32 s{Q}, s{Q}, 6
    s_lshl_b32 s{Q+1}, s{x}, 13
    s_add_u32 s{Q+1}, s{Q+1}, {WS_C}
    s_add_u32 s{S_CSB}, s{Q+1}, s{Q}
    s_lshl_b32 s{Q}, s{w}, 11
    s_add_u32 s{S_CLB}, s{Q+1}, s{Q}""")
    A(f"s_lshl_b32 s{Q}, s{w}, 10\ns_add_u32 s{Q}, s{Q}, s{S_AI}\ns_lshl_b32 s{Q+1}, s{w}, 9\ns_add_u32 s{Q+1}, s{Q+1}, s{S_AI}\ns_add_u32 s{Q+1}, s{Q+1}, 4096")
    for off in (0,8192,32768,40960):
        A(f"s_add_u32 s{Q+2}, s{Q}, {off}\nbuffer_store_dwordx4 {v(SENT,4)}, v1, {WS}, s{Q+2} offen sc1\ns_add_u32 s{Q+2}, s{Q+1}, {off}\nbuffer_store_dwordx2 {v(SENT,2)}, v{L8}, {WS}, s{Q+2} offen sc1")
    for r in (S_B,S_BC):
        A(f"buffer_store_dwordx4 {v(SENT,4)}, v{BL}, {WS}, s{r} offen sc1\nbuffer_store_dwordx4 {v(SENT,4)}, v{BL}, {WS}, s{r} offen offset:1024 sc1")
    A(f"v_lshlrev_b32 v{t+4}, 2, v{t}\nv_lshl_add_u32 v{t+4}, v{t+1}, 14, v{t+4}\nbuffer_store_dword v{SENT}, v{t+4}, {WS}, s{S_CSB} offen sc1")
    c=t; g=t+1; u=t+4
    A(f"""v_and_b32 v{u}, 2, v{c}
    v_cmp_eq_u32 vcc, 0, v{u}
    v_mov_b32 v{u}, 0x44444444
    v_mov_b32 v{u+1}, 0xeeeeeeee
    v_cndmask_b32 v{IDX}, v{u+1}, v{u}, vcc
    v_mov_b32 v{u}, 0xf149f2ca
    v_cndmask_b32 v{NEG}, v{u}, 0, vcc""".replace(f"v_cndmask_b32 v{NEG}, v{u}, 0, vcc",f"v_cndmask_b32_e64 v{NEG}, v{u}, 0, vcc"))
    A(f"v_mov_b32 v{NEG+1}, v{NEG}\nv_mov_b32 v{SN1}, -1")
    for i in range(4): A(f"v_mov_b32 v{PB1+i}, 0\nv_mov_b32 v{PB2+i}, 0\nv_mov_b32 v{ONES+i}, 0x3f803f80")
    A(f"""v_bfe_u32 v{u}, v{c}, 2, 1
    v_lshlrev_b32 v{u}, 4, v{u}
    v_mov_b32 v{u+1}, 0x3f80
    v_lshlrev_b32 v{u}, v{u}, v{u+1}
    v_and_b32 v{u+1}, 2, v{c}
    v_lshrrev_b32 v{u+2}, 3, v{c}
    v_add_u32 v{u+1}, v{u+1}, v{u+2}
    v_and_b32 v{u+2}, 1, v{c}
    v_lshlrev_b32 v{u+2}, 1, v{u+2}
    v_xor_b32 v{u+2}, v{u+2}, v{g}
    v_lshl_add_u32 v{u+1}, v{u+2}, 2, v{u+1}""")
    for i in range(8): A(f"v_cmp_eq_u32 vcc, {i}, v{u+1}\nv_cndmask_b32 v{SEL1+i}, 0, v{u}, vcc")
    A(f"s_lshl_b32 s{Q}, s{w}, 11\ns_add_u32 s{Q}, s{Q}, {L_MEM}\nv_add_u32 v{MW}, s{Q}, v1")
    for p in range(1,4): A(f"v_xor_b32 v{MW+p}, {p*2048}, v{MW}")
    A(f"""v_lshrrev_b32 v{u}, 2, v{c}
    v_xor_b32 v{u+1}, v{u}, v{g}
    v_lshlrev_b32 v{u+1}, 3, v{u+1}
    v_lshl_add_u32 v{u+1}, v{c}, 5, v{u+1}
    s_lshl_b32 s{Q}, s{w}, 10
    s_add_u32 s{Q}, s{Q}, {L_X}
    v_add_u32 v{XW}, s{Q}, v{u+1}
    v_and_b32 v{u+1}, 3, v0
    v_xor_b32 v{u+2}, v{u+1}, v{g}
    v_lshlrev_b32 v{u+2}, 3, v{u+2}
    v_lshrrev_b32 v{u+3}, 2, v0
    v_lshl_add_u32 v{u+2}, v{u+3}, 5, v{u+2}
    v_add_u32 v{XR}, {L_X}, v{u+2}
    v_add_u32 v{VMR}, {L_VM}, v{L8}
    s_lshl_b32 s{Q}, s{w}, 9
    v_add_u32 v{VMW}, s{Q}, v{VMR}
    v_add_u32 v{KXR}, {L_KX}, v1
    ds_write_b128 v{KXR}, {v(PB1,4)} offset:{L_Z-L_KX}
    v_and_b32 v{L8}, 0x1f0, v1
    v_lshrrev_b32 v{DRP}, 5, v0
    v_lshl_add_u32 v{L8}, v{DRP}, 3, v{L8}
    v_lshlrev_b32 v{DRP}, 7, v0
    s_sub_u32 s{Q}, 3072, s{Q}
    v_add_u32 v{u+2}, s{Q}, v{DRP}
    v_cmp_gt_u32 vcc, 8, v0
    v_cndmask_b32 v{DRP}, v{u+2}, v{DRP}, vcc
    v_lshl_add_u32 v{u+2}, v{u}, 2, v{g}
    v_lshlrev_b32 v{u+2}, 11, v{u+2}
    v_lshl_add_u32 v{u+2}, v{u+1}, 4, v{u+2}
    s_lshl_b32 s{Q}, s{w}, 16
    s_lshl_b32 s{Q+1}, s{h}, 6
    s_add_u32 s{Q}, s{Q}, s{Q+1}
    v_add_u32 v{BS}, s{Q}, v{u+2}""")
    TB=t+8
    A(f"""v_and_b32 v{u+2}, 1, v{g}
    v_lshlrev_b32 v{TB}, 5, v{u+2}
    v_lshrrev_b32 v{u+2}, 1, v{g}
    v_lshl_add_u32 v{TB}, v{u+2}, 2, v{TB}
    v_lshrrev_b32 v{u+2}, 1, v{u}
    v_lshl_add_u32 v{TB}, v{u+2}, 4, v{TB}
    v_and_b32 v{u+2}, 1, v{u}
    v_add_u32 v{TB}, v{TB}, v{u+2}
    v_lshlrev_b32 v{TB}, 8, v{TB}
    v_lshl_add_u32 v{TB}, v{u+1}, 3, v{TB}
    v_bfe_u32 v{u+2}, v0, 2, 3
    v_lshl_add_u32 v{TB}, v{u+2}, 5, v{TB}
    s_mul_i32 s{Q}, s{w}, {32768+8192}
    v_add_u32 v{WV}, s{Q}, v1""")
    A(f"""s_mov_b32 s{S_S}, 0
    s_mov_b32 s{S_SC}, 0x3e0293ee
    s_mov_b32 s{S_HI}, 0xffff0000
    s_lshl_b32 s{Q}, s{h}, 13
    s_lshl_b32 s{Q+1}, s{w}, 11
    s_add_u32 s{Q}, s{Q}, s{Q+1}
    s_add_u32 s{S_KX}, s{Q}, {WS_KX}
    s_add_u32 s{S_VXO}, s{Q}, {WS_VX}
    s_add_u32 s{S_M0V}, s{Q+1}, {L_VX}
    s_lshl_b32 s{Q}, s{h}, 1
    s_add_u32 s{Q}, s{Q}, s{x}
    s_lshl_b32 s{Q+1}, s{Q}, 7
    s_add_u32 s{S_PR}, s{Q+1}, {WS_FL+F_PROG*128}
    s_cmp_eq_u32 s{w}, 0
    s_cselect_b32 s{S_PR}, s{S_PR}, 0x10000000
    s_mov_b32 s{S_TAG}, 0
    s_add_u32 s{S_CC}, s{S_CSB}, 0xc000
    s_mov_b32 s{S_CS}, s{S_CSB}
    s_mov_b32 s{S_CL}, s{S_CLB}
    s_lshl_b32 s{Q}, s{Q}, 12
    s_lshl_b32 s{Q+1}, s{w}, 10
    s_add_u32 s{Q}, s{Q}, s{Q+1}
    s_add_u32 s{S_VM}, s{Q}, {WS_KM}
    s_mov_b32 s{S_FI}, {WS_FL+F_KV*128}
    s_mov_b32 s{S_FT}, 64""")
    for n in range(12):
        mat,j=ORD[n>>2],n&3
        A(f"s_waitcnt vmcnt({8*W+5 if n<W else 8*W-8})\ns_barrier")
        if o.get('cs') and n&1==0: stamp(A,T0)
        if n==4:
            A(f"s_cmp_lg_u32 s{w}, 0\ns_cbranch_scc1 R_na\nv_mov_b32 v{T0}, 1\ns_mov_b64 exec, 1\nbuffer_atomic_add v{T0}, off, {s(S_DBG,4)}, 0 offset:{D_RDY*4}\ns_mov_b64 exec, -1")
            A.label('R_na')
        E=A.newlabel('wl')
        for ww in range(4):
            if mat==2 and ww!=j: continue
            N=A.newlabel('wn')
            A(f"s_cmp_lg_u32 s{w}, {ww}\ns_cbranch_scc1 {N}")
            for T in (range(8) if mat==2 else range(2)):
                A(f"v_xor_b32 v{u}, {j*32768+(T if mat==2 else 2*ww+T)*32}, v{TB}")
                for kl in range(2):
                    for m_ in range(4):
                        d=v(128+(T*2+kl)*8+2*m_,2) if mat==2 else a(mat*128+((((2*j+kl)^(2*ww))*2+T)*8)+2*m_,2)
                        A(f"ds_read_b64_tr_b16 {d}, v{u} offset:{trimm(kl,m_)}")
            A(f"s_branch {E}"); A.label(N)
        A.label(E)
        A("s_waitcnt lgkmcnt(0)\ns_barrier")
        chunk(n+W)
    for n in range(12+W,16): chunk(n)
    srd(A,S_B0,P_MEM,16384)
    A(f"""v_lshrrev_b32 v{u}, 2, v{c}
    v_and_b32 v{u+1}, 1, v{c}
    v_lshl_add_u32 v{u}, v{u}, 1, v{u+1}
    v_lshlrev_b32 v{u}, 11, v{u}
    v_bfe_u32 v{u+1}, v{c}, 1, 1
    v_lshl_add_u32 v{u}, v{u+1}, 5, v{u}
    v_lshl_add_u32 v{u}, v{g}, 3, v{u}
    s_lshl_b32 s{Q}, s{x}, 10
    s_lshl_b32 s{Q+1}, s{w}, 8
    s_add_u32 s{Q}, s{Q}, s{Q+1}""")
    for i in range(4): A(f"buffer_load_dwordx2 {v(M+2*i,2)}, v{u}, {s(S_B0,4)}, s{Q} offen offset:{64*i}")
    dbg=lambda r,off,n='':f"buffer_load_dword{n} {v(r,2 if n else 1)}, off, {s(S_DBG,4)}, 0 offset:{off} sc1"
    A(dbg(100,D_RDY*4)); A(dbg(101,D_INIT*4)); NX=6
    if o.get('wm',0):
        for r in (S_B,S_BC): A(f"buffer_load_dword v102, v{BL}, {WS}, s{r} offen sc1\nbuffer_load_dword v102, v{BL}, {WS}, s{r} offen offset:1024 sc1")
        A(f"v_lshlrev_b32 v103, 2, v{c}\nv_lshl_add_u32 v103, v{g}, 14, v103\nbuffer_load_dword v102, v103, {WS}, s{S_CSB} offen sc1"); NX=11
    A(f"s_lshl_b32 s{Q}, s{w}, 6\nv_xor_b32 v{TB}, s{Q}, v{TB}\ns_lshl_b32 s{Q}, s{w}, 13\nv_add_u32 v{u+1}, s{Q}, v1")
    for j in range(4):
        A(f"s_waitcnt vmcnt({24-8*j+NX if j<3 else 0})\ns_barrier")
        if o.get('cs') and j&1==0: stamp(A,T0)
        if j==3:
            A(f"v_readfirstlane_b32 s{Q}, v100\nv_readfirstlane_b32 s{Q+1}, v101\ns_cmp_ge_u32 s{Q}, 96\ns_cselect_b32 s{Q+1}, s{Q+1}, 0\ns_cmp_ge_u32 s{Q+1}, 1\ns_cbranch_scc1 R_rdy")
            spin_ge(A,S_DBG,D_RDY*4,96,T0,T1,Q)
            spin_ge(A,S_DBG,D_INIT*4,1,T0,T1,Q)
            A.label('R_rdy')
            A(dbg(104,D_P0*4,'x2')); A(dbg(106,XA*16)); A(dbg(107,XB*16)); A(f"buffer_load_dword v108, off, {WS}, s{S_FI} sc1")
        for T in range(2):
            A(f"v_xor_b32 v{u}, {j*32768+T*32}, v{TB}")
            for kl in range(2):
                for m_ in range(4): A(f"ds_read_b64_tr_b16 {v(64+(kl*2+T)*8+2*m_,2)}, v{u} offset:{trimm(kl,m_)}")
        A("s_waitcnt lgkmcnt(0)\ns_barrier")
        for k in range(8): A(f"ds_write_b128 v{u+1}, {v(64+4*k,4)} offset:{k*1024}")
        A(f"v_add_u32 v{u+1}, 0x8000, v{u+1}\ns_waitcnt lgkmcnt(0)")
    stamp(A,T0); u=104
    A(f"s_waitcnt vmcnt(0)\nv_readfirstlane_b32 s{Q}, v108\ns_cmp_ge_u32 s{Q}, 64\ns_cbranch_scc1 R_kv")
    spin_ge(A,S_WS,WS_FL+F_KV*128,64,T0,T1,Q)
    A.label('R_kv')
    stamp(A,T0)
    A(f"s_lshl_b32 s{Q}, s{w}, 11\ns_add_u32 s{S_M0K}, s{Q}, {L_KX}\ns_mov_b32 m0, s{S_M0K}")
    A(f"buffer_load_dwordx4 v1, {WS}, s{S_KX} offen sc1 lds\nbuffer_load_dwordx4 v1, {WS}, s{S_KX} offen offset:1024 sc1 lds\ns_add_u32 s{S_KX}, s{S_KX}, 0x40000")
    A(f"""v_readfirstlane_b32 s{Q}, v{u}
    v_readfirstlane_b32 s{Q+1}, v{u+1}
    v_min_u32 v{u+2}, v{u+2}, v{u+3}
    s_cmp_lt_u32 s{Q+1}, s{Q}
    s_cselect_b32 s{Q}, {8192 if not o.get('badpol') else 0}, {0 if not o.get('badpol') else 8192}
    s_add_u32 s{S_AO}, s{S_AO}, s{Q}
    s_add_u32 s{S_AI}, s{S_AI}, s{Q}
    s_add_u32 s{S_AIV}, s{S_AI}, 4096
    s_lshl_b32 s{Q}, s{w}, 9
    s_add_u32 s{S_AOV}, s{S_AO}, s{Q}
    s_add_u32 s{S_AOV}, s{S_AOV}, 4096
    s_lshl_b32 s{Q}, s{w}, 10
    s_add_u32 s{S_AO}, s{S_AO}, s{Q}
    s_add_u32 s{S_AI}, s{S_AI}, s{Q}
    s_xor_b32 s{S_AP}, s{S_AI}, 0x8000
    v_readfirstlane_b32 s{Q}, v{u+2}""")
    if o.get('xe'): A(f"s_mov_b32 s{S_VM}, 0x10000000")
    if o.get('xp'): A(f"s_mov_b32 s{S_PR}, 0x10000000")
    fill(A)
    A("s_waitcnt vmcnt(0)")
    stamp(A,T0)
    if o.get('ph'): A(f"s_lshl_b32 s92, s{x}, 5\ns_add_u32 s92, s92, s{h}\ns_lshl_b32 s92, s92, 2\ns_add_u32 s92, s92, s{w}\ns_lshl_b32 s92, s92, 12\ns_add_u32 s92, s92, {5*MB}")
    A(f"s_cmp_lt_u32 s{Q}, 32\ns_cbranch_scc1 R_slow\ns_branch R_fast")
    step_loop(A,'R_fast',False,stamp,o)
    step_loop(A,'R_slow',True,stamp,o)
    A.label('R_done')
    A(f"buffer_store_dwordx4 {v(PB2,4)}, v1, {WS}, s{S_VM} offen sc1")
    A(f"s_waitcnt vmcnt(0) lgkmcnt(0)\ns_barrier\ns_cmp_lg_u32 s{w}, 0\ns_cbranch_scc1 L_fin\nv_mov_b32 v{T1}, 64\ns_mov_b64 exec, 1\nbuffer_store_dword v{T1}, off, {WS}, s{S_PR} sc1\ns_mov_b64 exec, -1")
    stamp(A,T0)
def probe(A):
    A(f"s_lshl_b32 s{Q}, s{S_RANK}, 16\ns_add_u32 s{Q}, s{Q}, 7168\ns_add_u32 s{Q+1}, s{Q}, 8192\ns_mov_b64 exec, 1\nv_mov_b32 v4, 0\nv_mov_b32 v5, 0")
    for rep in range(3):
        A(f"buffer_store_dword v4, off, {WS}, s{Q} sc1\nbuffer_store_dword v4, off, {WS}, s{Q+1} sc1\ns_waitcnt vmcnt(0)")
        for p in range(2):
            A(f"s_memtime s[{Q+2}:{Q+3}]\ns_waitcnt lgkmcnt(0)\nbuffer_load_dword v6, off, {WS}, s{Q+p} sc1\ns_waitcnt vmcnt(0)\ns_memtime s[{Q+4}:{Q+5}]\ns_waitcnt lgkmcnt(0)")
            A(f"s_sub_u32 s{Q+2}, s{Q+2}, s{Q+4}\nv_max_u32 v{4+p}, s{Q+2}, v{4+p}")
    A(f"buffer_atomic_umax v4, off, {s(S_DBG,4)}, 0 offset:{D_P0*4}\nbuffer_atomic_umax v5, off, {s(S_DBG,4)}, 0 offset:{D_P1*4}\nv_mov_b32 v6, 1\ns_waitcnt vmcnt(0)\nbuffer_atomic_add v6, off, {s(S_DBG,4)}, 0 offset:{D_RDY*4}\ns_mov_b64 exec, -1")
```

```python
from common import *
WS=s(S_WS,4); OPT={}
S_S=32; S_SC=33; S_HI=34; S_RT=35; S_EH=36; S_SA=37; S_GO=38; S_FO=39; S_OO=40; Q=56
L8=2; OA=3; RW=4; RR=5; GA=6; BA=7; L32=8; T0=10; T1=11; ONE=9
NEG0=12; NEG1=16; NEGM=20; ONES=24; GW=28
ACC=44
def mf(d,A_,B_,c): return f"v_mfma_f32_16x16x32_bf16 {v(d,4)}, {A_ if isinstance(A_,str) else v(A_,4)}, {v(B_,4)}, {c if isinstance(c,str) else v(c,4)}"
cv=lambda d,r:f"v_cvt_pk_bf16_f32 v{d}, v{r}, v{r+1}"
def xred(A,r,t,op):
    A(f"v_mov_b32 v{t}, v{r}\nv_permlane16_swap_b32 v{r}, v{t}\n{op} v{r}, v{r}, v{t}\nv_mov_b32 v{t}, v{r}\nv_permlane32_swap_b32 v{r}, v{t}\n{op} v{r}, v{r}, v{t}")
XW=20; XR=21; FA=22; FT=23; FR=60; LS=61; L_X=147456
QR=64; KX=80; VX=112; VM=176; KP=184; XI=188
S_SP=41; S_FM=42; S_DF=43; S_JA=44; S_JS=45; S_EA=46; S_MD=47; S_OOB=48; S_DP=49; S_SF=50; S_LB=51; S_PO=52; S_OI=53; S_FP=54; S_HS=55
poll=f"s_mov_b64 exec, 0xfff1f\nbuffer_load_dword v{FR}, v{FA}, {WS}, 0 offen sc1\ns_mov_b64 exec, -1"
chk=f"v_cmp_lt_u32 vcc, v{FR}, v{FT}\ns_mov_b32 s{S_FM}, vcc_lo"
def need(A,mask,then=None):
    L=A.newlabel('fw'); E=A.newlabel('fe'); D=A.newlabel('fd')
    A(f"s_and_b32 s{Q+6}, s{S_FM}, {mask}\ns_cbranch_scc0 {E}")
    A.label(L)
    A(f"{poll}\ns_waitcnt vmcnt(0)\n{chk}\ns_and_b32 s{Q+6}, s{S_FM}, {mask}\ns_cbranch_scc0 {D}")
    A(f"s_sleep 1\ns_sub_u32 s{S_BUD}, s{S_BUD}, 1\ns_cbranch_scc0 {L}\ns_mov_b32 s{S_BUD}, 0")
    A.label(D)
    if then: then()
    A.label(E)
def wl(r,k,x): return f"v_writelane_b32 v{r}, {x}, {k}"
ld=lambda d,so,off:f"buffer_load_dwordx4 {v(d,4)}, v1, {WS}, s{so} offen offset:{off}"
def set_a(A): A(f"s_add_u32 s{Q}, s{S_SA}, 1\n{wl(FT,0,f's{Q}')}\n{wl(FT,1,f's{Q}')}\ns_or_b32 s{S_FM}, s{S_FM}, 3")
def set_p(A): A(f"""s_lshr_b32 s{Q}, s{S_SP}, 3
    s_lshl_b32 s{Q+1}, s{Q}, 7
    s_add_u32 s{Q+1}, s{Q+1}, {WS_FL+F_Q*128}
    s_add_u32 s{Q}, s{Q}, 1
    s_lshr_b32 s{Q+2}, s{S_SP}, 2
    s_cmp_lt_u32 s{S_SP}, 8
    s_cselect_b32 s{Q}, s{Q+2}, s{Q}
    s_cselect_b32 s{Q+2}, 64, 32
    s_lshl_b32 s{Q}, s{Q}, 7
    s_add_u32 s{Q}, s{Q}, {WS_FL+F_KV*128}
    {wl(FA,2,f's{Q+1}')}
    {wl(FA,3,f's{Q}')}
    {wl(FT,3,f's{Q+2}')}
    s_or_b32 s{S_FM}, s{S_FM}, 12""")
MO=0xff00; MF=0xf0010
def set_s(A): A(f"s_mov_b64 exec, {MO}\nv_add_u32 v{FT}, 1, v{FT}\ns_mov_b64 exec, -1\ns_or_b32 s{S_FM}, s{S_FM}, {MO}")
def set_f(A): A(f"""s_lshr_b32 s{Q+6}, s{S_SF}, 3
    s_lshl_b32 s{Q+6}, s{Q+6}, 7
    s_add_u32 s{Q+6}, s{Q+6}, {WS_FL+F_BF*128}
    {wl(FA,4,f's{Q+6}')}
    {wl(FT,4,16)}
    s_mov_b64 exec, 0xf0000
    v_add_u32 v{FT}, 1, v{FT}
    s_mov_b64 exec, -1
    s_or_b32 s{S_FM}, s{S_FM}, {MF}""")
def sig(r):
    return f"s_barrier\ns_mov_b64 exec, 1\nv_mov_b32 v{ONE}, s{S_JA if r==S_DF else S_JS}\nbuffer_store_dword v{ONE}, off, {WS}, s{r} sc1\ns_mov_b64 exec, -1\ns_mov_b32 s{r}, s{S_OOB}"
def pre(A):
    i=S_RANK
    need(A,12)
    A(f"s_lshl_b32 s{Q}, s{S_SP}, 5\ns_add_u32 s{Q}, s{Q}, s{i}\ns_lshl_b32 s{Q+1}, s{Q}, 13\ns_lshl_b32 s{Q+2}, s{S_RT}, 12\ns_add_u32 s{Q+2}, s{Q+2}, s{Q+1}\ns_add_u32 s{Q+2}, s{Q+2}, {WS_QX}")
    for k in range(4): A(ld(QR+4*k,Q+2,k*1024))
    A(f"s_add_u32 s{Q+2}, s{Q+1}, {WS_KX}\ns_add_u32 s{Q+3}, s{Q+2}, 4096")
    for k in range(4): A(ld(KX+4*k,Q+2,k*1024)); A(ld(KX+16+4*k,Q+3,k*1024))
    A(f"s_lshl_b32 s{Q+2}, s{S_EH}, 12\ns_add_u32 s{Q+2}, s{Q+2}, s{Q+1}\ns_add_u32 s{Q+2}, s{Q+2}, {WS_VX}")
    for k in range(4): A(ld(VX+4*k,Q+2,k*1024))
    A(f"s_lshl_b32 s{Q}, s{Q}, 11\nbuffer_load_dwordx4 {v(XI,4)}, v{L32}, {s(S_A,4)}, s{Q} offen\nbuffer_load_dwordx4 {v(XI+4,4)}, v{L32}, {s(S_A,4)}, s{Q} offen offset:16")
    A(f"s_add_u32 s{Q}, s{S_JA}, 1\nv_readlane_b32 s{S_SP}, v{LS}, s{Q}")
    set_p(A)
def ldx(A,spec):
    q=Q+4
    A(f"s_lshl_b32 s{q}, s{S_SA}, 5\ns_add_u32 s{q}, s{q}, s{S_RANK}")
    A(f"s_lshl_b32 s{q}, s{q}, 13\ns_add_u32 s{q}, s{q}, {WS_KM}")
    if spec: A(f"s_and_b32 s{q+1}, s{S_FM}, 3\ns_cselect_b32 s{q}, s{S_OOB}, s{q}")
    A(f"s_lshl_b32 s{q+1}, s{S_W}, 10\ns_add_u32 s{q+1}, s{q+1}, s{q}\ns_add_u32 s{q+2}, s{q+1}, 4096")
    for x in range(2): A(f"buffer_load_dwordx2 {v(KP+2*x,2)}, v1, {WS}, s{q+1+x} offen offset:8")
    A(f"s_lshl_b32 s{q+1}, s{S_EH}, 11\ns_add_u32 s{q+1}, s{q+1}, s{q}\ns_add_u32 s{q+2}, s{q+1}, 4096")
    for p in range(2):
        for x in range(2): A(f"buffer_load_dwordx2 {v(VM+4*p+2*x,2)}, v1, {WS}, s{q+1+x} offen offset:{p*1024}")
def att(A):
    i=S_RANK; w=S_W
    KM=128; S0=144; S1=148; SM=152; P=156; BH=160; BL=164; Lr=168; R=172; O=196; XU=212
    G=R+2
    for k in range(8):
        A(mf(S1 if k&1 else S0,KX+16*(k&1)+4*(k>>1),QR+4*(k>>1),(NEG1 if k&1 else NEG0) if k<2 else (S1 if k&1 else S0)))
        A(f"v_lshlrev_b32 v{XU+2*k}, 16, v{XI+k}\nv_and_b32 v{XU+2*k+1}, s{S_HI}, v{XI+k}")
    A(f"v_mul_f32 v{G}, v{XU}, v{GW}\nv_mul_f32 v{G+1}, v{XU+1}, v{GW+1}")
    for k in range(2,16): A(f"v_fmac_f32 v{G+(k&1)}, v{XU+k}, v{GW+k}")
    A(f"v_add_f32 v{G}, v{G}, v{G+1}")
    A(f"v_max3_f32 v{R}, v{S0}, v{S0+1}, v{S0+2}\nv_max3_f32 v{R+1}, v{S0+3}, v{S1}, v{S1+1}\nv_max3_f32 v{R}, v{R}, v{S1+2}, v{S1+3}\nv_max_f32 v{R}, v{R}, v{R+1}\nv_mov_b32 v{BL}, 0\nv_mov_b32 v{BH+1}, 0")
    A(f"s_or_b32 s{S_FM}, s{S_FM}, s{S_EA}")
    need(A,3,lambda:(ldx(A,False),A("s_waitcnt vmcnt(0)")))
    A(f"ds_write2_b32 v{XW}, v{KP}, v{KP+2} offset0:0 offset1:1\nds_write2_b32 v{XW}, v{KP+1}, v{KP+3} offset0:128 offset1:129\ns_waitcnt vmcnt(16) lgkmcnt(0)\ns_barrier")
    for k in range(8): A(f"ds_read_b64_tr_b16 {v(KM+2*k,2)}, v{XR} offset:{k*512}")
    A(sig(S_DP)[10:])
    for k,sh in enumerate((8,4,2,1)):
        A(f"v_add_f32_dpp v{G}, v{G}, v{G} row_ror:{sh} row_mask:0xf bank_mask:0xf")
        A(f"s_waitcnt lgkmcnt({6-2*k})"); A(mf(SM,KM+4*k,QR+4*k,'0' if k==0 else SM))
    xred(A,G,G+1,'v_add_f32')
    A(f"v_add_f32 v{SM}, v{SM}, v{SM+2}\nv_add_f32 v{SM+1}, v{SM+1}, v{SM+3}\nv_max3_f32 v{R}, v{R}, v{SM}, v{SM+1}")
    xred(A,R,R+1,'v_max_f32')
    A(f"v_mul_f32 v{R}, s{S_SC}, v{R}")
    for r in range(S0,S0+10): A(f"v_fma_f32 v{r}, v{r}, s{S_SC}, -v{R}")
    for r in range(S0,S0+10): A(f"v_exp_f32 v{r}, v{r}")
    for j in range(5): A(cv(P+j,S0+2*j))
    A(f"v_mov_b32 v{BL+1}, v{BH}")
    A(mf(Lr,ONES,P,'0'))
    A(f"v_mov_b64 {v(BH+2,2)}, {v(BH,2)}\nv_mov_b64 {v(BL+2,2)}, {v(BL,2)}")
    gt=[f"v_mul_f32 v{G}, 0xbfb8aa3b, v{G}",f"v_exp_f32 v{G}, v{G}",f"v_mfma_f32_16x16x16_bf16 {v(Lr,4)}, {v(ONES,2)}, {v(BH,2)}, {v(Lr,4)}\nv_add_f32 v{G}, 1.0, v{G}",f"v_rcp_f32 v{G}, v{G}"]
    for j in range(4):
        A(mf(O+4*j,VX+4*j,P,'0'))
        if j<2: A(gt[2*j])
        A(mf(O+4*j,VM+4*(j>>1),BL if j&1 else BH,O+4*j))
        if j<2: A(gt[2*j+1])
    A(f"""s_lshl_b32 s{Q}, s{S_SA}, 5
    s_add_u32 s{Q}, s{Q}, s{i}
    s_lshl_b32 s{Q}, s{Q}, 2
    s_add_u32 s{Q}, s{Q}, s{S_GO}
    v_rcp_f32 v{R}, v{Lr}
    s_lshl_b32 s{Q+2}, s{S_SA}, 18
    s_add_u32 s{Q+2}, s{Q+2}, s{S_OO}
    s_mov_b32 s{S_DF}, s{S_FO}""")
    for jj in range(2):
        for r in range(O+8*jj,O+8*jj+8): A(f"v_mul_f32 v{r}, v{R}, v{r}")
        for j in range(4): A(cv(S0+4*jj+j,O+8*jj+2*j))
        A(f"buffer_store_dwordx4 {v(S0+4*jj,4)}, v1, {WS}, s{Q+2} offen offset:{jj*1024} sc1")
    A(f"s_mov_b64 exec, 1\nbuffer_store_dword v{G}, off, {WS}, s{Q} sc1\ns_mov_b64 exec, -1")
    A(f"s_add_u32 s{S_JA}, s{S_JA}, 1\ns_mov_b32 s{S_SA}, s{S_SP}\ns_mov_b32 s{S_EA}, 3")
    set_a(A)
AO=lambda:OPT.get('al',2)&1
AP=lambda:OPT.get('al',2)&2
FB=228; Gv=244; RING=128
def dma(A):
    need(A,MO)
    A(f"s_xor_b32 s{S_LB}, s{S_LB}, 0x10000\nv_xor_b32 v{RR}, 0x10000, v{RR}\ns_lshl_b32 s{Q}, s{S_S}, 18\ns_add_u32 s{Q}, s{Q}, s{S_OI}")
    for c in range(4):
        A(f"s_add_u32 m0, s{S_LB}, {c*16384}\ns_add_u32 s{Q+1}, s{Q}, {(c>>1)*4096+(c&1)*32768 if AO() else (c>>1)*131072+(c&1)*16384}")
        for k in range(4): A(f"buffer_load_dwordx4 v1, {WS}, s{Q+1} offen offset:{k*1024} sc1 lds")
def fld(A):
    need(A,MF)
    A(f"s_lshl_b32 s{Q+2}, s{S_SF}, 16\ns_lshl_b32 s{Q+3}, s{S_SF}, 7")
    A(f"s_lshl_b32 s{Q}, s{S_SF}, 18\ns_min_u32 s{Q}, s{Q}, s{S_OOB}")
    for k in range(8):
        if k>3 and AP(): A(f"s_add_u32 s{Q+1}, s{Q}, {WS_KX+(k-4)*65536}\nbuffer_load_dwordx2 {v(FB+2*k,2)}, v{BA}, {WS}, s{Q+1} offen sc1")
        else: A(f"s_add_u32 s{Q+1}, s{Q+2}, {WS_BF+k*4*MB}\nbuffer_load_dwordx2 {v(FB+2*k,2)}, v{BA}, {WS}, s{Q+1} offen")
    A(f"buffer_load_dword v{Gv}, v{GA}, {WS}, s{Q+3} offen sc1")
def fin(A):
    t=RING
    for k in range(16): A(f"v_lshlrev_b32 v{t+2*k}, 16, v{FB+k}\nv_and_b32 v{t+2*k+1}, s{S_HI}, v{FB+k}")
    for u in (t,t+16):
        for k in range(4): A(f"v_add_f32 v{u+k}, v{u+k}, v{u+4+k}\nv_add_f32 v{u+8+k}, v{u+8+k}, v{u+12+k}")
        for k in range(4): A(f"v_add_f32 v{u+k}, v{u+k}, v{u+8+k}")
    for k in range(4): A(f"v_sub_f32 v{t+16+k}, v{t+16+k}, v{t+k}")
    for k in range(4): A(f"v_fma_f32 v{t+k}, v{t+16+k}, v{Gv}, v{t+k}")
    A(cv(t,t)); A(cv(t+1,t+2))
    A(f"buffer_store_dwordx2 {v(t,2)}, v{OA}, {s(S_OUT,4)}, s{Q+2} offen {OPT.get('nto','')}")
def gstage(A,last):
    D=6; PK=160
    rd=lambda n:A(f"ds_read_b128 {v(RING+4*(n&7),4)}, v{RR} offset:{n*1024}")
    def put(rt):
        for j in range(4): A(cv(PK+4*rt+j,ACC+8*rt+2*j))
        A(f"buffer_store_dwordx4 {v(PK+4*rt,4)}, v1, {WS}, s{Q+7} offen offset:{rt*1024} sc1")
    A(f"s_lshl_b32 s{Q+7}, s{S_S}, {18 if AP() else 16}\ns_add_u32 s{Q+7}, s{Q+7}, s{S_PO}\ns_mov_b32 s{S_DP}, s{S_FP}\ns_mov_b32 s{S_HS}, s{S_S}\ns_add_u32 s{S_JS}, s{S_JS}, 1")
    if not last: A(f"v_readlane_b32 s{S_S}, v{LS}, s{S_JS}"); set_s(A)
    A(f"s_waitcnt vmcnt({12 if last else 22})\ns_barrier")
    nr=0
    for n in range(64):
        rt,k=n>>5,n&31
        while nr<min(64,n+D):
            if last and nr and nr%16==0: A(f"s_waitcnt vmcnt({12-nr//4})\ns_barrier")
            rd(nr); nr+=1
        A(f"s_waitcnt lgkmcnt({nr-1-n})")
        for nt in range(2): A(mf(ACC+8*rt+4*nt,a((k*2+nt)*4,4),RING+4*(n&7),'0' if k==0 else ACC+8*rt+4*nt))
        if last:
            if n==44: put(0)
        else:
            if n==10: A("s_waitcnt vmcnt(18)"); A(sig(S_DF)); A(poll)
            if n==34: A("s_waitcnt vmcnt(0)"); A(chk); fld(A); ldx(A,True); A(f"s_and_b32 s{S_EA}, s{S_FM}, 3")
            if n==52: A(poll)
    if not last: put(0)
    put(1)
    if not last: A("s_waitcnt vmcnt(2)"); A(chk); fin(A)
    A(f"s_mov_b32 s{S_SF}, s{S_HS}"); set_f(A)
def tail_role(A,stamp,o):
    i=S_RANK; w=S_W; c=64; g=65; u=66; OPT.update(o)
    segs=[[] for y in range(6)]; fr=list(o.get('tf',[110,112,999,134,123,124]))
    for sg in range(64):
        y=min(range(6),key=lambda y:(fr[y],y)); segs[y].append(sg); fr[y]=max(fr[y],o.get('t0',22)+o.get('t1',2.42)*(sg+1))+o.get('tc',4.0)
    if o.get('v'): print(segs)
    assert sorted(sum(segs,[]))==list(range(64)) and all(len(L)!=1 for L in segs)
    A(f"v_mov_b32 v{LS}, 64")
    for y,L in enumerate(segs):
        N=A.newlabel('sl')
        A(f"s_cmp_lg_u32 s{S_Y}, {y}\ns_cbranch_scc1 {N}")
        if not L: A("s_branch L_fin")
        for j,sg in enumerate(L): A(wl(LS,j,sg))
        A.label(N)
    srd(A,S_B0,P_WO,8*MB); srd(A,S_B1,P_GW,2048); srd(A,S_A,P_X,4*MB)
    A(f"""v_lshrrev_b32 v{u}, 2, v0
    v_lshlrev_b32 v{u}, 11, v{u}
    v_and_b32 v{u+1}, 3, v0
    v_lshl_add_u32 v{u}, v{u+1}, 4, v{u}
    s_lshr_b32 s{Q+3}, s{i}, 3
    s_lshl_b32 s{Q}, s{Q+3}, 21
    s_and_b32 s{Q+4}, s{i}, 7
    s_lshl_b32 s{Q+4}, s{Q+4}, 2
    s_add_u32 s{Q+4}, s{Q+4}, s{w}
    s_lshl_b32 s{Q+1}, s{Q+4}, 6
    s_add_u32 s{Q}, s{Q}, s{Q+1}
    s_lshl_b32 s{Q+1}, s{i}, 6
    s_lshl_b32 s{S_PO}, s{Q+3}, {16 if AP() else 22}
    s_lshl_b32 s{Q+4}, s{Q+4}, 11
    s_add_u32 s{S_PO}, s{S_PO}, s{Q+4}
    s_add_u32 s{S_PO}, s{S_PO}, {WS_KX if AP() else WS_AP}
    s_lshl_b32 s{S_LB}, s{w}, 12
    s_lshl_b32 s{S_OI}, s{Q+3}, 15
    s_add_u32 s{S_OI}, s{S_OI}, s{S_LB}
    s_lshl_b32 s{S_OI}, s{S_OI}, {AO()}
    s_add_u32 s{S_OI}, s{S_OI}, {WS_QX if AO() else WS_O}
    v_add_u32 v{u}, s{Q}, v{u}
    s_lshl_b32 s{Q+2}, s{w}, 15
    v_lshrrev_b32 v{u+2}, 2, v0
    v_lshlrev_b32 v{u+2}, 6, v{u+2}
    v_lshl_add_u32 v{u+2}, v{u+1}, 3, v{u+2}
    v_add_u32 v{u+2}, s{Q+2}, v{u+2}
    v_lshlrev_b32 v{L32}, 5, v0
    buffer_load_dwordx4 {v(ACC,4)}, v{L32}, {s(S_B1,4)}, 0 offen
    buffer_load_dwordx4 {v(ACC+4,4)}, v{L32}, {s(S_B1,4)}, 0 offen offset:16""")
    def dm(n): A(f"s_add_u32 m0, s{Q+2}, {(n&31)*1024}\ns_mov_b32 s{Q}, {n*32768}\nbuffer_load_dwordx4 v{u}, {s(S_B0,4)}, s{Q} offen lds")
    for n in range(32): dm(n)
    A(f"""s_mov_b32 s{S_SC}, 0x3e0293ee
    s_mov_b32 s{S_HI}, 0xffff0000
    s_lshr_b32 s{S_RT}, s{w}, 1
    s_and_b32 s{S_EH}, s{w}, 1
    v_mov_b32 v{ONE}, 1
    v_lshlrev_b32 v{L8}, 3, v0
    v_and_b32 v{c}, 15, v0
    v_lshrrev_b32 v{g}, 4, v0
    s_lshl_b32 s{Q}, s{S_RT}, 4
    v_add_u32 v{u+3}, s{Q}, v{c}
    v_lshlrev_b32 v{GA}, 2, v{u+3}
    v_add_u32 v{GA}, {WS_G}, v{GA}
    v_lshlrev_b32 v{OA}, 11, v{u+3}
    v_lshl_add_u32 v{OA}, v{g}, 3, v{OA}
    s_lshl_b32 s{Q}, s{S_EH}, 5
    s_add_u32 s{Q}, s{Q}, s{Q+1}
    v_add_u32 v{OA}, s{Q}, v{OA}
    s_lshl_b32 s{Q}, s{i}, 11
    s_lshl_b32 s{Q+1}, s{S_RT}, 10
    s_add_u32 s{Q}, s{Q}, s{Q+1}
    s_lshl_b32 s{Q+1}, s{S_EH}, 3
    s_add_u32 s{Q}, s{Q}, s{Q+1}
    v_add_u32 v{BA}, s{Q}, v1
    v_mov_b32 v{RR}, v1
    v_lshlrev_b32 v{u+4}, 2, v{g}
    v_sub_u32 v{u+3}, v{u+3}, v{u+4}
    v_mov_b32 v{u+4}, 0xf149f2ca""")
    for k in range(8): A(f"v_cmp_gt_i32 vcc, {(k>>2)*16+(k&3)}, v{u+3}\nv_cndmask_b32 v{NEG0+k}, 0, v{u+4}, vcc")
    for k in range(4): A(f"v_mov_b32 v{ONES+k}, 0x3f803f80")
    A(f"""v_lshrrev_b32 v{u+3}, 2, v{c}
    v_xor_b32 v{u+3}, v{u+3}, v{g}
    v_lshlrev_b32 v{u+3}, 3, v{u+3}
    v_lshl_add_u32 v{u+3}, v{c}, 5, v{u+3}
    s_lshl_b32 s{Q}, s{w}, 10
    s_add_u32 s{Q}, s{Q}, {L_X}
    v_add_u32 v{XW}, s{Q}, v{u+3}
    v_xor_b32 v{u+3}, v{u+1}, v{g}
    v_lshlrev_b32 v{u+3}, 3, v{u+3}
    v_lshrrev_b32 v{u+4}, 2, v0
    v_lshl_add_u32 v{u+3}, v{u+4}, 5, v{u+3}
    v_add_u32 v{XR}, {L_X}, v{u+3}
    s_mov_b32 s{Q}, 0x10000000
    s_cmp_eq_u32 s{w}, 0
    s_cselect_b32 s{S_GO}, {WS_G}, s{Q}
    s_cselect_b32 s{S_FO}, {WS_FL+F_O*128}, s{Q}
    s_lshl_b32 s{Q}, s{S_Y}, 5
    s_add_u32 s{Q}, s{Q}, s{i}
    s_lshl_b32 s{Q}, s{Q}, 7
    s_add_u32 s{S_FO}, s{S_FO}, s{Q}
    s_add_u32 s{S_FP}, s{S_FO}, {(F_P-F_O)*128}
    s_lshl_b32 s{S_OO}, s{S_RT}, {12 if AO() else 17}
    s_lshl_b32 s{Q}, s{i}, {12+AO()}
    s_add_u32 s{S_OO}, s{S_OO}, s{Q}
    s_lshl_b32 s{Q}, s{S_EH}, 11
    s_add_u32 s{S_OO}, s{S_OO}, s{Q}
    s_add_u32 s{S_OO}, s{S_OO}, {WS_QX if AO() else WS_O}""")
    A("s_waitcnt vmcnt(32)")
    for k in range(8): A(f"v_lshlrev_b32 v{GW+2*k}, 16, v{ACC+k}\nv_and_b32 v{GW+2*k+1}, s{S_HI}, v{ACC+k}")
    for grp in range(8):
        A(f"s_waitcnt vmcnt({24 if grp<5 else 8*(7-grp)})")
        for ks in range(4*grp,4*grp+4):
            for nt in range(2):
                for hf in range(2): A(f"ds_read_b64_tr_b16 {a((ks*2+nt)*4+2*hf,2)}, v{u+2} offset:{(ks&15)*2048+hf*1024+nt*32}")
        if grp<4:
            A("s_waitcnt lgkmcnt(0)")
            for n in range(32+8*grp,40+8*grp): dm(n)
    A(f"""s_waitcnt lgkmcnt(0)
    v_readlane_b32 s{S_S}, v{LS}, 0
    s_mov_b32 s{S_OOB}, 0x10000000
    s_mov_b32 s{S_DF}, s{S_OOB}
    s_mov_b32 s{S_DP}, s{S_OOB}
    s_mov_b32 s{S_SF}, 0x1000
    s_mov_b32 s{S_MD}, 0
    s_mov_b32 s{S_JA}, 0
    s_mov_b32 s{S_JS}, 0
    s_mov_b32 s{S_EA}, 3
    s_mov_b32 s{S_FM}, 0
    s_mov_b32 s{S_SA}, s{S_S}
    s_mov_b32 s{S_SP}, s{S_S}
    s_lshl_b32 s{Q}, s{i}, 8
    s_add_u32 s{Q}, s{Q}, {WS_FL+F_PROG*128}
    v_mov_b32 v{FA}, s{Q}
    s_add_u32 s{Q}, s{Q}, 128
    {wl(FA,1,f's{Q}')}
    v_mov_b32 v{FT}, 0
    v_mov_b32 v{FR}, 0
    {wl(FT,2,16)}
    s_lshl_b32 s{Q}, s{S_Y}, 5
    s_and_b32 s{Q+1}, s{i}, 24
    s_add_u32 s{Q+1}, s{Q+1}, s{Q}
    s_lshl_b32 s{Q+1}, s{Q+1}, 7
    s_add_u32 s{Q+1}, s{Q+1}, {WS_FL+(F_O-8)*128}
    s_mov_b64 exec, {MO}
    v_lshl_add_u32 v{FA}, v0, 7, s{Q+1}
    s_lshr_b32 s{Q+1}, s{i}, 2
    s_add_u32 s{Q+1}, s{Q+1}, s{Q}
    s_lshl_b32 s{Q+1}, s{Q+1}, 7
    s_add_u32 s{Q+1}, s{Q+1}, {WS_FL+(F_P-128)*128}
    s_mov_b64 exec, 0xf0000
    v_lshl_add_u32 v{FA}, v0, 10, s{Q+1}
    s_mov_b64 exec, -1""")
    set_a(A); set_p(A); set_s(A)
    stamp(A,T0)
    A.label('T_pre')
    pre(A)
    A(f"s_cmp_eq_u32 s{S_MD}, 2\ns_cbranch_scc1 T_g\ns_waitcnt vmcnt(0)\ns_cmp_eq_u32 s{S_MD}, 0\ns_cbranch_scc1 T_att\ns_mov_b32 s{S_MD}, 2")
    A.label('T_loop')
    dma(A)
    A(f"s_cmp_lt_u32 s{S_SP}, 64\ns_cbranch_scc1 T_att\ns_waitcnt vmcnt(0)\n{sig(S_DP)}\ns_branch T_g")
    A.label('T_att')
    att(A)
    A(f"s_cmp_eq_u32 s{S_MD}, 2\ns_cbranch_scc1 T_pre\ns_waitcnt vmcnt(0)\n{sig(S_DF)}\ns_add_u32 s{S_MD}, s{S_MD}, 1\ns_cmp_eq_u32 s{S_MD}, 1\ns_cbranch_scc1 T_pre")
    dma(A); gstage(A,True)
    A("s_branch T_fb")
    A.label('T_g')
    gstage(A,False)
    stamp(A,T0)
    A(f"s_cmp_lg_u32 s{S_JS}, s{S_JA}\ns_cbranch_scc1 T_loop\ns_mov_b32 s{S_MD}, 3")
    A.label('T_fb')
    A(f"s_waitcnt vmcnt(0)\n{sig(S_DP)}")
    fld(A); A("s_waitcnt vmcnt(0)"); fin(A)
    stamp(A,T0)
    A(f"s_cmp_eq_u32 s{S_MD}, 3\ns_cbranch_scc1 T_att")
```

```python
import sys
from common import *
import gemm
K="gated_mix__memory_aug_recurrent_mem_tr__geglu_ffn__prompt"
S_TS=98
def build(mode='full',stamps=False,opts={}):
    A=Asm()
    def stamp(A,vt=16):
        if not stamps: return
        L=A.newlabel('ts')
        A(f"s_cmp_lg_u32 s{S_W}, 0\ns_cbranch_scc1 {L}\ns_memrealtime s[100:101]\ns_waitcnt lgkmcnt(0)\nv_mov_b32 v{vt}, s100\nv_mov_b32 v{vt+1}, 0\ns_mov_b64 exec, 1")
        A(f"buffer_store_dword v{vt}, v{vt+1}, {s(S_WS,4)}, s{S_TS} offen\ns_mov_b64 exec, -1\ns_add_u32 s{S_TS}, s{S_TS}, 4")
        A.label(L)
    A(f"s_cmp_ge_u32 s2, 256\ns_cbranch_scc1 L_end")
    if stamps: A("s_memrealtime s[100:101]")
    A(f"s_load_dwordx4 s[88:91], s[0:1], 96\ns_load_dwordx16 s[64:79], s[0:1], 0\ns_load_dwordx8 s[80:87], s[0:1], 64\ns_load_dwordx2 s[92:93], s[0:1], 112")
    A(f"s_getreg_b32 s{S_VX}, hwreg(HW_REG_XCC_ID, 0, 3)\nv_lshrrev_b32 v1, 6, v0\nv_and_b32 v0, 63, v0\nv_readfirstlane_b32 s{S_W}, v1\nv_lshlrev_b32 v1, 4, v0")
    for i in range(2,32): A(f"v_mov_b32 v{i}, 0")
    A(f"s_mov_b32 s{S_BUD}, {opts.get('bud',100000)}\ns_mov_b32 s{S_RANK}, 0\ns_waitcnt lgkmcnt(0)")
    srd(A,S_DBG,P_DBG,256); srd(A,S_WS,P_WS,256*MB); srd(A,S_A,P_X,4*MB); srd(A,S_B0,P_WQ,8*MB); srd(A,S_B1,P_WK,8*MB); srd(A,S_OUT,P_OUT,4*MB)
    if opts.get('fakexcc'): A(f"s_lshr_b32 s{S_VX}, s2, 4\ns_mul_i32 s{S_VX}, s{S_VX}, s{S_VX}\ns_and_b32 s{S_VX}, s{S_VX}, 7")
    et=opts.get('et',0)
    A(f"s_cmp_lg_u32 s{S_W}, 0\ns_cbranch_scc1 {'C_tch' if et else 'C_wait'}")
    A(f"s_lshl_b32 s32, s{S_VX}, 4\nv_mov_b32 v2, s32\nv_mov_b32 v3, 1\ns_mov_b64 exec, 1\nbuffer_atomic_add v3, v2, {s(S_DBG,4)}, 0 offen sc0\ns_waitcnt vmcnt(0)\ns_mov_b64 exec, -1\nv_readfirstlane_b32 s{S_RANK}, v3")
    A(f"s_cmp_lt_u32 s{S_RANK}, 32\ns_cbranch_scc1 C_got")
    A(f"v_mov_b32 v2, {D_OVF*4}\nv_mov_b32 v3, 1\ns_mov_b64 exec, 1\nbuffer_atomic_add v3, v2, {s(S_DBG,4)}, 0 offen sc0\ns_waitcnt vmcnt(0)\ns_mov_b64 exec, -1\nv_readfirstlane_b32 s33, v3\nv_and_b32 v2, 0x70, v1")
    A.label('C_sp')
    A(f"buffer_load_dword v3, v2, {s(S_DBG,4)}, 0 offen sc1\ns_waitcnt vmcnt(0)\ns_mov_b32 s34, 0")
    for i in range(8): A(f"v_readlane_b32 s{40+i}, v3, {i}\ns_add_u32 s34, s34, s{40+i}")
    A(f"s_cmp_ge_u32 s34, 256\ns_cbranch_scc1 C_all\ns_sleep 4\ns_sub_u32 s{S_BUD}, s{S_BUD}, 1\ns_cbranch_scc0 C_sp\ns_mov_b32 s{S_BUD}, 0")
    A.label('C_all')
    for i in range(8):
        A(f"s_min_u32 s35, s{40+i}, 32\ns_sub_u32 s36, 32, s35\ns_mov_b32 s{S_VX}, {i}\ns_add_u32 s{S_RANK}, s35, s33\ns_cmp_lt_u32 s33, s36\ns_cbranch_scc1 C_got\ns_sub_u32 s33, s33, s36")
    A.label('C_got')
    A(f"s_lshl_b32 s32, s{S_VX}, 8\ns_or_b32 s32, s32, s{S_RANK}\nv_mov_b32 v3, s32\nv_mov_b32 v2, 163836\nds_write_b32 v2, v3\ns_waitcnt lgkmcnt(0)")
    if et:
        A(f"s_branch C_wait"); A.label('C_tch')
        A(f"s_cmp_eq_u32 s{S_VX}, {XB}\ns_cselect_b32 s33, {4*MB}, 0\ns_and_b32 s34, s{S_VX}, {~(XA^XB)&7}\ns_cmp_lg_u32 s34, {XA&XB}\ns_cbranch_scc1 C_wait")
        A(f"s_lshr_b32 s34, s2, 3\ns_mul_i32 s34, s34, 3\ns_add_u32 s34, s34, s{S_W}\ns_sub_u32 s34, s34, 1\ns_lshl_b32 s34, s34, 13\ns_add_u32 s33, s33, s34\nv_lshlrev_b32 v2, 7, v0")
        for i in range(et): A(f"buffer_load_dword v31, v2, {s(S_B1 if opts.get('ord',[1])[0]==1 else S_B0,4)}, s33 offen\ns_add_u32 s33, s33, {96*8192}")
    A.label('C_wait')
    A(f"s_barrier\nv_mov_b32 v2, 163836\nds_read_b32 v3, v2\ns_waitcnt lgkmcnt(0)\nv_readfirstlane_b32 s32, v3\ns_barrier")
    A(f"s_and_b32 s{S_RANK}, s32, 31\ns_lshr_b32 s{S_VX}, s32, 8\ns_and_b32 s{S_VX}, s{S_VX}, 7")
    if stamps:
        A(f"s_lshl_b32 s{S_TS}, s{S_VX}, 5\ns_add_u32 s{S_TS}, s{S_TS}, s{S_RANK}\ns_lshl_b32 s{S_TS}, s{S_TS}, 12\ns_add_u32 s{S_TS}, s{S_TS}, {WS_TS}")
        A(f"v_mov_b32 v16, s100\nv_mov_b32 v17, 0\nbuffer_store_dword v16, v17, {s(S_WS,4)}, s{S_TS} offen\ns_add_u32 s{S_TS}, s{S_TS}, 4")
        stamp(A)
    A(f"s_cmp_eq_u32 s{S_VX}, {XA}\ns_cbranch_scc1 R_start\ns_cmp_eq_u32 s{S_VX}, {XB}\ns_cbranch_scc1 R_start")
    A(f"s_sub_u32 s{S_Y}, s{S_VX}, 2\ns_cmp_eq_u32 s{S_VX}, 1\ns_cselect_b32 s{S_Y}, 0, s{S_Y}")
    A(f"s_cmp_lg_u32 s{S_VX}, 6\ns_cbranch_scc1 C_np\ns_cmp_lg_u32 s{S_W}, 0\ns_cbranch_scc1 G_start")
    import rec; rec.probe(A)
    A.label('C_np')
    A(f"s_cmp_lg_u32 s32, {7*256+31}\ns_cbranch_scc1 G_start\ns_cmp_lg_u32 s{S_W}, 3\ns_cbranch_scc1 G_start\nv_lshlrev_b32 v2, 7, v0\nv_mov_b32 v3, 0")
    for i in range(NFLAGS//64): A(f"s_mov_b32 s33, {WS_FL+i*8192}\nbuffer_store_dword v3, v2, {s(S_WS,4)}, s33 offen sc1")
    A(f"s_waitcnt vmcnt(0)\nv_mov_b32 v2, {D_INIT*4}\nv_mov_b32 v3, 1\nbuffer_store_dword v3, v2, {s(S_DBG,4)}, 0 offen sc1\ns_branch G_start")
    F=('flush',)
    u=lambda c:('up',0,3,c); d=lambda c:('dn',0,3,c); k=lambda b:('bk',b,1,0); vv=lambda b:('bv',b,1,0); q=lambda b,c:('bq',b,2,c)
    q2=lambda b:('bq',b,1,0)
    SK=lambda c:('sk',0,1,c); SV=lambda c:('sv',0,1,c)
    if opts.get('sw',1): SK,SV=SV,SK
    sched=opts.get('sched') or {0:[
     [SK(0),F,u(0),k(3),q(0,0),F],
     [SK(16),F,u(4),vv(3),q(0,8),F],
     [SV(0),F,u(8),u(24),F,d(12),('kv7',),F],
     [SV(16),F,u(12),F,d(0),q(4,0),q(4,8),F],
     [k(1),F,u(16),d(4),k(5),F],
     [vv(1),F,u(20),F,d(8),vv(5),F]],
     1:[
     [SK(0),F,u(0),k(3),d(4),F],
     [SK(16),F,u(4),vv(3),F,d(8),F],
     [SV(0),F,u(8),u(24),F,d(12),F,('kv7',),F],
     [SV(16),F,u(12),F,d(0),q(0,0),q(4,8),F],
     [k(1),F,u(16),k(5),q(4,0),F],
     [vv(1),F,u(20),q(0,8),vv(5),F]],
     2:[
     [SK(0),F,u(0),k(3),d(4),F],
     [SK(16),F,u(4),vv(3),F,d(8),F],
     [SV(0),F,u(24),u(8),F,q(0,0),('kv7',),F],
     [SV(16),F,u(12),F,d(0),q(0,8),q(4,8),F],
     [k(1),F,u(16),k(5),q(4,0),F],
     [vv(1),F,u(20),F,d(12),vv(5),F]],
     3:[
     [SK(0),F,u(0),k(3),d(4),F],
     [SK(16),F,u(4),vv(3),F,d(8),F],
     [SV(0),F,u(8),u(24),F,d(12),F,('kv7',),F],
     [SV(16),F,u(12),F,d(0),q(0,0),F,q(4,8),F],
     [k(1),F,u(16),q(0,8),k(5),F],
     [vv(1),F,u(20),vv(5),q(4,0),F]],
     4:[
     [SK(0),F,u(0),k(3),d(4),F],
     [SK(16),F,u(4),vv(3),F,d(8),F],
     [SV(0),F,u(8),u(24),F,d(12),F,('kv7',),F],
     [SV(16),F,u(12),F,d(0),q(0,0),q(0,8),F],
     [k(1),F,u(16),k(5),q(4,8),F],
     [vv(1),F,u(20),vv(5),q(4,0),F]],
     5:[
     [SK(0),F,u(0),k(3),F,d(4),F],
     [SK(16),F,u(4),vv(3),F,d(8),F],
     [SV(0),F,u(8),u(24),F,d(12),F,('kv7',),F],
     [SV(16),F,u(12),F,d(0),q(0,0),q(4,8),F],
     [k(1),F,u(16),k(5),q(0,8),F],
     [vv(1),F,u(20),vv(5),q(4,0),F]],
     6:[
     [SK(0),F,u(0),k(3),F,d(4),F],
     [SK(16),F,u(4),vv(3),F,d(8),F],
     [SV(0),F,u(8),u(24),F,d(12),F,('kv7',),F],
     [SV(16),F,u(12),F,d(0),q2(0),q2(6),F],
     [k(1),F,u(16),k(5),q2(2),F],
     [vv(1),F,u(20),vv(5),q2(4),F]],
     }[opts.get('sc',6)]
    gemm.OPT=opts
    gemm.gemm_role(A,sched,'T_start',stamp)
    A.label('T_start')
    if mode in('full','tail'):
        import tail; tail.tail_role(A,stamp,opts)
    A("s_branch L_fin")
    A.label('R_start')
    if mode in('full','rec'):
        import rec; rec.rec_role(A,stamp,opts)
    A.label('L_fin')
    A(f"s_cmp_lg_u32 s{S_BUD}, 0\ns_cbranch_scc1 L_end\nv_mov_b32 v2, {D_ERR*4}\nv_mov_b32 v3, 1\nbuffer_atomic_add v3, v2, {s(S_DBG,4)}, 0 offen")
    A.label('L_end')
    A("s_endpgm")
    ref=open(f"cdna_kernels/{K}.s.ref").read()
    head=ref[:ref.index("    ; v1 = byte offset")].replace("grid=(8192,1,1) block=(256,1,1) lds=0","grid=(256,1,1) block=(256,1,1) lds=163840")
    foot=ref[ref.index(".section .rodata"):].replace("next_free_vgpr 256","next_free_vgpr 512")
    return head+'; opts '+' '.join(f'{k}={x}' for k,x in opts.items() if k!='sched')+'\n'+A.text()+foot
if __name__=='__main__':
    mode=sys.argv[1]; out=sys.argv[2]; st='ts' in sys.argv[3:]
    opts={k:eval(x) for k,x in (o.split('=') for o in sys.argv[3:] if '=' in o)}
    open(out,'w').write(build(mode,st,opts))
```

```python
from asm import *
MB=1<<20
WS_A=0; WS_C=2*MB; WS_FL=2*MB+512*1024; WS_B=3*MB; WS_TS=4*MB
WS_KM=8*MB; WS_VM=16*MB; WS_KX=32*MB; WS_VX=48*MB; WS_QX=64*MB; WS_O=80*MB; WS_H=96*MB; WS_BF=112*MB; WS_G=7*MB; WS_AP=128*MB
F_KV=0
F_Q=16
F_H=24
F_BF=56
F_PROG=64
F_O=128
F_P=320
NFLAGS=512
D_CNT=0
D_OVF=32; D_INIT=36; D_RDY=40; D_P0=44; D_P1=45; D_ERR=48
S_WS=4; S_A=8; S_B0=12; S_B1=16; S_DBG=20; S_OUT=24
S_VX=28; S_RANK=29; S_W=30; S_Y=31
P_X=64; P_MEM=66; P_WQ=68; P_WK=70; P_WV=72; P_WO=74; P_WG=80; P_WU=82; P_WD=84; P_GW=86; P_OUT=88; P_DBG=90; P_WS=92
S_BUD=94
XA=0; XB=2
def srd(A,d,p,size):
    A(f"s_mov_b32 s{d}, s{p}\ns_mov_b32 s{d+1}, s{p+1}\ns_mov_b32 s{d+2}, {hex(size)}\ns_mov_b32 s{d+3}, 0x20000")
def spin_ge(A,sr,off,target,vt,va,st,soff='0'):
    L=A.newlabel('spin'); E=A.newlabel('spun')
    A(f"v_mov_b32 v{va}, {hex(off)}")
    A.label(L)
    A(f"buffer_load_dword v{vt}, v{va}, {s(sr,4)}, {soff} offen sc1\ns_waitcnt vmcnt(0)\nv_readfirstlane_b32 s{st}, v{vt}")
    A(f"s_cmp_ge_u32 s{st}, {target}\ns_cbranch_scc1 {E}\ns_sleep 4\ns_sub_u32 s{S_BUD}, s{S_BUD}, 1\ns_cbranch_scc0 {L}\ns_mov_b32 s{S_BUD}, 0")
    A.label(E)
def wbl2(A,rank=True,wave=0):
    L=A.newlabel('wb')
    A(f"s_cmp_lg_u32 s{S_W}, {wave}\ns_cbranch_scc1 {L}")
    if rank: A(f"s_cmp_lg_u32 s{S_RANK}, 0\ns_cbranch_scc1 {L}")
    A("buffer_wbl2 sc1"); A.label(L)
```

```python
from common import *
L_MEM=131072; L_X=139264; L_VM=143360; L_KX=145408; L_VX=153600
IDX=2; MW=3; XW=7; XR=8; L8=9; VMR=10; VMW=11; KXR=12; WV=13; BS=15; BL=16; L4=17; T0=18; T1=19
SEL1=20; SEL2=24; NEG=28; SN1=30; PB1=32; PB2=36; SENT=40; ONES=44; M=48
S_X=32; S_S=33; S_AO=34; S_AI=35; S_AOV=36; S_AIV=37; S_B=38; S_B2=39; S_CL=40; S_CS=41; S_CC=42; S_KX=43; S_VXO=44
S_KM=45; S_VM=46; S_PR=47; S_FI=48; S_FT=49; S_SC=50; S_M0K=51; S_M0V=52; S_BC=53; S_AVC=54; S_HI=55; Q=56; S_CLB=62; S_CSB=63
WS=s(S_WS,4)
def smf(d,A_,B_): return f"v_smfmac_f32_16x16x64_bf16 {v(d,4)}, {v(A_,4)}, {B_}, v{IDX}"
def mf(d,A_,B_,c): return f"v_mfma_f32_16x16x32_bf16 {v(d,4)}, {v(A_,4)}, {v(B_,4)}, {c if isinstance(c,str) else v(c,4)}"
def trimm(ksl,m): return (64*ksl+8*(m>>1)+2*(m&1))*256
DRP=14; S_AP=95; S_TAG=96; L_Z=L_KX+16384
def wv_read(n,buf):
    r=[f"ds_read_b128 {v(buf+4*m,4)}, v{WV} offset:{(n&3)*2048+m*1024}" for m in range(2)]
    if n&3==3: r.append(f"v_xor_b32 v{WV}, {[1,3,1,3][n>>2]*32768}, v{WV}")
    return r
WBUF=[96,104,120]
def fill(A):
    for n in range(2):
        for t in wv_read(n,WBUF[n]): A(t)
    for r in list(range(80,96,2))+list(range(112,120,2)): A(f"v_mov_b64 {v(r,2)}, 0")
def gaps(A,ms,fl):
    for i,m in enumerate(ms):
        A(m)
        for t in (fl[i] if i<len(fl) else []): A(t)
def step_loop(A,name,slow,stamp,o):
    sc=' sc1' if slow else ''
    ph=o.get('ph') and not slow
    def P(k,b=None):
        if ph and o.get('ack'):
            if k in (2,3): return
            if k in (8,10):
                A(f"s_memtime s[{64+2*k}:{65+2*k}]\ns_waitcnt vmcnt(0)"); k={8:2,10:3}[k]
        if ph:
            A(f"s_memtime s[{64+2*k}:{65+2*k}]")
            if b is not None: A(f"s_mov_b32 s{88+b}, s{S_BUD}")
    def slp(k,d):
        n=o.get(k,d)
        if n>=64: A(f"s_sleep {n//64}")
        n%=64
        if n>=4: A(f"s_nop {n//4-1}")
    OUT=[]
    def bud(E):
        L=A.newlabel('bd'); return f"s_sub_u32 s{S_BUD}, s{S_BUD}, 1\ns_cbranch_scc0 {L}\ns_mov_b32 s{S_BUD}, 0\ns_branch {E}\n{L}:"
    cv=lambda d,r:f"v_cvt_pk_bf16_f32 v{d}, v{r}, v{r+1}"
    pa=lambda d,b:f"v_pk_add_f32 {v(d,2)}, {v(d,2)}, {v(b,2)}"
    sw=lambda a_,b_:f"v_permlane32_swap_b32 v{a_}, v{b_}"
    ldC=lambda r:f"buffer_load_dwordx4 {v(r,4)}, v1, {WS}, s{S_CL} offen sc1\nbuffer_load_dwordx4 {v(r+4,4)}, v1, {WS}, s{S_CL} offen offset:1024 sc1"
    chk8=lambda r:[f"v_max3_u32 v{T0}, v{r}, v{r+1}, v{r+2}",f"v_max3_u32 v{T1}, v{r+3}, v{r+4}, v{r+5}",f"v_max3_u32 v{T0}, v{T0}, v{r+6}, v{r+7}",f"v_max_u32 v{T0}, v{T0}, v{T1}",f"v_cmp_eq_u32 vcc, -1, v{T0}"]
    ad=lambda d,x_,y_:f"v_add_f32 v{d}, v{x_}, v{y_}"
    tag=lambda d,r:f"v_bfi_b32 v{d}, 1, s{S_TAG}, v{r}"
    bo=lambda d,x_,y_,z_,t:f"v_bitop3_b32 v{d}, {x_}, {y_}, {z_} bitop3:{hex(t)}"
    TG=f"s{S_TAG}"; N1=["s_nop 1"]
    drop=o.get('drop',1); c2=o.get('c2',0); a2=o.get('a2',1); b2=o.get('b2',1)
    def nops(n): return "".join(f"s_nop {min(n-k,64)//4-1}\n" for k in range(0,n-3,64))
    def piped(F,E,sets,ld,ck,d,pre,done):
        k=len(sets); L=A.newlabel('pl'); Y=[A.newlabel('py') for r in sets]; G=A.newlabel('pg')
        x=f"{F}:\ns_mov_b64 exec, vcc\n{ld(sets[0])}\n"
        if pre: x+=f"s_mov_b64 exec, -1\n{pre}\ns_mov_b64 exec, vcc\n"
        x+="".join(nops(d)+ld(r)+"\n" for r in sets[1:])+f"{L}:\n"
        for j,r in enumerate(sets):
            x+=f"s_waitcnt vmcnt({2*k-2})\n"+"\n".join(ck(r))+f"\ns_cbranch_vccz {Y[j]}\n"+("s_mov_b64 exec, vcc\n" if j==0 else "")+ld(r)+"\n"
        x+=f"s_sub_u32 s{S_BUD}, s{S_BUD}, 1\ns_cbranch_scc0 {L}\ns_mov_b32 s{S_BUD}, 0\ns_mov_b64 exec, -1\ns_branch {E}\n"
        for j,r in enumerate(sets):
            x+=f"{Y[j]}:\n"+("".join(f"v_mov_b64 {v(sets[0]+q,2)}, {v(r+q,2)}\n" for q in range(0,8,2)) if j else "")+f"s_mov_b64 exec, -1\n{done}\n"
        return x
    A.label(name+'_top')
    A(f"s_bfe_u32 s{S_TAG}, s{S_S}, 0x10001")
    slp('dc',320); A(ldC(M))
    if c2: slp('dc2',64); A(ldC(120))
    A.label(name+'_cw')
    A(f"s_waitcnt vmcnt({2*c2})")
    A.label(name)
    A(f"ds_write_b128 v{MW}, {v(M,4)}\nds_write_b128 v{MW}, {v(M+4,4)} offset:1024")
    qk=lambda i:[smf(80,M+4*i,a((i*2)*8,8)),smf(84,M+4*i,a(128+(i*2)*8,8)),smf(88,M+4*i,a((i*2+1)*8,8)),smf(92,M+4*i,a(128+(i*2+1)*8,8))]
    c8=chk8(M)
    gaps(A,qk(0)[:2],[c8[:2],c8[2:]])
    Fc=A.newlabel('fc'); Ec=A.newlabel('ec'); Yc=A.newlabel('yc')
    A(f"s_cbranch_vccnz {Fc}"); A.label(Ec)
    t=f"{Fc}:\n{bud(Ec)}\ns_waitcnt lgkmcnt(0)\n{ldC(M)}\ns_nop 3\n"+"\n".join(f"v_mov_b64 {v(r,2)}, 0" for r in range(80,88,2))
    if c2: t+="\ns_waitcnt vmcnt(2)\n"+"\n".join(chk8(120))+f"\ns_cbranch_vccz {Yc}\n{ldC(120)}\ns_branch {name}_cw\n{Yc}:\n"+"\n".join(f"v_mov_b64 {v(M+r,2)}, {v(120+r,2)}" for r in range(0,8,2))+f"\ns_branch {name}"
    else: t=f"{Fc}:\ns_mov_b64 exec, vcc\n{ldC(M)}\ns_mov_b64 exec, -1\n{bud(Ec)}\n"+"\n".join(f"v_mov_b64 {v(r,2)}, 0" for r in range(80,88,2))+"\ns_waitcnt vmcnt(0)\n"+"\n".join(c8)+f"\ns_cbranch_vccz {name}\ns_branch {Fc}"
    if o.get('pc',1)>1: t=piped(Fc,Ec,[M,120,PB2][:o['pc']],ldC,chk8,o.get('pcd',128),"s_nop 3\n"+"\n".join(f"v_mov_b64 {v(r,2)}, 0" for r in range(80,88,2)),f"s_branch {name}")
    OUT.append(t)
    P(0,0)
    A(qk(0)[2])
    A("s_waitcnt lgkmcnt(0)\ns_barrier")
    rd=[f"ds_read_b128 {v(M+4*i,4)}, v{MW+(i>>1)} offset:{(i&1)*1024}" for i in range(2,8)]
    A(rd[0]); A(rd[1])
    ex1=lambda m_,t:[f"s_mov_b64 exec, {m_}",t,"s_mov_b64 exec, -1"]
    gaps(A,[qk(0)[3]]+qk(1),[rd[2:4],rd[4:6]+[f"s_mov_b32 m0, s{S_M0V}"],[f"buffer_load_dwordx4 v1, {WS}, s{S_VXO} offen sc1 lds"],[f"buffer_load_dwordx4 v1, {WS}, s{S_VXO} offen offset:1024 sc1 lds"],[f"v_mov_b32 v{T1}, s{S_S}","s_waitcnt lgkmcnt(5)"]])
    gaps(A,qk(2)+qk(3),[ex1('0xfff',f"buffer_store_dword v{SN1}, v{DRP}, {WS}, s{S_AP} offen offset:4 sc1") if drop else [],ex1('0xffff',f"buffer_store_dword v{SN1}, v{L4}, {WS}, s{S_CC} offen{sc}"),
        ex1(1,f"buffer_load_dword v{T0}, off, {WS}, s{S_FI} sc1"),["s_waitcnt lgkmcnt(4)"],ex1(1,f"buffer_store_dword v{T1}, off, {WS}, s{S_PR} sc1"),[],[],[f"s_waitcnt lgkmcnt(0) vmcnt({5+drop})"]])
    vs=lambda n,buf:smf(112+4*(n&1),M+4*(n>>1),v(buf,8))
    w2=wv_read(2,WBUF[2]); D=PB2
    gaps(A,[qk(i)[j] for j in range(4) for i in range(4,8)]+[vs(0,WBUF[0]),vs(1,WBUF[1])],
         [w2[:1],w2[1:],[],[], N1,N1,N1,[ad(80,80,82)], [ad(81,81,83),"s_nop 0"],N1,[ad(82,84,86)],[ad(83,85,87)], [cv(D,80),"s_nop 0"],[cv(D+2,82),tag(D,D)],[ad(88,88,90)],[ad(89,89,91)], [cv(D+1,88),"s_nop 0"],[]])
    for t in (ad(90,92,94),ad(91,93,95),cv(D+3,90)): A(t)
    A(f"buffer_store_dwordx4 {v(D,4)}, v1, {WS}, s{S_AO} offen sc1")
    P(1)
    buf={2:WBUF[2]}; free=[WBUF[0],WBUF[1]]; nxt=3
    ldA=lambda r:f"buffer_load_dwordx4 {v(r,4)}, v1, {WS}, s{S_AI} offen sc1"
    for n in range(2,16):
        while free and nxt<16:
            b=free.pop(0); buf[nxt]=b
            for t in wv_read(nxt,b): A(t)
            nxt+=1
        A(f"s_waitcnt lgkmcnt({2*(nxt-1-n)})")
        A(vs(n,buf[n])); free.append(buf[n])
        if n&3==3 and n<8: free.append(M+8*(n>>2))
        if n==o.get('pa',15): A(ldA(SENT))
    for i in range(8): A(f"ds_read_b128 {v(M+4*i,4)}, v{KXR} offset:{i*1024}")
    if o.get('pa',15)==16: A(ldA(SENT))
    for t in (ad(112,112,114),ad(113,113,115),ad(116,116,118),ad(117,117,119),cv(D,112),cv(D+1,116),tag(120,D),f"v_mov_b32 v121, v{D+1}",f"ds_write_b64 v{VMW}, {v(D,2)}",sw(120,122),sw(121,123)): A(t)
    A(f"s_cmp_eq_u32 s{S_S}, 63\ns_cbranch_scc1 R_done\ns_mov_b32 m0, s{S_M0K}")
    if o.get('pa',15)==17: slp('da1',0); A(ldA(SENT))
    aov=f"s_mov_b32 exec_hi, 0\nbuffer_store_dwordx4 {v(120,4)}, v1, {WS}, s{S_AOV} offen sc1\ns_mov_b64 exec, -1"
    av=o.get('av',1)
    if av==0:
        if drop: A("s_waitcnt vmcnt(2)")
        A(aov)
    slp('da',128); A(ldA(124))
    P(2)
    if av==1:
        if drop: A("s_waitcnt vmcnt(3)")
        A(aov)
    A(f"s_waitcnt vmcnt({1 if av==2 else 2})")
    P(3)
    Fa=A.newlabel('fa'); Ea=A.newlabel('ea'); Sa=A.newlabel('sa')
    unp=lambda r:f"{bo(T1,v(r),TG,1,0x28)}\nv_cmp_ne_u32 vcc, 0, v{T1}\n"+"\n".join(f"v_lshlrev_b32 v{112+2*i}, 16, v{r+j}\nv_and_b32 v{113+2*i}, s{S_HI}, v{r+j}" for i,j in enumerate((0,2,1,3)))
    A(unp(SENT)); A(f"s_cbranch_vccnz {Fa}"); A.label(Ea)
    OUT.append(f"{Fa}:\n{ldA(SENT)}\ns_waitcnt vmcnt({2 if av==1 else 1})\n{Sa}:\n{bud(Ea)}\n{unp(124)}\ns_cbranch_vccz {Ea}\n{ldA(124)}\ns_waitcnt vmcnt(1)\n{unp(SENT)}\ns_cbranch_vccz {Ea}\n{ldA(SENT)}\ns_waitcnt vmcnt(1)\ns_branch {Sa}")
    P(4,1)
    for t in (pa(80,112),pa(82,114),cv(84,80),cv(85,82),f"ds_write_b64 v{XW}, {v(84,2)}",pa(88,116),pa(90,118),cv(86,88),cv(87,90),f"ds_write_b64 v{XW}, {v(86,2)} offset:512"): A(t)
    if av==2: A(aov)
    kvw=A.newlabel('kvw'); kvr=A.newlabel('kvr')
    A(f"v_readfirstlane_b32 s{Q}, v{T0}\ns_mov_b32 vcc_lo, 0x33333333\ns_mov_b32 vcc_hi, 0x33333333\ns_cmp_lt_u32 s{Q}, s{S_FT}\ns_waitcnt lgkmcnt(0)\ns_barrier")
    P(5)
    for i in range(8): A(f"ds_read_b64_tr_b16 {v(80+2*i,2)}, v{XR} offset:{i*512}")
    A(f"s_cbranch_scc1 {kvw}"); A.label(kvr)
    ldV=[f"buffer_load_dwordx2 {v(98+4*p,2)}, v{L8}, {WS}, s{S_AIV} offen offset:{p*512} sc1" for p in range(4)]
    ldK=[f"buffer_load_dwordx4 v1, {WS}, s{S_KX} offen offset:{p*1024} sc1 lds" for p in range(2)]
    vx=lambda i:f"ds_read_b128 {v(M+4*i,4)}, v{KXR} offset:{L_VX-L_KX+i*1024}"
    vm=lambda p:f"ds_read_b64 {v(96+4*p,2)}, v{VMR} offset:{p*512}"
    m=[]
    for ks in range(4):
        X=80+4*ks
        m+=[f"s_waitcnt lgkmcnt({[6,4,5,6][ks]})\n"+mf(112,M+4*ks,X,'0' if ks==0 else 112),mf(116,M+16+4*ks,X,'0' if ks==0 else 116),mf(120,X,X,NEG-2 if ks==0 else 120)]
    fl=[[],[],[],[vx(0)],[vx(4)],[vx(1)],[vx(5)],[vx(2)],[vx(6)],[vm(0),vm(1)],[vx(3)],[vx(7),vm(2),vm(3)]]
    pv=o.get('pv',0)
    stE=f"buffer_store_dwordx4 {v(D,4)}, v1, {WS}, s{S_VM} offen sc1 {o.get('nte','')}"; kp=o.get('kp',1)
    for k,t in enumerate(ldV+(ldK+[stE] if kp==0 else [])): fl[min(pv+k*o.get('pw',1),11)].append(t)
    gaps(A,m,fl)
    qp=lambda k:f"quad_perm:{k} row_mask:0xf bank_mask:0xf"
    for i in range(4): A(f"v_cndmask_b32_dpp v{112+i}, v{116+i}, v{112+i}, vcc {qp('[0,1,0,1]')}")
    A(f"""v_max3_f32 v116, v112, v122, v123
    s_not_b64 vcc, vcc
    v_max3_f32 v116, v116, v113, v114
    v_max_f32 v116, v116, v115
    {ldK[0] if kp else ''}
    v_max_f32_dpp v116, v116, v116 {qp('[2,3,0,1]')}
    v_mov_b32 v117, v116
    {ldK[1] if kp else ''}
    v_permlane16_swap_b32 v116, v117
    v_max_f32 v116, v116, v117
    v_mov_b32 v117, v116
    {stE if kp else ''}
    s_waitcnt vmcnt({8 if av==2 else 7})
    v_permlane32_swap_b32 v116, v117
    v_max_f32 v116, v116, v117
    v_mul_f32 v127, s{S_SC}, v116""")
    fm=lambda r:f"v_fma_f32 v{r}, v{r}, s{S_SC}, -v127"
    ex=lambda r:f"v_exp_f32 v{r}, v{r}"
    p1=lambda i:f"v_cndmask_b32_dpp v{PB1+i}, v{124+(i&1)}, v{PB1+i}, vcc {qp('[0,1,2,3]' if i<2 else '[2,3,2,3]')}"
    mv=lambda d,r:f"v_mov_b32_dpp v{d}, v{r} {qp('[2,3,0,1]')}"
    for t in (fm(112),fm(113),fm(114),fm(115),ex(112),ex(113),ex(114),ex(115),cv(124,112),cv(125,114),fm(122),p1(0),p1(2),p1(1),p1(3),fm(123),"s_waitcnt lgkmcnt(0)"): A(t)
    zl=lambda T:f"ds_read_b128 {v(M+4*T,4)}, v{KXR} offset:{L_Z-L_KX}"
    gaps(A,[mf(80,M,PB1,'0'),mf(84,M+8,PB1,'0'),mf(116,ONES,PB1,'0'),mf(80,M+4,PB2,80),mf(84,M+12,PB2,84),mf(116,ONES,PB2,116),mf(88,M+16,PB1,'0')],
         [[mv(PB2,PB1),mv(PB2+2,PB1+2)],[mv(PB2+1,PB1+1),mv(PB2+3,PB1+3),zl(0)],[ex(122),zl(2)],[ex(123)],[cv(120,122),zl(1)],[mv(121,120),f"v_mov_b64 {v(122,2)}, {v(120,2)}"],[zl(3)]])
    P(6)
    LV=A.newlabel('pv'); Fv=A.newlabel('fv'); Ev=A.newlabel('ev')
    A(f"v_mfma_f32_16x16x16_bf16 {v(116,4)}, {v(ONES,2)}, {v(120,2)}, {v(116,4)}\n{zl(4)}\ns_waitcnt vmcnt(3)")
    ckv=[bo(124,'v98','v102',TG,0x7e),bo(125,'v106','v110',TG,0x7e),bo(124,'v124','v125',1,0xa8),"v_cmp_ne_u32 vcc, 0, v124"]
    A(ckv[0]); A(ckv[1]); A(mf(92,M+24,PB1,'0')); A(ckv[2]); A(ckv[3]); A(zl(6))
    A(f"s_cbranch_vccnz {Fv}"); A.label(Ev)
    OUT.append(f"{Fv}:\n{bud(Ev)}\n"+"\n".join(ldV)+"\ns_waitcnt vmcnt(0)\n"+"\n".join(ckv)+f"\ns_cbranch_vccz {Ev}\ns_branch {Fv}")
    P(7,2)
    mu=lambda r:f"v_mul_f32 v{r}, v126, v{r}"
    g2=lambda T,u:smf(M+4*T,112 if u==0 else 120,v(128+(T*2+u)*8,8))
    fo=lambda T:[ad(M+4*T,M+4*T,M+4*T+2),ad(M+4*T+1,M+4*T+1,M+4*T+3),cv(96+T,M+4*T)]+([tag(96+T,96+T)] if T&3==0 else [])
    st=lambda r,so:f"buffer_store_dwordx4 {v(r,4)}, v{BS}, {WS}, s{so} offen{sc}"
    gaps(A,[mf(80,96,120,80),mf(84,100,120,84),mf(88,M+20,PB2,88),mf(92,M+28,PB2,92),mf(88,104,120,88),mf(92,108,120,92)],
         [["v_rcp_f32 v126, v116"],N1,N1,[zl(5),mu(80),mu(81),mu(82),mu(83)],[zl(7),mu(84),mu(85),mu(86),mu(87)],[cv(112,80),cv(113,82),cv(114,84),cv(115,86),"s_waitcnt lgkmcnt(2)"]])
    gaps(A,[g2(T,u) for u in range(2) for T in range(8)],
         [[mu(88),mu(89)],[mu(90),mu(91)],[mu(92),mu(93)],[mu(94),mu(95)],[cv(120,88),cv(121,90),"s_waitcnt lgkmcnt(0)"],[cv(122,92)],[cv(123,94)],[],
          N1,N1,N1,fo(0),fo(1),fo(2),fo(3)+[st(96,S_B)],fo(4)+fo(5)+fo(6)+fo(7)])
    A(st(100,S_B2))
    P(8)
    X=M+8; R=M+24
    ldB=lambda so,X=X:f"buffer_load_dwordx4 {v(X,4)}, v{BL}, {WS}, s{so} offen sc1\nbuffer_load_dwordx4 {v(X+4,4)}, v{BL}, {WS}, s{so} offen offset:1024 sc1"
    bp=o.get('bp',3)
    if bp==0: slp('db',0); A(ldB(S_B))
    A(f"""s_add_u32 s{S_S}, s{S_S}, 1
    s_add_u32 s{S_VM}, s{S_VM}, 0x40000
    s_add_u32 s{S_KX}, s{S_KX}, {0 if o.get('xk') else 0x40000}
    s_add_u32 s{S_VXO}, s{S_VXO}, {0 if o.get('xk') else 0x40000}
    s_mov_b32 s{S_AP}, s{S_AI}
    s_xor_b32 s{S_AO}, s{S_AO}, 0x8000
    s_xor_b32 s{S_AI}, s{S_AI}, 0x8000
    s_xor_b32 s{S_AOV}, s{S_AOV}, 0x8000
    s_xor_b32 s{S_AIV}, s{S_AIV}, 0x8000
    s_mov_b32 s{S_BC}, s{S_B}
    s_xor_b32 s{S_B}, s{S_B}, 0x80000
    s_xor_b32 s{S_B2}, s{S_B2}, 0x80000""")
    if bp==1: slp('db',0); A(ldB(S_BC))
    fill(A)
    if bp==2: slp('db',0); A(ldB(S_BC))
    A(f"""s_mov_b32 s{S_CC}, s{S_CS}
    s_and_b32 s{Q}, s{S_S}, 3
    s_lshl_b32 s{Q}, s{Q}, 14
    s_add_u32 s{S_CL}, s{S_CLB}, s{Q}
    s_add_u32 s{S_CS}, s{S_CSB}, s{Q}
    s_add_u32 s{Q}, s{S_S}, 1
    s_min_u32 s{Q}, s{Q}, 63
    s_lshr_b32 s{Q+1}, s{Q}, 3
    s_add_u32 s{Q+1}, s{Q+1}, 1
    s_lshr_b32 s{Q+2}, s{Q}, 2
    s_cmp_lt_u32 s{Q}, 8
    s_cselect_b32 s{Q+1}, s{Q+2}, s{Q+1}
    s_cselect_b32 s{S_FT}, 64, 32
    s_lshl_b32 s{Q+1}, s{Q+1}, 7
    s_add_u32 s{S_FI}, s{Q+1}, {WS_FL+F_KV*128}""")
    if bp==3: slp('db',0); A(ldB(S_BC))
    LB_=A.newlabel('pb'); Fb=A.newlabel('fb'); Eb=A.newlabel('eb')
    A.label(LB_)
    A(f"s_waitcnt vmcnt(0)\n{mf(R,X,SEL1,'0')}\n{bo(T0,v(X),v(X+4),TG,0x7e)}\nv_and_b32 v{T0}, 1, v{T0}\nv_cmp_ne_u32 vcc, 0, v{T0}\n{mf(R,X+4,SEL1,R)}\ns_cbranch_vccnz {Fb}")
    A.label(Eb)
    A(f"{mf(R+4,X,SEL2,'0')}\n{mf(R+4,X+4,SEL2,R+4)}")
    if o.get('pb',1)>1: OUT.append(piped(Fb,Eb,[X,X+8,M][:o['pb']],lambda r:ldB(S_BC,r),lambda r:[bo(T0,v(r),v(r+4),TG,0x7e),f"v_and_b32 v{T0}, 1, v{T0}",f"v_cmp_ne_u32 vcc, 0, v{T0}"],o.get('pbd',128),None,f"{mf(R,X,SEL1,'0')}\n{mf(R,X+4,SEL1,R)}\ns_branch {Eb}"))
    else: OUT.append(f"{Fb}:\ns_mov_b64 exec, vcc\n{ldB(S_BC)}\ns_mov_b64 exec, -1\n{bud(Eb)}\ns_branch {LB_}")
    P(9,3)
    A(f"""{ad(R,R,R+1)}
    {ad(R+2,R+2,R+3)}
    {ad(R,R,R+2)}
    {pa(R+4,R+6)}
    v_add_f32 v{R+4}, v{R+4}, v{R+5}
    {sw(R,R+4)}
    v_add_f32 v{R}, v{R}, v{R+4}
    v_mov_b32 v{R+4}, v{R}
    v_permlane16_swap_b32 v{R}, v{R+4}
    v_add_f32 v{R}, v{R}, v{R+4}
    v_mov_b32 v{R+4}, v{R}
    {sw(R,R+4)}
    s_mov_b64 exec, 0xffff
    v_cvt_pk_bf16_f32 v{T1}, v{R}, v{R+4}
    buffer_store_dword v{T1}, v{L4}, {WS}, s{S_CS} offen{sc}
    s_mov_b64 exec, -1""")
    P(10)
    if ph:
        A("s_waitcnt lgkmcnt(0)")
        for k in range(11): A(f"v_writelane_b32 v{T0}, s{64+2*k}, {k}")
        for k in range(4): A(f"v_writelane_b32 v{T0}, s{88+k}, {11+k}")
        A(f"s_mov_b64 exec, 0xffff\nbuffer_store_dword v{T0}, v{L4}, {WS}, s92 offen\ns_mov_b64 exec, -1\ns_add_u32 s92, s92, 64")
    elif o.get('rs'): stamp(A,T0)
    A(f"s_branch {name}_top")
    if o.get('rd',1) and not slow: done(A,stamp); OUT.reverse()
    for t in OUT: A(t)
    A.label(kvw)
    spin_ge(A,S_WS,0,f"s{S_FT}",T0,T1,Q,soff=f"s{S_FI}")
    A(f"s_branch {kvr}")
WB=[0]
def rec_role(A,stamp,o):
    WB[0]=o.get('wb',0)
    ORD=o.get('ord',[1,0,2,3])
    h=S_RANK; w=S_W; x=S_X; t=112
    A(f"s_cmp_eq_u32 s{S_VX}, {XB}\ns_cselect_b32 s{x}, 1, 0")
    srd(A,S_A,P_WV,8*MB); srd(A,S_OUT,P_WO,8*MB)
    for i in range(4): A(f"v_mov_b32 v{SENT+i}, -1")
    A(f"v_lshlrev_b32 v{L8}, 3, v0\nv_lshlrev_b32 v{L4}, 2, v0")
    DQ=16+t-14; DO=DQ+1
    A(f"""v_lshrrev_b32 v{t}, 4, v0
    v_and_b32 v{t+1}, 1, v{t}
    s_lshl_b32 s{Q}, s{w}, 1
    v_or_b32 v{t+1}, s{Q}, v{t+1}
    v_bfe_u32 v{t+4}, v0, 1, 3
    v_xor_b32 v{t+1}, v{t+1}, v{t+4}
    v_lshlrev_b32 v{t+1}, 5, v{t+1}
    v_and_b32 v{t+4}, 1, v0
    v_lshl_add_u32 v{t+1}, v{t+4}, 4, v{t+1}
    s_lshl_b32 s{Q}, s{w}, 4
    v_add_u32 v{t}, s{Q}, v{t}
    s_lshl_b32 s{Q}, s{x}, 22
    s_lshl_b32 s{Q+1}, s{h}, 8
    s_add_u32 s{Q}, s{Q}, s{Q+1}
    v_lshl_add_u32 v{DQ}, v{t}, 13, v{t+1}
    v_add_u32 v{DQ}, s{Q}, v{DQ}
    s_lshl_b32 s{Q}, s{h}, 18
    s_lshl_b32 s{Q+1}, s{x}, 10
    s_add_u32 s{Q}, s{Q}, s{Q+1}
    v_lshl_add_u32 v{DO}, v{t}, 11, v{t+1}
    v_add_u32 v{DO}, s{Q}, v{DO}
    s_lshl_b32 s{S_M0K}, s{w}, 12""")
    def chunk(n):
        mat,j=ORD[n>>2],n&3
        for aa in range(2):
            for b in range(4):
                rows=64*aa+4*b
                so=(j*256+rows*2048) if mat==2 else (128*j+rows)*8192
                A(f"s_add_u32 m0, s{S_M0K}, {j*32768+aa*16384+b*1024}\ns_mov_b32 s{Q}, {so}\nbuffer_load_dwordx4 v{DO if mat==2 else DQ}, {s([S_B0,S_B1,S_OUT,S_A][mat],4)}, s{Q} offen {'nt' if mat in o.get('ntm',()) else ''} lds")
    W=o.get('win',4)
    for n in range(W): chunk(n)
    A(f"""s_lshl_b32 s{Q}, s{h}, 16
    s_lshl_b32 s{Q+1}, s{x}, 14
    s_add_u32 s{S_AO}, s{Q}, s{Q+1}
    s_xor_b32 s{S_AI}, s{S_AO}, 0x4000
    s_lshl_b32 s{Q}, s{x}, 18
    s_add_u32 s{S_B}, s{Q}, {WS_B}
    s_add_u32 s{S_B2}, s{S_B}, 0x8000
    s_xor_b32 s{S_BC}, s{S_B}, 0x80000
    s_lshl_b32 s{Q}, s{h}, 2
    s_add_u32 s{Q}, s{Q}, s{w}
    s_lshl_b32 s{Q+1}, s{Q}, 11
    v_and_b32 v{t}, 15, v0
    v_lshrrev_b32 v{t+1}, 4, v0
    v_lshlrev_b32 v{BL}, 6, v{t}
    v_lshl_add_u32 v{BL}, v{t+1}, 4, v{BL}
    v_add_u32 v{BL}, s{Q+1}, v{BL}
    s_lshl_b32 s{Q}, s{Q}, 6
    s_lshl_b32 s{Q+1}, s{x}, 13
    s_add_u32 s{Q+1}, s{Q+1}, {WS_C}
    s_add_u32 s{S_CSB}, s{Q+1}, s{Q}
    s_lshl_b32 s{Q}, s{w}, 11
    s_add_u32 s{S_CLB}, s{Q+1}, s{Q}""")
    A(f"s_lshl_b32 s{Q}, s{w}, 10\ns_add_u32 s{Q}, s{Q}, s{S_AI}\ns_lshl_b32 s{Q+1}, s{w}, 9\ns_add_u32 s{Q+1}, s{Q+1}, s{S_AI}\ns_add_u32 s{Q+1}, s{Q+1}, 4096")
    for off in (0,8192,32768,40960):
        A(f"s_add_u32 s{Q+2}, s{Q}, {off}\nbuffer_store_dwordx4 {v(SENT,4)}, v1, {WS}, s{Q+2} offen sc1\ns_add_u32 s{Q+2}, s{Q+1}, {off}\nbuffer_store_dwordx2 {v(SENT,2)}, v{L8}, {WS}, s{Q+2} offen sc1")
    for r in (S_B,S_BC):
        A(f"buffer_store_dwordx4 {v(SENT,4)}, v{BL}, {WS}, s{r} offen sc1\nbuffer_store_dwordx4 {v(SENT,4)}, v{BL}, {WS}, s{r} offen offset:1024 sc1")
    A(f"v_lshlrev_b32 v{t+4}, 2, v{t}\nv_lshl_add_u32 v{t+4}, v{t+1}, 14, v{t+4}\nbuffer_store_dword v{SENT}, v{t+4}, {WS}, s{S_CSB} offen sc1")
    c=t; g=t+1; u=t+4
    A(f"""v_and_b32 v{u}, 2, v{c}
    v_cmp_eq_u32 vcc, 0, v{u}
    v_mov_b32 v{u}, 0x44444444
    v_mov_b32 v{u+1}, 0xeeeeeeee
    v_cndmask_b32 v{IDX}, v{u+1}, v{u}, vcc
    v_mov_b32 v{u}, 0xf149f2ca
    v_cndmask_b32 v{NEG}, v{u}, 0, vcc""".replace(f"v_cndmask_b32 v{NEG}, v{u}, 0, vcc",f"v_cndmask_b32_e64 v{NEG}, v{u}, 0, vcc"))
    A(f"v_mov_b32 v{NEG+1}, v{NEG}\nv_mov_b32 v{SN1}, -1")
    for i in range(4): A(f"v_mov_b32 v{PB1+i}, 0\nv_mov_b32 v{PB2+i}, 0\nv_mov_b32 v{ONES+i}, 0x3f803f80")
    A(f"""v_bfe_u32 v{u}, v{c}, 2, 1
    v_lshlrev_b32 v{u}, 4, v{u}
    v_mov_b32 v{u+1}, 0x3f80
    v_lshlrev_b32 v{u}, v{u}, v{u+1}
    v_and_b32 v{u+1}, 2, v{c}
    v_lshrrev_b32 v{u+2}, 3, v{c}
    v_add_u32 v{u+1}, v{u+1}, v{u+2}
    v_and_b32 v{u+2}, 1, v{c}
    v_lshlrev_b32 v{u+2}, 1, v{u+2}
    v_xor_b32 v{u+2}, v{u+2}, v{g}
    v_lshl_add_u32 v{u+1}, v{u+2}, 2, v{u+1}""")
    for i in range(8): A(f"v_cmp_eq_u32 vcc, {i}, v{u+1}\nv_cndmask_b32 v{SEL1+i}, 0, v{u}, vcc")
    A(f"s_lshl_b32 s{Q}, s{w}, 11\ns_add_u32 s{Q}, s{Q}, {L_MEM}\nv_add_u32 v{MW}, s{Q}, v1")
    for p in range(1,4): A(f"v_xor_b32 v{MW+p}, {p*2048}, v{MW}")
    A(f"""v_lshrrev_b32 v{u}, 2, v{c}
    v_xor_b32 v{u+1}, v{u}, v{g}
    v_lshlrev_b32 v{u+1}, 3, v{u+1}
    v_lshl_add_u32 v{u+1}, v{c}, 5, v{u+1}
    s_lshl_b32 s{Q}, s{w}, 10
    s_add_u32 s{Q}, s{Q}, {L_X}
    v_add_u32 v{XW}, s{Q}, v{u+1}
    v_and_b32 v{u+1}, 3, v0
    v_xor_b32 v{u+2}, v{u+1}, v{g}
    v_lshlrev_b32 v{u+2}, 3, v{u+2}
    v_lshrrev_b32 v{u+3}, 2, v0
    v_lshl_add_u32 v{u+2}, v{u+3}, 5, v{u+2}
    v_add_u32 v{XR}, {L_X}, v{u+2}
    v_add_u32 v{VMR}, {L_VM}, v{L8}
    s_lshl_b32 s{Q}, s{w}, 9
    v_add_u32 v{VMW}, s{Q}, v{VMR}
    v_add_u32 v{KXR}, {L_KX}, v1
    ds_write_b128 v{KXR}, {v(PB1,4)} offset:{L_Z-L_KX}
    v_and_b32 v{L8}, 0x1f0, v1
    v_lshrrev_b32 v{DRP}, 5, v0
    v_lshl_add_u32 v{L8}, v{DRP}, 3, v{L8}
    v_lshlrev_b32 v{DRP}, 7, v0
    s_sub_u32 s{Q}, 3072, s{Q}
    v_add_u32 v{u+2}, s{Q}, v{DRP}
    v_cmp_gt_u32 vcc, 8, v0
    v_cndmask_b32 v{DRP}, v{u+2}, v{DRP}, vcc
    v_lshl_add_u32 v{u+2}, v{u}, 2, v{g}
    v_lshlrev_b32 v{u+2}, 11, v{u+2}
    v_lshl_add_u32 v{u+2}, v{u+1}, 4, v{u+2}
    s_lshl_b32 s{Q}, s{w}, 16
    s_lshl_b32 s{Q+1}, s{h}, 6
    s_add_u32 s{Q}, s{Q}, s{Q+1}
    v_add_u32 v{BS}, s{Q}, v{u+2}""")
    TB=t+8
    A(f"""v_and_b32 v{u+2}, 1, v{g}
    v_lshlrev_b32 v{TB}, 5, v{u+2}
    v_lshrrev_b32 v{u+2}, 1, v{g}
    v_lshl_add_u32 v{TB}, v{u+2}, 2, v{TB}
    v_lshrrev_b32 v{u+2}, 1, v{u}
    v_lshl_add_u32 v{TB}, v{u+2}, 4, v{TB}
    v_and_b32 v{u+2}, 1, v{u}
    v_add_u32 v{TB}, v{TB}, v{u+2}
    v_lshlrev_b32 v{TB}, 8, v{TB}
    v_lshl_add_u32 v{TB}, v{u+1}, 3, v{TB}
    v_bfe_u32 v{u+2}, v0, 2, 3
    v_lshl_add_u32 v{TB}, v{u+2}, 5, v{TB}
    s_mul_i32 s{Q}, s{w}, {32768+8192}
    v_add_u32 v{WV}, s{Q}, v1""")
    A(f"""s_mov_b32 s{S_S}, 0
    s_mov_b32 s{S_SC}, 0x3e0293ee
    s_mov_b32 s{S_HI}, 0xffff0000
    s_lshl_b32 s{Q}, s{h}, 13
    s_lshl_b32 s{Q+1}, s{w}, 11
    s_add_u32 s{Q}, s{Q}, s{Q+1}
    s_add_u32 s{S_KX}, s{Q}, {WS_KX}
    s_add_u32 s{S_VXO}, s{Q}, {WS_VX}
    s_add_u32 s{S_M0V}, s{Q+1}, {L_VX}
    s_lshl_b32 s{Q}, s{h}, 1
    s_add_u32 s{Q}, s{Q}, s{x}
    s_lshl_b32 s{Q+1}, s{Q}, 7
    s_add_u32 s{S_PR}, s{Q+1}, {WS_FL+F_PROG*128}
    s_cmp_eq_u32 s{w}, 0
    s_cselect_b32 s{S_PR}, s{S_PR}, 0x10000000
    s_mov_b32 s{S_TAG}, 0
    s_add_u32 s{S_CC}, s{S_CSB}, 0xc000
    s_mov_b32 s{S_CS}, s{S_CSB}
    s_mov_b32 s{S_CL}, s{S_CLB}
    s_lshl_b32 s{Q}, s{Q}, 12
    s_lshl_b32 s{Q+1}, s{w}, 10
    s_add_u32 s{Q}, s{Q}, s{Q+1}
    s_add_u32 s{S_VM}, s{Q}, {WS_KM}
    s_mov_b32 s{S_FI}, {WS_FL+F_KV*128}
    s_mov_b32 s{S_FT}, 64""")
    A(f"s_add_u32 s{Q}, s{S_VM}, {63*0x40000}\nbuffer_store_dwordx4 {v(SENT,4)}, v1, {WS}, s{Q} offen sc1")
    for n in range(12):
        mat,j=ORD[n>>2],n&3
        A(f"s_waitcnt vmcnt({8*W+6 if n<W else 8*W-8})\ns_barrier")
        if o.get('cs') and n&1==0: stamp(A,T0)
        if n==4:
            A(f"s_cmp_lg_u32 s{w}, 0\ns_cbranch_scc1 R_na\nv_mov_b32 v{T0}, 1\ns_mov_b64 exec, 1\nbuffer_atomic_add v{T0}, off, {s(S_DBG,4)}, 0 offset:{D_RDY*4}\ns_mov_b64 exec, -1")
            A.label('R_na')
        E=A.newlabel('wl')
        for ww in range(4):
            if mat==2 and ww!=j: continue
            N=A.newlabel('wn')
            A(f"s_cmp_lg_u32 s{w}, {ww}\ns_cbranch_scc1 {N}")
            for T in (range(8) if mat==2 else range(2)):
                A(f"v_xor_b32 v{u}, {j*32768+(T if mat==2 else 2*ww+T)*32}, v{TB}")
                for kl in range(2):
                    for m_ in range(4):
                        d=v(128+(T*2+kl)*8+2*m_,2) if mat==2 else a(mat*128+((((2*j+kl)^(2*ww))*2+T)*8)+2*m_,2)
                        A(f"ds_read_b64_tr_b16 {d}, v{u} offset:{trimm(kl,m_)}")
            A(f"s_branch {E}"); A.label(N)
        A.label(E)
        A("s_waitcnt lgkmcnt(0)\ns_barrier")
        chunk(n+W)
    for n in range(12+W,16): chunk(n)
    srd(A,S_B0,P_MEM,16384)
    A(f"""v_lshrrev_b32 v{u}, 2, v{c}
    v_and_b32 v{u+1}, 1, v{c}
    v_lshl_add_u32 v{u}, v{u}, 1, v{u+1}
    v_lshlrev_b32 v{u}, 11, v{u}
    v_bfe_u32 v{u+1}, v{c}, 1, 1
    v_lshl_add_u32 v{u}, v{u+1}, 5, v{u}
    v_lshl_add_u32 v{u}, v{g}, 3, v{u}
    s_lshl_b32 s{Q}, s{x}, 10
    s_lshl_b32 s{Q+1}, s{w}, 8
    s_add_u32 s{Q}, s{Q}, s{Q+1}""")
    for i in range(4): A(f"buffer_load_dwordx2 {v(M+2*i,2)}, v{u}, {s(S_B0,4)}, s{Q} offen offset:{64*i}")
    dbg=lambda r,off,n='':f"buffer_load_dword{n} {v(r,2 if n else 1)}, off, {s(S_DBG,4)}, 0 offset:{off} sc1"
    A(dbg(100,D_RDY*4)); A(dbg(101,D_INIT*4)); NX=6
    if o.get('wm',0):
        for r in (S_B,S_BC): A(f"buffer_load_dword v102, v{BL}, {WS}, s{r} offen sc1\nbuffer_load_dword v102, v{BL}, {WS}, s{r} offen offset:1024 sc1")
        A(f"v_lshlrev_b32 v103, 2, v{c}\nv_lshl_add_u32 v103, v{g}, 14, v103\nbuffer_load_dword v102, v103, {WS}, s{S_CSB} offen sc1"); NX=11
    A(f"s_lshl_b32 s{Q}, s{w}, 6\nv_xor_b32 v{TB}, s{Q}, v{TB}\ns_lshl_b32 s{Q}, s{w}, 13\nv_add_u32 v{u+1}, s{Q}, v1")
    for j in range(4):
        A(f"s_waitcnt vmcnt({24-8*j+NX if j<3 else 0})\ns_barrier")
        if o.get('cs') and j&1==0: stamp(A,T0)
        if j==3:
            A(f"v_readfirstlane_b32 s{Q}, v100\nv_readfirstlane_b32 s{Q+1}, v101\ns_cmp_ge_u32 s{Q}, 96\ns_cselect_b32 s{Q+1}, s{Q+1}, 0\ns_cmp_ge_u32 s{Q+1}, 1\ns_cbranch_scc1 R_rdy")
            spin_ge(A,S_DBG,D_RDY*4,96,T0,T1,Q)
            spin_ge(A,S_DBG,D_INIT*4,1,T0,T1,Q)
            A.label('R_rdy')
            A(dbg(104,D_P0*4,'x2')); A(dbg(106,XA*16)); A(dbg(107,XB*16)); A(f"buffer_load_dword v108, off, {WS}, s{S_FI} sc1")
        for T in range(2):
            A(f"v_xor_b32 v{u}, {j*32768+T*32}, v{TB}")
            for kl in range(2):
                for m_ in range(4): A(f"ds_read_b64_tr_b16 {v(64+(kl*2+T)*8+2*m_,2)}, v{u} offset:{trimm(kl,m_)}")
        A("s_waitcnt lgkmcnt(0)\ns_barrier")
        for k in range(8): A(f"ds_write_b128 v{u+1}, {v(64+4*k,4)} offset:{k*1024}")
        A(f"v_add_u32 v{u+1}, 0x8000, v{u+1}\ns_waitcnt lgkmcnt(0)")
    stamp(A,T0); u=104
    A(f"s_waitcnt vmcnt(0)\nv_readfirstlane_b32 s{Q}, v108\ns_cmp_ge_u32 s{Q}, 64\ns_cbranch_scc1 R_kv")
    spin_ge(A,S_WS,WS_FL+F_KV*128,64,T0,T1,Q)
    A.label('R_kv')
    stamp(A,T0)
    A(f"s_lshl_b32 s{Q}, s{w}, 11\ns_add_u32 s{S_M0K}, s{Q}, {L_KX}\ns_mov_b32 m0, s{S_M0K}")
    A(f"buffer_load_dwordx4 v1, {WS}, s{S_KX} offen sc1 lds\nbuffer_load_dwordx4 v1, {WS}, s{S_KX} offen offset:1024 sc1 lds\ns_add_u32 s{S_KX}, s{S_KX}, 0x40000")
    A(f"""v_readfirstlane_b32 s{Q}, v{u}
    v_readfirstlane_b32 s{Q+1}, v{u+1}
    v_min_u32 v{u+2}, v{u+2}, v{u+3}
    s_cmp_lt_u32 s{Q+1}, s{Q}
    s_cselect_b32 s{Q}, {8192 if not o.get('badpol') else 0}, {0 if not o.get('badpol') else 8192}
    s_add_u32 s{S_AO}, s{S_AO}, s{Q}
    s_add_u32 s{S_AI}, s{S_AI}, s{Q}
    s_add_u32 s{S_AIV}, s{S_AI}, 4096
    s_lshl_b32 s{Q}, s{w}, 9
    s_add_u32 s{S_AOV}, s{S_AO}, s{Q}
    s_add_u32 s{S_AOV}, s{S_AOV}, 4096
    s_lshl_b32 s{Q}, s{w}, 10
    s_add_u32 s{S_AO}, s{S_AO}, s{Q}
    s_add_u32 s{S_AI}, s{S_AI}, s{Q}
    s_xor_b32 s{S_AP}, s{S_AI}, 0x8000
    v_readfirstlane_b32 s{Q}, v{u+2}""")
    if o.get('xe'): A(f"s_mov_b32 s{S_VM}, 0x10000000")
    if o.get('xp'): A(f"s_mov_b32 s{S_PR}, 0x10000000")
    fill(A)
    A("s_waitcnt vmcnt(0)")
    stamp(A,T0)
    if o.get('ph'): A(f"s_lshl_b32 s92, s{x}, 5\ns_add_u32 s92, s92, s{h}\ns_lshl_b32 s92, s92, 2\ns_add_u32 s92, s92, s{w}\ns_lshl_b32 s92, s92, 12\ns_add_u32 s92, s92, {5*MB}")
    A(f"s_cmp_lt_u32 s{Q}, 32\ns_cbranch_scc1 R_slow\ns_branch R_fast")
    step_loop(A,'R_fast',False,stamp,o)
    step_loop(A,'R_slow',True,stamp,o)
    if not o.get('rd',1): done(A,stamp)
def done(A,stamp):
    w=S_W
    A.label('R_done')
    A(f"buffer_store_dwordx4 {v(PB2,4)}, v1, {WS}, s{S_VM} offen sc1")
    A(f"s_waitcnt vmcnt(0) lgkmcnt(0)\ns_barrier\ns_cmp_lg_u32 s{w}, 0\ns_cbranch_scc1 L_fin\nv_mov_b32 v{T1}, 64\ns_mov_b64 exec, 1\nbuffer_store_dword v{T1}, off, {WS}, s{S_PR} sc1\ns_mov_b64 exec, -1")
    stamp(A,T0)
    if WB[0]&1: wbl2(A)
    A('s_branch L_fin')
def probe(A):
    A(f"s_lshl_b32 s{Q}, s{S_RANK}, 16\ns_add_u32 s{Q}, s{Q}, 7168\ns_add_u32 s{Q+1}, s{Q}, 8192\ns_mov_b64 exec, 1\nv_mov_b32 v4, 0\nv_mov_b32 v5, 0")
    for rep in range(3):
        A(f"buffer_store_dword v4, off, {WS}, s{Q} sc1\nbuffer_store_dword v4, off, {WS}, s{Q+1} sc1\ns_waitcnt vmcnt(0)")
        for p in range(2):
            A(f"s_memtime s[{Q+2}:{Q+3}]\ns_waitcnt lgkmcnt(0)\nbuffer_load_dword v6, off, {WS}, s{Q+p} sc1\ns_waitcnt vmcnt(0)\ns_memtime s[{Q+4}:{Q+5}]\ns_waitcnt lgkmcnt(0)")
            A(f"s_sub_u32 s{Q+2}, s{Q+2}, s{Q+4}\nv_max_u32 v{4+p}, s{Q+2}, v{4+p}")
    A(f"buffer_atomic_umax v4, off, {s(S_DBG,4)}, 0 offset:{D_P0*4}\nbuffer_atomic_umax v5, off, {s(S_DBG,4)}, 0 offset:{D_P1*4}\nv_mov_b32 v6, 1\ns_waitcnt vmcnt(0)\nbuffer_atomic_add v6, off, {s(S_DBG,4)}, 0 offset:{D_RDY*4}\ns_mov_b64 exec, -1")
```

```python
from common import *
WS=s(S_WS,4); OPT={}; SC=[' sc1',' sc1']
S_S=32; S_SC=33; S_HI=34; S_RT=35; S_EH=36; S_SA=37; S_GO=38; S_FO=39; S_OO=40; Q=56
L8=2; OA=3; RW=4; RR=5; GA=6; BA=7; L32=8; T0=10; T1=11; ONE=9
NEG0=12; NEG1=16; NEGM=20; ONES=24; GW=28
ACC=44
def mf(d,A_,B_,c): return f"v_mfma_f32_16x16x32_bf16 {v(d,4)}, {A_ if isinstance(A_,str) else v(A_,4)}, {v(B_,4)}, {c if isinstance(c,str) else v(c,4)}"
cv=lambda d,r:f"v_cvt_pk_bf16_f32 v{d}, v{r}, v{r+1}"
def xred(A,r,t,op):
    A(f"v_mov_b32 v{t}, v{r}\nv_permlane16_swap_b32 v{r}, v{t}\n{op} v{r}, v{r}, v{t}\nv_mov_b32 v{t}, v{r}\nv_permlane32_swap_b32 v{r}, v{t}\n{op} v{r}, v{r}, v{t}")
XW=20; XR=21; FA=22; FT=23; FR=60; LS=61; L_X=147456
QR=64; KX=80; VX=112; VM=176; KP=184; XI=188
S_SP=41; S_FM=42; S_DF=43; S_JA=44; S_JS=45; S_EA=46; S_MD=47; S_OOB=48; S_DP=49; S_SF=50; S_LB=51; S_PO=52; S_OI=53; S_FP=54; S_HS=55
poll=f"s_mov_b64 exec, 0xfff1f\nbuffer_load_dword v{FR}, v{FA}, {WS}, 0 offen sc1\ns_mov_b64 exec, -1"
chk=f"v_cmp_lt_u32 vcc, v{FR}, v{FT}\ns_mov_b32 s{S_FM}, vcc_lo"
def need(A,mask,then=None):
    L=A.newlabel('fw'); E=A.newlabel('fe'); D=A.newlabel('fd')
    A(f"s_and_b32 s{Q+6}, s{S_FM}, {mask}\ns_cbranch_scc0 {E}")
    A.label(L)
    if OPT.get('pm',1): A(f"{poll.replace('0xfff1f',hex(mask))}\ns_andn2_b32 s{S_FM}, s{S_FM}, {mask}\ns_waitcnt vmcnt(0)\nv_cmp_lt_u32 vcc, v{FR}, v{FT}\ns_and_b32 s{Q+6}, vcc_lo, {mask}\ns_cbranch_scc0 {D}")
    else: A(f"{poll}\ns_waitcnt vmcnt(0)\n{chk}\ns_and_b32 s{Q+6}, s{S_FM}, {mask}\ns_cbranch_scc0 {D}")
    A(f"s_sleep {OPT.get('ps',1)}\ns_sub_u32 s{S_BUD}, s{S_BUD}, 1\ns_cbranch_scc0 {L}\ns_mov_b32 s{S_BUD}, 0")
    A.label(D)
    if then: then()
    A.label(E)
def es(A,k):
    if OPT.get('es'): A(f's_memrealtime s[{64+2*k}:{65+2*k}]')
def wl(r,k,x): return f"v_writelane_b32 v{r}, {x}, {k}"
ld=lambda d,so,off:f"buffer_load_dwordx4 {v(d,4)}, v1, {WS}, s{so} offen offset:{off}"
def set_a(A): A(f"s_add_u32 s{Q}, s{S_SA}, 1\ns_min_u32 s{Q}, s{Q}, {63 if OPT.get('dp',1) else 64}\n{wl(FT,0,f's{Q}')}\n{wl(FT,1,f's{Q}')}\ns_or_b32 s{S_FM}, s{S_FM}, 3")
def set_p(A): A(f"""s_lshr_b32 s{Q}, s{S_SP}, 3
    s_lshl_b32 s{Q+1}, s{Q}, 7
    s_add_u32 s{Q+1}, s{Q+1}, {WS_FL+F_Q*128}
    s_add_u32 s{Q}, s{Q}, 1
    s_lshr_b32 s{Q+2}, s{S_SP}, 2
    s_cmp_lt_u32 s{S_SP}, 8
    s_cselect_b32 s{Q}, s{Q+2}, s{Q}
    s_cselect_b32 s{Q+2}, 64, 32
    s_lshl_b32 s{Q}, s{Q}, 7
    s_add_u32 s{Q}, s{Q}, {WS_FL+F_KV*128}
    {wl(FA,2,f's{Q+1}')}
    {wl(FA,3,f's{Q}')}
    {wl(FT,3,f's{Q+2}')}
    s_or_b32 s{S_FM}, s{S_FM}, 12""")
MO=0xff00; MF=0xf0010
def set_s(A): A(f"s_mov_b64 exec, {MO}\nv_add_u32 v{FT}, 1, v{FT}\ns_mov_b64 exec, -1\ns_or_b32 s{S_FM}, s{S_FM}, {MO}")
def set_f(A): A(f"""s_lshr_b32 s{Q+6}, s{S_SF}, 3
    s_lshl_b32 s{Q+6}, s{Q+6}, 7
    s_add_u32 s{Q+6}, s{Q+6}, {WS_FL+F_BF*128}
    {wl(FA,4,f's{Q+6}')}
    {wl(FT,4,16)}
    s_mov_b64 exec, 0xf0000
    v_add_u32 v{FT}, 1, v{FT}
    s_mov_b64 exec, -1
    s_or_b32 s{S_FM}, s{S_FM}, {MF}""")
def sig(r):
    return f"s_barrier\ns_mov_b64 exec, 1\nv_mov_b32 v{ONE}, s{S_JA if r==S_DF else S_JS}\nbuffer_store_dword v{ONE}, off, {WS}, s{r}{SC[0]}\ns_mov_b64 exec, -1\ns_mov_b32 s{r}, s{S_OOB}"
def pre(A):
    i=S_RANK
    need(A,12)
    A(f"s_lshl_b32 s{Q}, s{S_SP}, 5\ns_add_u32 s{Q}, s{Q}, s{i}\ns_lshl_b32 s{Q+1}, s{Q}, 13\ns_lshl_b32 s{Q+2}, s{S_RT}, 12\ns_add_u32 s{Q+2}, s{Q+2}, s{Q+1}\ns_add_u32 s{Q+2}, s{Q+2}, {WS_QX}")
    for k in range(4): A(ld(QR+4*k,Q+2,k*1024))
    A(f"s_add_u32 s{Q+2}, s{Q+1}, {WS_KX}\ns_add_u32 s{Q+3}, s{Q+2}, 4096")
    for k in range(4): A(ld(KX+4*k,Q+2,k*1024)); A(ld(KX+16+4*k,Q+3,k*1024))
    A(f"s_lshl_b32 s{Q+2}, s{S_EH}, 12\ns_add_u32 s{Q+2}, s{Q+2}, s{Q+1}\ns_add_u32 s{Q+2}, s{Q+2}, {WS_VX}")
    for k in range(4): A(ld(VX+4*k,Q+2,k*1024))
    A(f"s_lshl_b32 s{Q}, s{Q}, 11\nbuffer_load_dwordx4 {v(XI,4)}, v{L32}, {s(S_A,4)}, s{Q} offen\nbuffer_load_dwordx4 {v(XI+4,4)}, v{L32}, {s(S_A,4)}, s{Q} offen offset:16")
    A(f"s_add_u32 s{Q}, s{S_JA}, 1\nv_readlane_b32 s{S_SP}, v{LS}, s{Q}")
    set_p(A)
def ldx(A,spec,sc=''):
    q=Q+4
    A(f"s_lshl_b32 s{q}, s{S_SA}, 5\ns_add_u32 s{q}, s{q}, s{S_RANK}")
    A(f"s_lshl_b32 s{q}, s{q}, 13\ns_add_u32 s{q}, s{q}, {WS_KM}")
    if spec: A(f"s_and_b32 s{q+1}, s{S_FM}, 3\ns_cselect_b32 s{q}, s{S_OOB}, s{q}")
    A(f"s_lshl_b32 s{q+1}, s{S_W}, 10\ns_add_u32 s{q+1}, s{q+1}, s{q}\ns_add_u32 s{q+2}, s{q+1}, 4096")
    for x in range(2): A(f"buffer_load_dwordx2 {v(KP+2*x,2)}, v1, {WS}, s{q+1+x} offen offset:8{sc}")
    A(f"s_lshl_b32 s{q+1}, s{S_EH}, 11\ns_add_u32 s{q+1}, s{q+1}, s{q}\ns_add_u32 s{q+2}, s{q+1}, 4096")
    for p in range(2):
        for x in range(2): A(f"buffer_load_dwordx2 {v(VM+4*p+2*x,2)}, v1, {WS}, s{q+1+x} offen offset:{p*1024}{sc}")
def att(A):
    i=S_RANK; w=S_W
    KM=128; S0=144; S1=148; SM=152; P=156; BH=160; BL=164; Lr=168; R=172; O=196; XU=212
    G=R+2
    for k in range(8):
        A(mf(S1 if k&1 else S0,KX+16*(k&1)+4*(k>>1),QR+4*(k>>1),(NEG1 if k&1 else NEG0) if k<2 else (S1 if k&1 else S0)))
        A(f"v_lshlrev_b32 v{XU+2*k}, 16, v{XI+k}\nv_and_b32 v{XU+2*k+1}, s{S_HI}, v{XI+k}")
    A(f"v_mul_f32 v{G}, v{XU}, v{GW}\nv_mul_f32 v{G+1}, v{XU+1}, v{GW+1}")
    for k in range(2,16): A(f"v_fmac_f32 v{G+(k&1)}, v{XU+k}, v{GW+k}")
    A(f"v_add_f32 v{G}, v{G}, v{G+1}")
    A(f"v_max3_f32 v{R}, v{S0}, v{S0+1}, v{S0+2}\nv_max3_f32 v{R+1}, v{S0+3}, v{S1}, v{S1+1}\nv_max3_f32 v{R}, v{R}, v{S1+2}, v{S1+3}\nv_max_f32 v{R}, v{R}, v{R+1}\nv_mov_b32 v{BL}, 0\nv_mov_b32 v{BH+1}, 0")
    A(f"s_or_b32 s{S_FM}, s{S_FM}, s{S_EA}")
    L1=A.newlabel('dp'); L2=A.newlabel('dq'); L3=A.newlabel('dr')
    dl=lambda:A(f"s_cmp_lg_u32 s{S_SA}, 63\ns_cbranch_scc1 {L3}\ns_sleep {OPT['dd']}\n{L3}:") if OPT.get('dd') else 0
    need(A,3,lambda:(es(A,0),dl(),ldx(A,False),A("s_waitcnt vmcnt(0)")))
    if OPT.get('dp',1):
        A(f"s_cmp_lg_u32 s{S_SA}, 63\ns_cbranch_scc1 {L2}\n{L1}:\ns_waitcnt vmcnt(0)\nv_max3_u32 v{T0}, v{KP}, v{KP+2}, v{VM}\nv_max3_u32 v{T1}, v{VM+2}, v{VM+4}, v{VM+6}\nv_max_u32 v{T0}, v{T0}, v{T1}\nv_cmp_eq_u32 vcc, -1, v{T0}\ns_cbranch_vccz {L2}")
        ldx(A,False,' sc1')
        A(f"s_sub_u32 s{S_BUD}, s{S_BUD}, 1\ns_cbranch_scc0 {L1}\ns_mov_b32 s{S_BUD}, 0\ns_waitcnt vmcnt(0)\n{L2}:")
    es(A,1)
    A(f"ds_write2_b32 v{XW}, v{KP}, v{KP+2} offset0:0 offset1:1\nds_write2_b32 v{XW}, v{KP+1}, v{KP+3} offset0:128 offset1:129\ns_waitcnt vmcnt(16) lgkmcnt(0)\ns_barrier")
    for k in range(8): A(f"ds_read_b64_tr_b16 {v(KM+2*k,2)}, v{XR} offset:{k*512}")
    A(sig(S_DP)[10:])
    for k,sh in enumerate((8,4,2,1)):
        A(f"v_add_f32_dpp v{G}, v{G}, v{G} row_ror:{sh} row_mask:0xf bank_mask:0xf")
        A(f"s_waitcnt lgkmcnt({6-2*k})"); A(mf(SM,KM+4*k,QR+4*k,'0' if k==0 else SM))
    xred(A,G,G+1,'v_add_f32')
    A(f"v_add_f32 v{SM}, v{SM}, v{SM+2}\nv_add_f32 v{SM+1}, v{SM+1}, v{SM+3}\nv_max3_f32 v{R}, v{R}, v{SM}, v{SM+1}")
    xred(A,R,R+1,'v_max_f32')
    A(f"v_mul_f32 v{R}, s{S_SC}, v{R}")
    for r in range(S0,S0+10): A(f"v_fma_f32 v{r}, v{r}, s{S_SC}, -v{R}")
    for r in range(S0,S0+10): A(f"v_exp_f32 v{r}, v{r}")
    for j in range(5): A(cv(P+j,S0+2*j))
    A(f"v_mov_b32 v{BL+1}, v{BH}")
    A(mf(Lr,ONES,P,'0'))
    A(f"v_mov_b64 {v(BH+2,2)}, {v(BH,2)}\nv_mov_b64 {v(BL+2,2)}, {v(BL,2)}")
    gt=[f"v_mul_f32 v{G}, 0xbfb8aa3b, v{G}",f"v_exp_f32 v{G}, v{G}",f"v_mfma_f32_16x16x16_bf16 {v(Lr,4)}, {v(ONES,2)}, {v(BH,2)}, {v(Lr,4)}\nv_add_f32 v{G}, 1.0, v{G}",f"v_rcp_f32 v{G}, v{G}"]
    for j in range(4):
        A(mf(O+4*j,VX+4*j,P,'0'))
        if j<2: A(gt[2*j])
        A(mf(O+4*j,VM+4*(j>>1),BL if j&1 else BH,O+4*j))
        if j<2: A(gt[2*j+1])
    A(f"""s_lshl_b32 s{Q}, s{S_SA}, 5
    s_add_u32 s{Q}, s{Q}, s{i}
    s_lshl_b32 s{Q}, s{Q}, 2
    s_add_u32 s{Q}, s{Q}, s{S_GO}
    v_rcp_f32 v{R}, v{Lr}
    s_lshl_b32 s{Q+2}, s{S_SA}, 18
    s_add_u32 s{Q+2}, s{Q+2}, s{S_OO}
    s_mov_b32 s{S_DF}, s{S_FO}""")
    for jj in range(2):
        for r in range(O+8*jj,O+8*jj+8): A(f"v_mul_f32 v{r}, v{R}, v{r}")
        for j in range(4): A(cv(S0+4*jj+j,O+8*jj+2*j))
        x=f"buffer_store_dwordx4 {v(S0+4*jj,4)}, v1, {WS}, s{Q+2} offen offset:{jj*1024}@"+(f"\ns_mov_b64 exec, 1\nbuffer_store_dword v{G}, off, {WS}, s{Q}@\ns_mov_b64 exec, -1" if jj else "")
        if SC[1]==SC[2]: A(x.replace('@',SC[1]))
        else:
            L1=A.newlabel('o1'); L2=A.newlabel('o2')
            A(f"s_cmp_lg_u32 s{S_MD}, 3\ns_cbranch_scc1 {L1}\n{x.replace('@',SC[2])}\ns_branch {L2}\n{L1}:\n{x.replace('@',SC[1])}\n{L2}:")
    A(f"s_add_u32 s{S_JA}, s{S_JA}, 1\ns_mov_b32 s{S_SA}, s{S_SP}\ns_mov_b32 s{S_EA}, 3")
    set_a(A)
AO=lambda:OPT.get('al',3)&1
AP=lambda:OPT.get('al',3)&2
FB=228; Gv=244; RING=128
def dma(A):
    need(A,MO); es(A,4)
    A(f"s_xor_b32 s{S_LB}, s{S_LB}, 0x10000\nv_xor_b32 v{RR}, 0x10000, v{RR}\ns_lshl_b32 s{Q}, s{S_S}, 18\ns_add_u32 s{Q}, s{Q}, s{S_OI}")
    for c in range(4):
        A(f"s_add_u32 m0, s{S_LB}, {c*16384}\ns_add_u32 s{Q+1}, s{Q}, {(c>>1)*4096+(c&1)*32768 if AO() else (c>>1)*131072+(c&1)*16384}")
        for k in range(4): A(f"buffer_load_dwordx4 v1, {WS}, s{Q+1} offen offset:{k*1024} sc1 lds")
def fld(A,part=0):
    es(A,7); need(A,[MF,0x10,MF&~0x10][part]); es(A,8)
    A(f"s_lshl_b32 s{Q+2}, s{S_SF}, 16\ns_lshl_b32 s{Q+3}, s{S_SF}, 7")
    A(f"s_lshl_b32 s{Q}, s{S_SF}, 18\ns_min_u32 s{Q}, s{Q}, s{S_OOB}")
    for k in [range(8),range(4),range(4,8)][part]:
        if k>3 and AP(): A(f"s_add_u32 s{Q+1}, s{Q}, {WS_KX+(k-4)*65536}\nbuffer_load_dwordx2 {v(FB+2*k,2)}, v{BA}, {WS}, s{Q+1} offen sc1")
        else: A(f"s_add_u32 s{Q+1}, s{Q+2}, {WS_BF+k*4*MB}\nbuffer_load_dwordx2 {v(FB+2*k,2)}, v{BA}, {WS}, s{Q+1} offen")
    if part!=1: A(f"buffer_load_dword v{Gv}, v{GA}, {WS}, s{Q+3} offen sc1")
def fin(A):
    t=RING
    for k in range(16): A(f"v_lshlrev_b32 v{t+2*k}, 16, v{FB+k}\nv_and_b32 v{t+2*k+1}, s{S_HI}, v{FB+k}")
    for u in (t,t+16):
        for k in range(4): A(f"v_add_f32 v{u+k}, v{u+k}, v{u+4+k}\nv_add_f32 v{u+8+k}, v{u+8+k}, v{u+12+k}")
        for k in range(4): A(f"v_add_f32 v{u+k}, v{u+k}, v{u+8+k}")
    for k in range(4): A(f"v_sub_f32 v{t+16+k}, v{t+16+k}, v{t+k}")
    for k in range(4): A(f"v_fma_f32 v{t+k}, v{t+16+k}, v{Gv}, v{t+k}")
    A(cv(t,t)); A(cv(t+1,t+2))
    A(f"buffer_store_dwordx2 {v(t,2)}, v{OA}, {s(S_OUT,4)}, s{Q+2} offen {OPT.get('nto','')}")
def gstage(A,last):
    D=6; PK=160
    rd=lambda n:A(f"ds_read_b128 {v(RING+4*(n&7),4)}, v{RR} offset:{n*1024}")
    def put(rt):
        for j in range(4): A(cv(PK+4*rt+j,ACC+8*rt+2*j))
        A(f"buffer_store_dwordx4 {v(PK+4*rt,4)}, v1, {WS}, s{Q+7} offen offset:{rt*1024}{SC[2 if last and not OPT.get('aps') else 1]}")
    A(f"s_lshl_b32 s{Q+7}, s{S_S}, {18 if AP() else 16}\ns_add_u32 s{Q+7}, s{Q+7}, s{S_PO}\ns_mov_b32 s{S_DP}, s{S_FP}\ns_mov_b32 s{S_HS}, s{S_S}\ns_add_u32 s{S_JS}, s{S_JS}, 1")
    if not last: A(f"v_readlane_b32 s{S_S}, v{LS}, s{S_JS}"); set_s(A)
    A(f"s_waitcnt vmcnt({12 if last else 22})\ns_barrier")
    nr=0; es(A,5)
    for n in range(64):
        rt,k=n>>5,n&31
        while nr<min(64,n+D):
            if last and nr and nr%16==0: A(f"s_waitcnt vmcnt({12-nr//4})\ns_barrier")
            rd(nr); nr+=1
        A(f"s_waitcnt lgkmcnt({nr-1-n})")
        for nt in range(2): A(mf(ACC+8*rt+4*nt,a((k*2+nt)*4,4),RING+4*(n&7),'0' if k==0 else ACC+8*rt+4*nt))
        if last:
            if n==44: put(0)
            if n==43 and OPT.get('wb',0)&4: wbl2(A)
        else:
            if n==10: A("s_waitcnt vmcnt(18)"); A(sig(S_DF)); A(poll)
            if n==34: A("s_waitcnt vmcnt(0)"); A(chk); fld(A); ldx(A,True); A(f"s_and_b32 s{S_EA}, s{S_FM}, 3")
            if n==52: A(poll)
    if not last: put(0)
    put(1)
    if not last: A("s_waitcnt vmcnt(2)"); A(chk); fin(A)
    if not last: A(f"s_mov_b32 s{S_SF}, s{S_HS}"); set_f(A)
def tail_role(A,stamp,o):
    i=S_RANK; w=S_W; c=64; g=65; u=66; OPT.update(o)
    segs=[[] for y in range(6)]; fr=list(o.get('tf',[104,101,143,137,125,127]))
    for sg in range(64):
        y=min(range(6),key=lambda y:(fr[y],y)); segs[y].append(sg); fr[y]=max(fr[y],o.get('t0',20.5)+o.get('t1',2.31)*(sg+1))+o.get('tc',3.8)
    if o.get('v'): print(segs)
    assert sorted(sum(segs,[]))==list(range(64)) and all(len(L)!=1 for L in segs)
    A(f"v_mov_b32 v{LS}, 64")
    for y,L in enumerate(segs):
        N=A.newlabel('sl')
        A(f"s_cmp_lg_u32 s{S_Y}, {y}\ns_cbranch_scc1 {N}")
        if not L: A("s_branch L_fin")
        for j,sg in enumerate(L): A(wl(LS,j,sg))
        A.label(N)
    srd(A,S_B0,P_WO,8*MB); srd(A,S_B1,P_GW,2048); srd(A,S_A,P_X,4*MB)
    A(f"""v_lshrrev_b32 v{u}, 2, v0
    v_lshlrev_b32 v{u}, 11, v{u}
    v_and_b32 v{u+1}, 3, v0
    v_lshl_add_u32 v{u}, v{u+1}, 4, v{u}
    s_lshr_b32 s{Q+3}, s{i}, 3
    s_lshl_b32 s{Q}, s{Q+3}, 21
    s_and_b32 s{Q+4}, s{i}, 7
    s_lshl_b32 s{Q+4}, s{Q+4}, 2
    s_add_u32 s{Q+4}, s{Q+4}, s{w}
    s_lshl_b32 s{Q+1}, s{Q+4}, 6
    s_add_u32 s{Q}, s{Q}, s{Q+1}
    s_lshl_b32 s{Q+1}, s{i}, 6
    s_lshl_b32 s{S_PO}, s{Q+3}, {16 if AP() else 22}
    s_lshl_b32 s{Q+4}, s{Q+4}, 11
    s_add_u32 s{S_PO}, s{S_PO}, s{Q+4}
    s_add_u32 s{S_PO}, s{S_PO}, {WS_KX if AP() else WS_AP}
    s_lshl_b32 s{S_LB}, s{w}, 12
    s_lshl_b32 s{S_OI}, s{Q+3}, 15
    s_add_u32 s{S_OI}, s{S_OI}, s{S_LB}
    s_lshl_b32 s{S_OI}, s{S_OI}, {AO()}
    s_add_u32 s{S_OI}, s{S_OI}, {WS_QX if AO() else WS_O}
    v_add_u32 v{u}, s{Q}, v{u}
    s_lshl_b32 s{Q+2}, s{w}, 15
    v_lshrrev_b32 v{u+2}, 2, v0
    v_lshlrev_b32 v{u+2}, 6, v{u+2}
    v_lshl_add_u32 v{u+2}, v{u+1}, 3, v{u+2}
    v_add_u32 v{u+2}, s{Q+2}, v{u+2}
    v_lshlrev_b32 v{L32}, 5, v0
    buffer_load_dwordx4 {v(ACC,4)}, v{L32}, {s(S_B1,4)}, 0 offen
    buffer_load_dwordx4 {v(ACC+4,4)}, v{L32}, {s(S_B1,4)}, 0 offen offset:16""")
    def dm(n): A(f"s_add_u32 m0, s{Q+2}, {(n&31)*1024}\ns_mov_b32 s{Q}, {n*32768}\nbuffer_load_dwordx4 v{u}, {s(S_B0,4)}, s{Q} offen lds")
    for n in range(32): dm(n)
    A(f"""s_mov_b32 s{S_SC}, 0x3e0293ee
    s_mov_b32 s{S_HI}, 0xffff0000
    s_lshr_b32 s{S_RT}, s{w}, 1
    s_and_b32 s{S_EH}, s{w}, 1
    v_mov_b32 v{ONE}, 1
    v_lshlrev_b32 v{L8}, 3, v0
    v_and_b32 v{c}, 15, v0
    v_lshrrev_b32 v{g}, 4, v0
    s_lshl_b32 s{Q}, s{S_RT}, 4
    v_add_u32 v{u+3}, s{Q}, v{c}
    v_lshlrev_b32 v{GA}, 2, v{u+3}
    v_add_u32 v{GA}, {WS_G}, v{GA}
    v_lshlrev_b32 v{OA}, 11, v{u+3}
    v_lshl_add_u32 v{OA}, v{g}, 3, v{OA}
    s_lshl_b32 s{Q}, s{S_EH}, 5
    s_add_u32 s{Q}, s{Q}, s{Q+1}
    v_add_u32 v{OA}, s{Q}, v{OA}
    s_lshl_b32 s{Q}, s{i}, 11
    s_lshl_b32 s{Q+1}, s{S_RT}, 10
    s_add_u32 s{Q}, s{Q}, s{Q+1}
    s_lshl_b32 s{Q+1}, s{S_EH}, 3
    s_add_u32 s{Q}, s{Q}, s{Q+1}
    v_add_u32 v{BA}, s{Q}, v1
    v_mov_b32 v{RR}, v1
    v_lshlrev_b32 v{u+4}, 2, v{g}
    v_sub_u32 v{u+3}, v{u+3}, v{u+4}
    v_mov_b32 v{u+4}, 0xf149f2ca""")
    for k in range(8): A(f"v_cmp_gt_i32 vcc, {(k>>2)*16+(k&3)}, v{u+3}\nv_cndmask_b32 v{NEG0+k}, 0, v{u+4}, vcc")
    for k in range(4): A(f"v_mov_b32 v{ONES+k}, 0x3f803f80")
    A(f"""v_lshrrev_b32 v{u+3}, 2, v{c}
    v_xor_b32 v{u+3}, v{u+3}, v{g}
    v_lshlrev_b32 v{u+3}, 3, v{u+3}
    v_lshl_add_u32 v{u+3}, v{c}, 5, v{u+3}
    s_lshl_b32 s{Q}, s{w}, 10
    s_add_u32 s{Q}, s{Q}, {L_X}
    v_add_u32 v{XW}, s{Q}, v{u+3}
    v_xor_b32 v{u+3}, v{u+1}, v{g}
    v_lshlrev_b32 v{u+3}, 3, v{u+3}
    v_lshrrev_b32 v{u+4}, 2, v0
    v_lshl_add_u32 v{u+3}, v{u+4}, 5, v{u+3}
    v_add_u32 v{XR}, {L_X}, v{u+3}
    s_mov_b32 s{Q}, 0x10000000
    s_cmp_eq_u32 s{w}, 0
    s_cselect_b32 s{S_GO}, {WS_G}, s{Q}
    s_cselect_b32 s{S_FO}, {WS_FL+F_O*128}, s{Q}
    s_lshl_b32 s{Q}, s{S_Y}, 5
    s_add_u32 s{Q}, s{Q}, s{i}
    s_lshl_b32 s{Q}, s{Q}, 7
    s_add_u32 s{S_FO}, s{S_FO}, s{Q}
    s_add_u32 s{S_FP}, s{S_FO}, {(F_P-F_O)*128}
    s_lshl_b32 s{S_OO}, s{S_RT}, {12 if AO() else 17}
    s_lshl_b32 s{Q}, s{i}, {12+AO()}
    s_add_u32 s{S_OO}, s{S_OO}, s{Q}
    s_lshl_b32 s{Q}, s{S_EH}, 11
    s_add_u32 s{S_OO}, s{S_OO}, s{Q}
    s_add_u32 s{S_OO}, s{S_OO}, {WS_QX if AO() else WS_O}""")
    A("s_waitcnt vmcnt(32)")
    for k in range(8): A(f"v_lshlrev_b32 v{GW+2*k}, 16, v{ACC+k}\nv_and_b32 v{GW+2*k+1}, s{S_HI}, v{ACC+k}")
    for grp in range(8):
        A(f"s_waitcnt vmcnt({24 if grp<5 else 8*(7-grp)})")
        for ks in range(4*grp,4*grp+4):
            for nt in range(2):
                for hf in range(2): A(f"ds_read_b64_tr_b16 {a((ks*2+nt)*4+2*hf,2)}, v{u+2} offset:{(ks&15)*2048+hf*1024+nt*32}")
        if grp<4:
            A("s_waitcnt lgkmcnt(0)")
            for n in range(32+8*grp,40+8*grp): dm(n)
    if o.get('dry',0):
        assert AP()
        A(f"s_waitcnt lgkmcnt(0)\ns_barrier\ns_mov_b32 s{S_S}, 0x400\ns_mov_b32 s{S_FM}, 0\ns_mov_b32 s{S_MD}, 5\nv_mov_b32 v{FA}, 0\ns_branch T_last")
        A.label('T_init')
    A(f"""s_waitcnt lgkmcnt(0)
    v_readlane_b32 s{S_S}, v{LS}, 0
    s_mov_b32 s{S_OOB}, 0x10000000
    s_mov_b32 s{S_DF}, s{S_OOB}
    s_mov_b32 s{S_DP}, s{S_OOB}
    s_mov_b32 s{S_SF}, 0x1000
    s_mov_b32 s{S_MD}, 0
    s_mov_b32 s{S_JA}, 0
    s_mov_b32 s{S_JS}, 0
    s_mov_b32 s{S_EA}, 3
    s_mov_b32 s{S_FM}, 0
    s_mov_b32 s{S_SA}, s{S_S}
    s_mov_b32 s{S_SP}, s{S_S}
    s_lshl_b32 s{Q}, s{i}, 8
    s_add_u32 s{Q}, s{Q}, {WS_FL+F_PROG*128}
    v_mov_b32 v{FA}, s{Q}
    s_add_u32 s{Q}, s{Q}, 128
    {wl(FA,1,f's{Q}')}
    v_mov_b32 v{FT}, 0
    v_mov_b32 v{FR}, 0
    {wl(FT,2,16)}
    s_lshl_b32 s{Q}, s{S_Y}, 5
    s_and_b32 s{Q+1}, s{i}, 24
    s_add_u32 s{Q+1}, s{Q+1}, s{Q}
    s_lshl_b32 s{Q+1}, s{Q+1}, 7
    s_add_u32 s{Q+1}, s{Q+1}, {WS_FL+(F_O-8)*128}
    s_mov_b64 exec, {MO}
    v_lshl_add_u32 v{FA}, v0, 7, s{Q+1}
    s_lshr_b32 s{Q+1}, s{i}, 2
    s_add_u32 s{Q+1}, s{Q+1}, s{Q}
    s_lshl_b32 s{Q+1}, s{Q+1}, 7
    s_add_u32 s{Q+1}, s{Q+1}, {WS_FL+(F_P-128)*128}
    s_mov_b64 exec, 0xf0000
    v_lshl_add_u32 v{FA}, v0, 10, s{Q+1}
    s_mov_b64 exec, -1""")
    A(f"s_lshl_b32 s{Q}, s{S_VX}, 4\nbuffer_load_dword v{ACC}, off, {s(S_DBG,4)}, s{Q} sc1")
    set_a(A); set_p(A); set_s(A)
    stamp(A,T0)
    tf_=o.get('tfast',5)
    A(f"s_waitcnt vmcnt(0)\nv_readfirstlane_b32 s{Q}, v{ACC}\ns_cmp_lt_u32 s{Q}, {32 if not o.get('fakexcc') else 999}\ns_cbranch_scc1 ST_pre")
    for P in ('','S'):
        SC[:]=[' sc1' if P or not tf_&1 else '',' sc1' if P or not tf_&2 else '',' sc1' if P or not tf_&6 else '']
        A.label(P+'T_pre')
        pre(A)
        A(f"s_cmp_eq_u32 s{S_MD}, 2\ns_cbranch_scc1 {P}T_g\ns_waitcnt vmcnt(0)\ns_cmp_eq_u32 s{S_MD}, 0\ns_cbranch_scc1 {P}T_att\ns_mov_b32 s{S_MD}, 2")
        A.label(P+'T_loop')
        dma(A)
        A(f"s_cmp_lt_u32 s{S_SP}, 64\ns_cbranch_scc1 {P}T_att\ns_waitcnt vmcnt(0)\n{sig(S_DP)}\ns_branch {P}T_g")
        A.label(P+'T_att')
        att(A); es(A,2)
        A(f"s_cmp_eq_u32 s{S_MD}, 2\ns_cbranch_scc1 {P}T_pre\ns_waitcnt vmcnt(0)\n{sig(S_DF)}\ns_add_u32 s{S_MD}, s{S_MD}, 1\ns_cmp_eq_u32 s{S_MD}, 1\ns_cbranch_scc1 {P}T_pre")
        A.label(P+'T_last'); es(A,3)
        dma(A); gstage(A,True)
        if o.get('dry',0): A(f"s_cmp_eq_u32 s{S_MD}, 5\ns_cbranch_scc1 T_init")
        es(A,6); A(f"s_waitcnt vmcnt(0)\n{sig(S_DP)}")
        fld(A,2); A("s_waitcnt vmcnt(0)"); es(A,9); fin(A); stamp(A,T0)
        A("s_branch T_end")
        A.label(P+'T_g')
        gstage(A,False)
        stamp(A,T0)
        A(f"s_cmp_lg_u32 s{S_JS}, s{S_JA}\ns_cbranch_scc1 {P}T_loop\ns_mov_b32 s{S_MD}, 3")
        A.label(P+'T_fb'); es(A,6)
        A(f"s_waitcnt vmcnt(0)\n{sig(S_DP)}")
        fld(A); A("s_waitcnt vmcnt(0)"); es(A,9); fin(A)
        stamp(A,T0)
        A(f"s_mov_b32 s{S_SF}, s{S_SA}"); set_f(A); fld(A,1)
        if o.get('wb',0)&2: wbl2(A)
        A(f"s_branch {P}T_att")
    A.label('T_end')
    if o.get('wb',0)&8: A("s_waitcnt vmcnt(0)\ns_barrier"); wbl2(A,not o['wb']&16)
    if o.get('es'):
        es(A,10); A("s_waitcnt vmcnt(0)"); es(A,11); A("s_waitcnt lgkmcnt(0)")
        for k in range(12): A(wl(T0,k,f's{64+2*k}'))
        A(f"s_and_b32 s98, s98, 0xfffff000\ns_lshl_b32 s{Q}, s{w}, 6\ns_add_u32 s98, s98, s{Q}\nv_lshlrev_b32 v{T1}, 2, v0\ns_mov_b64 exec, 0xfff\nbuffer_store_dword v{T0}, v{T1}, {WS}, s98 offen offset:1024\ns_mov_b64 exec, -1")
```

```python
from common import *
L_MEM=131072; L_X=139264; L_VM=143360; L_KX=145408; L_VX=153600
IDX=2; MW=3; XW=7; XR=8; L8=9; VMR=10; VMW=11; KXR=12; WV=13; BS=15; BL=16; L4=17; T0=18; T1=19
SEL1=20; SEL2=24; NEG=28; SN1=30; PB1=32; PB2=36; SENT=40; ONES=44; M=48
S_X=32; S_S=33; S_AO=34; S_AI=35; S_AOV=36; S_AIV=37; S_B=38; S_B2=39; S_CL=40; S_CS=41; S_CC=42; S_KX=43; S_VXO=44
S_KM=45; S_VM=46; S_PR=47; S_FI=48; S_FT=49; S_SC=50; S_M0K=51; S_M0V=52; S_BC=53; S_AVC=54; S_HI=55; Q=56; S_CLB=62; S_CSB=63
WS=s(S_WS,4)
def smf(d,A_,B_): return f"v_smfmac_f32_16x16x64_bf16 {v(d,4)}, {v(A_,4)}, {B_}, v{IDX}"
def mf(d,A_,B_,c): return f"v_mfma_f32_16x16x32_bf16 {v(d,4)}, {v(A_,4)}, {v(B_,4)}, {c if isinstance(c,str) else v(c,4)}"
def trimm(ksl,m): return (64*ksl+8*(m>>1)+2*(m&1))*256
DRP=14; S_AP=95; S_TAG=96; L_Z=L_KX+16384
def wv_read(n,buf):
    r=[f"ds_read_b128 {v(buf+4*m,4)}, v{WV} offset:{(n&3)*2048+m*1024}" for m in range(2)]
    if n&3==3: r.append(f"v_xor_b32 v{WV}, {[1,3,1,3][n>>2]*32768}, v{WV}")
    return r
WBUF=[96,104,120]
dm2=lambda r:f"buffer_load_dwordx4 v1, {WS}, s{r} offen sc1 lds\nbuffer_load_dwordx4 v1, {WS}, s{r} offen offset:1024 sc1 lds"
VE=[0,0]
def fill(A):
    for n in range(3 if VE[0] or VE[1] else 2):
        for t in wv_read(n,WBUF[n]): A(t)
    for r in list(range(80,96,2))+list(range(112,120,2)): A(f"v_mov_b64 {v(r,2)}, 0")
def gaps(A,ms,fl):
    for i,m in enumerate(ms):
        A(m)
        for t in (fl[i] if i<len(fl) else []): A(t)
def step_loop(A,name,slow,stamp,o):
    sc=' sc1' if slow else ''
    ph=o.get('ph') and not slow
    def P(k,b=None):
        if ph and o.get('ack'):
            if k in (2,3): return
            if k in (8,10):
                A(f"s_memtime s[{64+2*k}:{65+2*k}]\ns_waitcnt vmcnt(0)"); k={8:2,10:3}[k]
        if ph:
            A(f"s_memtime s[{64+2*k}:{65+2*k}]")
            if b is not None: A(f"s_mov_b32 s{88+b}, s{S_BUD}")
    def slp(k,d):
        n=o.get(k,d)
        if n>=64: A(f"s_sleep {n//64}")
        n%=64
        if n>=4: A(f"s_nop {n//4-1}")
    OUT=[]
    def bud(E):
        L=A.newlabel('bd'); return f"s_sub_u32 s{S_BUD}, s{S_BUD}, 1\ns_cbranch_scc0 {L}\ns_mov_b32 s{S_BUD}, 0\ns_branch {E}\n{L}:"
    cv=lambda d,r:f"v_cvt_pk_bf16_f32 v{d}, v{r}, v{r+1}"
    pa=lambda d,b:f"v_pk_add_f32 {v(d,2)}, {v(d,2)}, {v(b,2)}"
    sw=lambda a_,b_:f"v_permlane32_swap_b32 v{a_}, v{b_}"
    ldC=lambda r:f"buffer_load_dwordx4 {v(r,4)}, v1, {WS}, s{S_CL} offen sc1\nbuffer_load_dwordx4 {v(r+4,4)}, v1, {WS}, s{S_CL} offen offset:1024 sc1"
    chk8=lambda r:[f"v_max3_u32 v{T0}, v{r}, v{r+1}, v{r+2}",f"v_max3_u32 v{T1}, v{r+3}, v{r+4}, v{r+5}",f"v_max3_u32 v{T0}, v{T0}, v{r+6}, v{r+7}",f"v_max_u32 v{T0}, v{T0}, v{T1}",f"v_cmp_eq_u32 vcc, -1, v{T0}"]
    ad=lambda d,x_,y_:f"v_add_f32 v{d}, v{x_}, v{y_}"
    tag=lambda d,r:f"v_bfi_b32 v{d}, 1, s{S_TAG}, v{r}"
    bo=lambda d,x_,y_,z_,t:f"v_bitop3_b32 v{d}, {x_}, {y_}, {z_} bitop3:{hex(t)}"
    TG=f"s{S_TAG}"; N1=["s_nop 1"]
    drop=o.get('drop',1); c2=o.get('c2',0); a2=o.get('a2',1); b2=o.get('b2',1)
    def nops(n): return "".join(f"s_nop {min(n-k,64)//4-1}\n" for k in range(0,n-3,64))
    def piped(F,E,sets,ld,ck,d,pre,done):
        k=len(sets); L=A.newlabel('pl'); Y=[A.newlabel('py') for r in sets]; G=A.newlabel('pg')
        x=f"{F}:\ns_mov_b64 exec, vcc\n{ld(sets[0])}\n"
        if pre: x+=f"s_mov_b64 exec, -1\n{pre}\ns_mov_b64 exec, vcc\n"
        x+="".join(nops(d)+ld(r)+"\n" for r in sets[1:])+f"{L}:\n"
        for j,r in enumerate(sets):
            x+=f"s_waitcnt vmcnt({2*k-2})\n"+"\n".join(ck(r))+f"\ns_cbranch_vccz {Y[j]}\n"+("s_mov_b64 exec, vcc\n" if j==0 else "")+ld(r)+"\n"
        x+=f"s_sub_u32 s{S_BUD}, s{S_BUD}, 1\ns_cbranch_scc0 {L}\ns_mov_b32 s{S_BUD}, 0\ns_mov_b64 exec, -1\ns_branch {E}\n"
        for j,r in enumerate(sets):
            x+=f"{Y[j]}:\n"+("".join(f"v_mov_b64 {v(sets[0]+q,2)}, {v(r+q,2)}\n" for q in range(0,8,2)) if j else "")+f"s_mov_b64 exec, -1\n{done}\n"
        return x
    A.label(name+'_top')
    A(f"s_bfe_u32 s{S_TAG}, s{S_S}, 0x10001\ns_mov_b32 m0, s{S_M0V}")
    if o.get('xs'):
        L=A.newlabel('xs'); A(f"s_cmp_lg_u32 s{S_S}, {o['xs']}\ns_cbranch_scc1 {L}\ns_sleep 100\n{L}:")
    if o.get('dn'):
        L=A.newlabel('dn'); A(f"s_cmp_{'lg' if o['dn']>0 else 'eq'}_u32 s{S_AVC}, s{S_BUD}\ns_cbranch_scc1 {L}\n{nops(abs(o['dn']))}{L}:")
    slp('dc',320); A(ldC(M))
    if c2: slp('dc2',64); A(ldC(120))
    vc=o.get('vc',0); kc=o.get('kc',0)
    if vc or kc: slp('dx',0)
    if vc: A(dm2(S_VXO))
    if kc: A(f"s_mov_b32 m0, s{S_M0K}\n{dm2(S_KX)}\ns_mov_b32 m0, s{S_M0V}")
    A.label(name+'_cw')
    A(f"s_waitcnt vmcnt({2*(c2+vc+kc)})")
    A.label(name)
    A(f"ds_write_b128 v{MW}, {v(M,4)}\nds_write_b128 v{MW}, {v(M+4,4)} offset:1024")
    qk=lambda i:[smf(80,M+4*i,a((i*2)*8,8)),smf(84,M+4*i,a(128+(i*2)*8,8)),smf(88,M+4*i,a((i*2+1)*8,8)),smf(92,M+4*i,a(128+(i*2+1)*8,8))]
    c8=chk8(M)
    cz=o.get('cz',1)
    if cz&4: A("\n".join(c8))
    elif cz&2: gaps(A,qk(0)[:1],[c8])
    else: gaps(A,qk(0)[:2],[c8[:2],c8[2:]])
    Fc=A.newlabel('fc'); Ec=A.newlabel('ec'); Yc=A.newlabel('yc')
    A(f"s_cbranch_vccnz {Fc}"); A.label(Ec)
    t=f"{Fc}:\n{bud(Ec)}\ns_waitcnt lgkmcnt(0)\n{ldC(M)}\ns_nop 3\n"+"\n".join(f"v_mov_b64 {v(r,2)}, 0" for r in range(80,88,2))
    if c2: t+="\ns_waitcnt vmcnt(2)\n"+"\n".join(chk8(120))+f"\ns_cbranch_vccz {Yc}\n{ldC(120)}\ns_branch {name}_cw\n{Yc}:\n"+"\n".join(f"v_mov_b64 {v(M+r,2)}, {v(120+r,2)}" for r in range(0,8,2))+f"\ns_branch {name}"
    else: t=f"{Fc}:\n{nops(o.get('dcr',0))}s_mov_b64 exec, vcc\n{ldC(M)}\ns_mov_b64 exec, -1\n{bud(Ec)}\n"+"\n".join(f"v_mov_b64 {v(r,2)}, 0" for r in range(80,88,2))+"\ns_waitcnt vmcnt(0)\n"+"\n".join(c8)+f"\ns_cbranch_vccz {name}\ns_branch {Fc}"
    if cz&1: t=t[:t.index("s_waitcnt vmcnt(0)")]+f"s_branch {name}_cw"
    if cz&4: A(qk(0)[0])
    if cz&6: A(qk(0)[1])
    if o.get('pc',1)>1: t=piped(Fc,Ec,[M,120,PB2][:o['pc']],ldC,chk8,o.get('pcd',128),"s_nop 3\n"+"\n".join(f"v_mov_b64 {v(r,2)}, 0" for r in range(80,88,2)),f"s_branch {name}")
    OUT.append(t)
    P(0,0)
    kt=o.get('kt',0); tK=f"buffer_load_dword v{T0}, v0, {WS}, s{S_KX} offen sc1"
    A(qk(0)[2]); A(f"v_mov_b32 v{T1}, s{S_S}")
    if kt==1: A(tK)
    A("s_waitcnt lgkmcnt(0)\ns_barrier")
    rd=[f"ds_read_b128 {v(M+4*i,4)}, v{MW+(i>>1)} offset:{(i&1)*1024}" for i in range(2,8)]
    A(rd[0]); A(rd[1])
    ex1=lambda m_,t:[f"s_mov_b64 exec, {m_}",t,"s_mov_b64 exec, -1"]
    vs=lambda n,buf:smf(112+4*(n&1),M+4*(n>>1),v(buf,8))
    ve=VE[0]; rf=[wv_read(n,WBUF[n%3]) for n in (range(3,ve+3) if ve else [] if VE[1] else [2])]
    r3=rf.pop(0) if ve==3 else []; rf=[x for r in rf for x in (r[:1],r[1:])]; rf+=[[]]*(4-len(rf))
    mv=o.get('mv',6); nx=o.get('nx',1); late=[]
    ex2=lambda m_,t:[t] if nx else ex1(m_,t)
    def op(bit,x):
        if mv&bit: late.append(x); return []
        return x
    vx0=op(1,[f"buffer_load_dwordx4 v1, {WS}, s{S_VXO} offen sc1 lds"]); vx1=op(1,[f"buffer_load_dwordx4 v1, {WS}, s{S_VXO} offen offset:1024 sc1 lds"])
    if vc: vx0=vx1=[]
    pg=op(8,ex2(1,f"buffer_store_dword v{T1}, off, {WS}, s{S_PR} sc1")); fg=op(4,ex2(1,f"buffer_load_dword v{T0}, off, {WS}, s{S_FI} sc1"))
    cc=op(2,(ex2 if o.get('l4',1) else ex1)('0xffff',f"buffer_store_dword v{SN1}, v{L4}, {WS}, s{S_CC} offen{sc}"))
    sl=[rd[2:4],rd[4:6],[],[],[]]+[[] for n in range(ve)]+[[],[],[],["s_waitcnt lgkmcnt(4)"],[],r3[:1],r3[1:],[f"s_waitcnt lgkmcnt({2 if r3 else 0})"]]
    if o.get('r1',1): sl[:4]=[[x] for x in rd[2:6]]
    dr=ex2('0xfff',f"buffer_store_dword v{SN1}, v{DRP}, {WS}, s{S_AP} offen offset:4 sc1")
    for x,k in zip((vx0,vx1,dr,pg,cc,fg),list(o.get('pos',(0,4,7,11)))+[6,7]):
        if k<13: sl[k]=x+sl[k]
        else: rf[k-13]=rf[k-13]+x
    if kt>1: sl[kt-2]=sl[kt-2]+[tK]
    sl[4+ve]=sl[4+ve]+["s_waitcnt lgkmcnt(5)"]
    gaps(A,[qk(0)[3]]+qk(1)+[vs(n,WBUF[n]) for n in range(ve)]+qk(2)+qk(3),sl)
    nl=len(late); assert drop and o.get('pc',1)==1 and not c2
    D=PB2
    gaps(A,[qk(i)[j] for j in range(4) for i in range(4,8)]+[vs(n,WBUF[n%3]) for n in (ve,ve+1)],
         rf+[N1,N1,N1,[ad(80,80,82)], [ad(81,81,83),"s_nop 0"],N1,[ad(82,84,86)],[ad(83,85,87)], [cv(D,80),"s_waitcnt lgkmcnt(2)" if ve else "s_nop 0"],[cv(D+2,82),tag(D,D)],[ad(88,88,90)],[ad(89,89,91)], [cv(D+1,88),"s_nop 0"],[]])
    for t in (ad(90,92,94),ad(91,93,95),cv(D+3,90)): A(t)
    A(f"buffer_store_dwordx4 {v(D,4)}, v1, {WS}, s{S_AO} offen sc1")
    P(1)
    buf={ve+2:WBUF[(ve+2)%3]}; free=[WBUF[ve%3],WBUF[(ve+1)%3]]+([M] if ve>1 else []); nxt=ve+3
    ldA=lambda r:f"buffer_load_dwordx4 {v(r,4)}, v1, {WS}, s{S_AI} offen sc1"
    for n in range(ve+2,16):
        while free and nxt<16:
            b=free.pop(0); buf[nxt]=b
            for t in wv_read(nxt,b): A(t)
            nxt+=1
        A(f"s_waitcnt lgkmcnt({2*(nxt-1-n)})")
        A(vs(n,buf[n])); free.append(buf[n])
        if late and n>=o.get('ml',2): A("\n".join(late.pop(0)))
        if n&3==3 and n<8: free.append(M+8*(n>>2))
        if n==o.get('pa',12): A(ldA(SENT))
    kr=0 if kc else o.get('kr',4); kx=lambda r:[A(f"ds_read_b128 {v(M+4*i,4)}, v{KXR} offset:{i*1024}") for i in r]
    kx(range(kr))
    if o.get('pa',12)==16: A(ldA(SENT))
    for t in (ad(112,112,114),ad(113,113,115),ad(116,116,118),ad(117,117,119),cv(D,112),cv(D+1,116),tag(120,D),f"v_mov_b32 v121, v{D+1}",f"ds_write_b64 v{VMW}, {v(D,2)}",sw(120,122),sw(121,123)): A(t)
    aov=f"s_mov_b32 exec_hi, 0\nbuffer_store_dwordx4 {v(120,4)}, v1, {WS}, s{S_AOV} offen sc1\ns_mov_b64 exec, -1"
    av=o.get('av',0)
    if av==0:
        if drop: A(f"s_waitcnt vmcnt({2+nl})")
        A(aov)
    if kc: assert av==0; A("s_barrier")
    kx(range(kr,8))
    A(f"s_cmp_eq_u32 s{S_S}, 63\ns_cbranch_scc1 R_done\ns_mov_b32 m0, s{S_M0K}")
    if o.get('pa',12)==17: slp('da1',0); A(ldA(SENT))
    slp('da',160); A(ldA(124))
    P(2)
    if av==1:
        if drop: A(f"s_waitcnt vmcnt({3+nl})")
        A(aov)
    A(f"s_waitcnt vmcnt({1 if av==2 else 2})")
    P(3)
    Fa=A.newlabel('fa'); Ea=A.newlabel('ea'); Sa=A.newlabel('sa')
    unp=lambda r:f"{bo(T1,v(r),TG,1,0x28)}\nv_cmp_ne_u32 vcc, 0, v{T1}\n"+"\n".join(f"v_lshlrev_b32 v{112+2*i}, 16, v{r+j}\nv_and_b32 v{113+2*i}, s{S_HI}, v{r+j}" for i,j in enumerate((0,2,1,3)))
    d2=o.get('d2',1)
    if d2: unp=lambda r:f"{bo(T1,v(r),TG,1,0x28)}\nv_cmp_ne_u32 vcc, 0, v{T1}\n"+"\n".join(f"v_dot2_f32_bf16 v{112+2*i+e}, v{r+j}, s{(97,99)[e]}, v{(80,82,88,90)[i]+e}" for i,j in enumerate((0,2,1,3)) for e in range(2))
    A(unp(SENT)); A(f"s_cbranch_vccnz {Fa}"); A.label(Ea)
    OUT.append(f"{Fa}:\n{nops(o.get('dar',0))}{ldA(SENT)}\ns_waitcnt vmcnt({2 if av==1 else 1})\n{Sa}:\n{bud(Ea)}\n{unp(124)}\ns_cbranch_vccz {Ea}\n{ldA(124)}\ns_waitcnt vmcnt(1)\n{unp(SENT)}\ns_cbranch_vccz {Ea}\n{ldA(SENT)}\ns_waitcnt vmcnt(1)\ns_branch {Sa}")
    P(4,1)
    ldV=[f"buffer_load_dwordx2 {v(98+4*p,2)}, v{L8}, {WS}, s{S_AIV} offen offset:{p*512} sc1" for p in range(4)]
    pv=o.get('pv',2); vt=o.get('vt',2); tV=f"buffer_load_dword v{T1}, v31, {WS}, s{S_AIV} offen sc1"
    if vt==3: A(tV)
    for t in (pa(80,112),pa(82,114),cv(84,80),cv(85,82),f"ds_write_b64 v{XW}, {v(84,2)}",pa(88,116),pa(90,118),cv(86,88),cv(87,90),f"ds_write_b64 v{XW}, {v(86,2)} offset:512") if not d2 else (cv(84,112),cv(85,114),f"ds_write_b64 v{XW}, {v(84,2)}",cv(86,116),cv(87,118),f"ds_write_b64 v{XW}, {v(86,2)} offset:512"): A(t)
    if av==2: A(aov)
    if vt==2: A(tV)
    if pv==-2: A("\n".join(ldV))
    kvw=A.newlabel('kvw'); kvr=A.newlabel('kvr')
    A(f"v_readfirstlane_b32 s{Q}, v{T0}\ns_mov_b32 vcc_lo, 0x33333333\ns_mov_b32 vcc_hi, 0x33333333\ns_cmp_lt_u32 s{Q}, s{S_FT}\ns_waitcnt lgkmcnt(0)\ns_barrier")
    P(5)
    if vt==1: A(tV)
    for i in range(8): A(f"ds_read_b64_tr_b16 {v(80+2*i,2)}, v{XR} offset:{i*512}")
    if pv==-1: A("\n".join(ldV))
    A(f"s_cbranch_scc1 {kvw}"); A.label(kvr)
    ldK=[f"buffer_load_dwordx4 v1, {WS}, s{S_KX} offen offset:{p*1024} sc1 lds" for p in range(2)]
    vx=lambda i:f"ds_read_b128 {v(M+4*i,4)}, v{KXR} offset:{L_VX-L_KX+i*1024}"
    vm=lambda p:f"ds_read_b64 {v(96+4*p,2)}, v{VMR} offset:{p*512}"
    m=[]
    for ks in range(4):
        X=80+4*ks
        m+=[f"s_waitcnt lgkmcnt({[6,4,5,6][ks]})\n"+mf(112,M+4*ks,X,'0' if ks==0 else 112),mf(116,M+16+4*ks,X,'0' if ks==0 else 116),mf(120,X,X,NEG-2 if ks==0 else 120)]
    fl=[[],[],[],[vx(0)],[vx(4)],[vx(1)],[vx(5)],[vx(2)],[vx(6)],[vm(0),vm(1)],[vx(3)],[vx(7),vm(2),vm(3)]]
    stE=f"buffer_store_dwordx4 {v(D,4)}, v1, {WS}, s{S_VM} offen sc1 {o.get('nte','')}"; kp=o.get('kp',1)
    if kc: ldK=['s_nop 0']*2; assert kp in(3,5)
    for k,t in enumerate((ldV if pv>=0 else [])+(ldK+[stE] if kp==0 else [])): fl[min(pv+k*o.get('pw',2),11)].append(t)
    if kp==6: A("\n".join(ldK))
    if kp==7: fl[9].append(ldK[0]); fl[11].append(ldK[1])
    gaps(A,m,fl)
    qp=lambda k:f"quad_perm:{k} row_mask:0xf bank_mask:0xf"
    for i in range(4): A(f"v_cndmask_b32_dpp v{112+i}, v{116+i}, v{112+i}, vcc {qp('[0,1,0,1]')}")
    A(f"""v_max3_f32 v116, v112, v122, v123
    s_not_b64 vcc, vcc
    v_max3_f32 v116, v116, v113, v114
    v_max_f32 v116, v116, v115
    {ldK[0] if kp==1 else ''}
    v_max_f32_dpp v116, v116, v116 {qp('[2,3,0,1]')}
    v_mov_b32 v117, v116
    {ldK[1] if kp==1 else stE if kp in(4,5,6,7) else ''}
    v_permlane16_swap_b32 v116, v117
    v_max_f32 v116, v116, v117
    v_mov_b32 v117, v116
    {stE if kp in(1,2,3) else ''}
    s_waitcnt vmcnt({7+(av==2)+(vt>0)-2*(1<kp<6)})
    v_permlane32_swap_b32 v116, v117
    v_max_f32 v116, v116, v117
    v_mul_f32 v127, s{S_SC}, v116""")
    fm=lambda r:f"v_fma_f32 v{r}, v{r}, s{S_SC}, -v127"
    ex=lambda r:f"v_exp_f32 v{r}, v{r}"
    p1=lambda i:f"v_cndmask_b32_dpp v{PB1+i}, v{124+(i&1)}, v{PB1+i}, vcc {qp('[0,1,2,3]' if i<2 else '[2,3,2,3]')}"
    mv=lambda d,r:f"v_mov_b32_dpp v{d}, v{r} {qp('[2,3,0,1]')}"
    for t in (fm(112),fm(113),fm(114),fm(115),ex(112),ex(113),ex(114),ex(115),cv(124,112),cv(125,114),fm(122),p1(0),p1(2),p1(1),p1(3),fm(123),"s_waitcnt lgkmcnt(0)"): A(t)
    zl=lambda T:f"ds_read_b128 {v(M+4*T,4)}, v{KXR} offset:{L_Z-L_KX}"
    po=o.get('po',2)
    ckv=[bo(124,'v98','v102',TG,0x7e),bo(125,'v106','v110',TG,0x7e),bo(124,'v124','v125',1,0xa8),"v_cmp_ne_u32 vcc, 0, v124"]
    sm=f"v_mfma_f32_16x16x16_bf16 {v(116,4)}, {v(ONES,2)}, {v(120,2)}, {v(116,4)}"
    if po:
        assert kp==1
        gaps(A,[mf(80,M,PB1,'0'),mf(84,M+8,PB1,'0'),mf(116,ONES,PB1,'0'),mf(80,M+4,PB2,80),mf(84,M+12,PB2,84),mf(88,M+16,PB1,'0')]+([mf(92,M+24,PB1,'0'),sm] if po==1 else [sm,mf(92,M+24,PB1,'0')]),
         [[mv(PB2,PB1),mv(PB2+2,PB1+2)],[mv(PB2+1,PB1+1),mv(PB2+3,PB1+3)],[ex(122),zl(0)],[ex(123),zl(2)],[cv(120,122),zl(1)],[mv(121,120),f"v_mov_b64 {v(122,2)}, {v(120,2)}"],[zl(3),"s_waitcnt vmcnt(3)",ckv[0]],ckv[1:]+[zl(4)]] if po==1 else
         [[ex(122),mv(PB2,PB1)],[ex(123),mv(PB2+2,PB1+2)],[mv(PB2+1,PB1+1),mv(PB2+3,PB1+3),cv(120,122),zl(0)],[zl(2),mv(121,120)],[f"v_mov_b64 {v(122,2)}, {v(120,2)}",zl(1)],["s_waitcnt vmcnt(3)",ckv[0],ckv[1]],[zl(3)],ckv[2:]+[zl(4)]])
    else: gaps(A,[mf(80,M,PB1,'0'),mf(84,M+8,PB1,'0'),mf(116,ONES,PB1,'0'),mf(80,M+4,PB2,80),mf(84,M+12,PB2,84),mf(116,ONES,PB2,116),mf(88,M+16,PB1,'0')],
         [[mv(PB2,PB1),mv(PB2+2,PB1+2)],[mv(PB2+1,PB1+1),mv(PB2+3,PB1+3),zl(0)],[ex(122),zl(2)],[ex(123)]+ldK[:1]*(kp in(2,4)),[cv(120,122),zl(1)],[mv(121,120),f"v_mov_b64 {v(122,2)}, {v(120,2)}"],[zl(3)]+ldK[1:]*(kp in(2,4))])
    P(6)
    LV=A.newlabel('pv'); Fv=A.newlabel('fv'); Ev=A.newlabel('ev')
    if not po: A(f"{sm}\n{zl(4)}\ns_waitcnt vmcnt({1 if kp in(3,5,6) else 3})")
    if not po: A(ckv[0]); A(ckv[1]); A(mf(92,M+24,PB1,'0')); A(ckv[2]); A(ckv[3]); A(zl(6))
    A(f"s_cbranch_vccnz {Fv}"); A.label(Ev)
    OUT.append(f"{Fv}:\n{nops(o.get('dvr',0))}{bud(Ev)}\n"+"\n".join(ldV)+"\ns_waitcnt vmcnt(0)\n"+"\n".join(ckv)+f"\ns_cbranch_vccz {Ev}\ns_branch {Fv}")
    P(7,2)
    mu=lambda r:f"v_mul_f32 v{r}, v126, v{r}"
    g2=lambda T,u:smf(M+4*T,112 if u==0 else 120,v(128+(T*2+u)*8,8))
    fo=lambda T:[ad(M+4*T,M+4*T,M+4*T+2),ad(M+4*T+1,M+4*T+1,M+4*T+3),cv(96+T,M+4*T)]+([tag(96+T,96+T)] if T&3==0 else [])
    st=lambda r,so:f"buffer_store_dwordx4 {v(r,4)}, v{BS}, {WS}, s{so} offen{sc}"
    gaps(A,[mf(80,96,120,80),mf(84,100,120,84),mf(88,M+20,PB2,88),mf(92,M+28,PB2,92),mf(88,104,120,88),mf(92,108,120,92)],
         ([[zl(6)],[f"v_rcp_f32_dpp v126, v116 {qp('[0,1,0,1]')}"],N1] if po else [["v_rcp_f32 v126, v116"],ldK[:1] if kp in(3,5) else N1,N1])+[[zl(5),mu(80),mu(81),mu(82),mu(83)],[zl(7),mu(84),mu(85),mu(86),mu(87)],[cv(112,80),cv(113,82),cv(114,84),cv(115,86),"s_waitcnt lgkmcnt(2)"]])
    gaps(A,[g2(T,u) for u in range(2) for T in range(8)],
         [[mu(88),mu(89)],[mu(90),mu(91)],[mu(92),mu(93)],[mu(94),mu(95)],[cv(120,88),cv(121,90),"s_waitcnt lgkmcnt(0)"],[cv(122,92)],[cv(123,94)],ldK[1:]*(kp in(3,5)),
          N1,N1,N1,fo(0),fo(1),fo(2),fo(3)+[st(96,S_B)],fo(4)+fo(5)+fo(6)+fo(7)])
    A(st(100,S_B2))
    P(8)
    X=M+8; R=M+24
    ldB=lambda so,X=X:f"buffer_load_dwordx4 {v(X,4)}, v{BL}, {WS}, s{so} offen sc1\nbuffer_load_dwordx4 {v(X+4,4)}, v{BL}, {WS}, s{so} offen offset:1024 sc1"
    bp=o.get('bp',3)
    if bp==0: slp('db',0); A(ldB(S_B))
    A(f"""s_add_u32 s{S_S}, s{S_S}, 1
    s_add_u32 s{S_VM}, s{S_VM}, 0x40000
    s_add_u32 s{S_KX}, s{S_KX}, {0 if o.get('xk') else 0x40000}
    s_add_u32 s{S_VXO}, s{S_VXO}, {0 if o.get('xk') else 0x40000}
    s_mov_b32 s{S_AP}, s{S_AI}
    s_xor_b32 s{S_AO}, s{S_AO}, 0x8000
    s_xor_b32 s{S_AI}, s{S_AI}, 0x8000
    s_xor_b32 s{S_AOV}, s{S_AOV}, 0x8000
    s_xor_b32 s{S_AIV}, s{S_AIV}, 0x8000
    s_mov_b32 s{S_BC}, s{S_B}
    s_mov_b32 s{S_AVC}, s{S_BUD}
    s_xor_b32 s{S_B}, s{S_B}, 0x80000
    s_xor_b32 s{S_B2}, s{S_B2}, 0x80000""")
    if bp==1: slp('db',0); A(ldB(S_BC))
    if vc: A("s_barrier")
    fill(A)
    if bp==2: slp('db',0); A(ldB(S_BC))
    A(f"""s_mov_b32 s{S_CC}, s{S_CS}
    s_and_b32 s{Q}, s{S_S}, 3
    s_lshl_b32 s{Q}, s{Q}, 14
    s_add_u32 s{S_CL}, s{S_CLB}, s{Q}
    s_add_u32 s{S_CS}, s{S_CSB}, s{Q}
    s_add_u32 s{Q}, s{S_S}, 1
    s_min_u32 s{Q}, s{Q}, 63
    s_lshr_b32 s{Q+1}, s{Q}, 3
    s_add_u32 s{Q+1}, s{Q+1}, 1
    s_lshr_b32 s{Q+2}, s{Q}, 2
    s_cmp_lt_u32 s{Q}, 8
    s_cselect_b32 s{Q+1}, s{Q+2}, s{Q+1}
    s_cselect_b32 s{S_FT}, 64, 32
    s_lshl_b32 s{Q+1}, s{Q+1}, 7
    s_add_u32 s{S_FI}, s{Q+1}, {WS_FL+F_KV*128}""")
    if bp==3: slp('db',32); A(ldB(S_BC))
    LB_=A.newlabel('pb'); Fb=A.newlabel('fb'); Eb=A.newlabel('eb')
    A.label(LB_)
    bz=o.get('bz',0)
    if bz: A(f"s_waitcnt vmcnt(0)\n{mf(R,X,SEL1,'0')}\n{bo(T0,v(X),v(X+4),TG,0x7e)}\nv_and_b32 v{T0}, 1, v{T0}\n{mf(R,X+4,SEL1,R) if bz==1 else ''}\nv_cmpx_ne_u32 vcc, 0, v{T0}\n{ldB(S_BC)}\ns_mov_b64 exec, -1\ns_cbranch_vccnz {Fb}\n{mf(R,X+4,SEL1,R) if bz==2 else ''}")
    else: A(f"s_waitcnt vmcnt(0)\n{mf(R,X,SEL1,'0')}\n{bo(T0,v(X),v(X+4),TG,0x7e)}\nv_and_b32 v{T0}, 1, v{T0}\nv_cmp_ne_u32 vcc, 0, v{T0}\n{'' if o.get('by') else mf(R,X+4,SEL1,R)}\ns_cbranch_vccnz {Fb}\n{mf(R,X+4,SEL1,R) if o.get('by') else ''}")
    A.label(Eb)
    A(f"{mf(R+4,X,SEL2,'0')}\n{mf(R+4,X+4,SEL2,R+4)}")
    if o.get('pb',1)>1: OUT.append(piped(Fb,Eb,[X,X+8,M][:o['pb']],lambda r:ldB(S_BC,r),lambda r:[bo(T0,v(r),v(r+4),TG,0x7e),f"v_and_b32 v{T0}, 1, v{T0}",f"v_cmp_ne_u32 vcc, 0, v{T0}"],o.get('pbd',128),None,f"{mf(R,X,SEL1,'0')}\n{mf(R,X+4,SEL1,R)}\ns_branch {Eb}"))
    elif bz: OUT.append(f"{Fb}:\ns_sub_u32 s{S_BUD}, s{S_BUD}, 1\ns_cbranch_scc0 {LB_}\ns_mov_b32 s{S_BUD}, 0\ns_branch {Eb}")
    else: OUT.append(f"{Fb}:\n{nops(o.get('dbr',0))}s_mov_b64 exec, vcc\n{ldB(S_BC)}\ns_mov_b64 exec, -1\n{bud(Eb)}\ns_branch {LB_}")
    P(9,3)
    A(f"""{ad(R,R,R+1)}
    {ad(R+2,R+2,R+3)}
    {ad(R,R,R+2)}
    {pa(R+4,R+6)}
    v_add_f32 v{R+4}, v{R+4}, v{R+5}
    {sw(R,R+4)}
    v_add_f32 v{R}, v{R}, v{R+4}
    v_mov_b32 v{R+4}, v{R}
    v_permlane16_swap_b32 v{R}, v{R+4}
    v_add_f32 v{R}, v{R}, v{R+4}
    v_mov_b32 v{R+4}, v{R}
    {sw(R,R+4)}
    {'' if o.get('l4',1) else 's_mov_b64 exec, 0xffff'}
    v_cvt_pk_bf16_f32 v{T1}, v{R}, v{R+4}
    buffer_store_dword v{T1}, v{L4}, {WS}, s{S_CS} offen{sc}
    s_mov_b64 exec, -1""")
    P(10)
    if ph:
        A("s_waitcnt lgkmcnt(0)")
        for k in range(11): A(f"v_writelane_b32 v{T0}, s{64+2*k}, {k}")
        for k in range(4): A(f"v_writelane_b32 v{T0}, s{88+k}, {11+k}")
        A(f"s_mov_b64 exec, 0xffff\nbuffer_store_dword v{T0}, v{L4}, {WS}, s92 offen\ns_mov_b64 exec, -1\ns_add_u32 s92, s92, 64")
    elif o.get('rs'): stamp(A,T0)
    A(f"s_branch {name}_top")
    if o.get('rd',1) and not slow: done(A,stamp); OUT.reverse()
    for t in OUT: A(t)
    A.label(kvw); A("s_waitcnt vmcnt(0)")
    spin_ge(A,S_WS,0,f"s{S_FT}",T0,T1,Q,soff=f"s{S_FI}")
    A(f"s_branch {kvr}")
WB=[0]
def rec_role(A,stamp,o):
    WB[0]=o.get('wb',0); VE[:]=o.get('ve',0),o.get('w3',1)
    ORD=o.get('ord',[1,0,2,3])
    h=S_RANK; w=S_W; x=S_X; t=112
    A(f"s_cmp_eq_u32 s{S_VX}, {XB}\ns_cselect_b32 s{x}, 1, 0")
    srd(A,S_A,P_WV,8*MB); srd(A,S_OUT,P_WO,8*MB)
    for i in range(4): A(f"v_mov_b32 v{SENT+i}, -1")
    A(f"v_lshlrev_b32 v{L8}, 3, v0\nv_lshlrev_b32 v{L4}, 2, v0")
    DQ=16+t-14; DO=DQ+1
    A(f"""v_lshrrev_b32 v{t}, 4, v0
    v_and_b32 v{t+1}, 1, v{t}
    s_lshl_b32 s{Q}, s{w}, 1
    v_or_b32 v{t+1}, s{Q}, v{t+1}
    v_bfe_u32 v{t+4}, v0, 1, 3
    v_xor_b32 v{t+1}, v{t+1}, v{t+4}
    v_lshlrev_b32 v{t+1}, 5, v{t+1}
    v_and_b32 v{t+4}, 1, v0
    v_lshl_add_u32 v{t+1}, v{t+4}, 4, v{t+1}
    s_lshl_b32 s{Q}, s{w}, 4
    v_add_u32 v{t}, s{Q}, v{t}
    s_lshl_b32 s{Q}, s{x}, 22
    s_lshl_b32 s{Q+1}, s{h}, 8
    s_add_u32 s{Q}, s{Q}, s{Q+1}
    v_lshl_add_u32 v{DQ}, v{t}, 13, v{t+1}
    v_add_u32 v{DQ}, s{Q}, v{DQ}
    s_lshl_b32 s{Q}, s{h}, 18
    s_lshl_b32 s{Q+1}, s{x}, 10
    s_add_u32 s{Q}, s{Q}, s{Q+1}
    v_lshl_add_u32 v{DO}, v{t}, 11, v{t+1}
    v_add_u32 v{DO}, s{Q}, v{DO}
    s_lshl_b32 s{S_M0K}, s{w}, 12""")
    def chunk(n):
        mat,j=ORD[n>>2],n&3
        for aa in range(2):
            for b in range(4):
                rows=64*aa+4*b
                so=(j*256+rows*2048) if mat==2 else (128*j+rows)*8192
                A(f"s_add_u32 m0, s{S_M0K}, {j*32768+aa*16384+b*1024}\ns_mov_b32 s{Q}, {so}\nbuffer_load_dwordx4 v{DO if mat==2 else DQ}, {s([S_B0,S_B1,S_OUT,S_A][mat],4)}, s{Q} offen {'nt' if mat in o.get('ntm',()) else ''} lds")
    W=o.get('win',4)
    for n in range(W): chunk(n)
    A(f"""s_lshl_b32 s{Q}, s{h}, 16
    s_lshl_b32 s{Q+1}, s{x}, 14
    s_add_u32 s{S_AO}, s{Q}, s{Q+1}
    s_xor_b32 s{S_AI}, s{S_AO}, 0x4000
    s_lshl_b32 s{Q}, s{x}, 18
    s_add_u32 s{S_B}, s{Q}, {WS_B}
    s_add_u32 s{S_B2}, s{S_B}, 0x8000
    s_xor_b32 s{S_BC}, s{S_B}, 0x80000
    s_lshl_b32 s{Q}, s{h}, 2
    s_add_u32 s{Q}, s{Q}, s{w}
    s_lshl_b32 s{Q+1}, s{Q}, 11
    v_and_b32 v{t}, 15, v0
    v_lshrrev_b32 v{t+1}, 4, v0
    v_lshlrev_b32 v{BL}, 6, v{t}
    v_lshl_add_u32 v{BL}, v{t+1}, 4, v{BL}
    v_add_u32 v{BL}, s{Q+1}, v{BL}
    s_lshl_b32 s{Q}, s{Q}, 6
    s_lshl_b32 s{Q+1}, s{x}, 13
    s_add_u32 s{Q+1}, s{Q+1}, {WS_C}
    s_add_u32 s{S_CSB}, s{Q+1}, s{Q}
    s_lshl_b32 s{Q}, s{w}, 11
    s_add_u32 s{S_CLB}, s{Q+1}, s{Q}""")
    A(f"s_lshl_b32 s{Q}, s{w}, 10\ns_add_u32 s{Q}, s{Q}, s{S_AI}\ns_lshl_b32 s{Q+1}, s{w}, 9\ns_add_u32 s{Q+1}, s{Q+1}, s{S_AI}\ns_add_u32 s{Q+1}, s{Q+1}, 4096")
    for off in (0,8192,32768,40960):
        A(f"s_add_u32 s{Q+2}, s{Q}, {off}\nbuffer_store_dwordx4 {v(SENT,4)}, v1, {WS}, s{Q+2} offen sc1\ns_add_u32 s{Q+2}, s{Q+1}, {off}\nbuffer_store_dwordx2 {v(SENT,2)}, v{L8}, {WS}, s{Q+2} offen sc1")
    for r in (S_B,S_BC):
        A(f"buffer_store_dwordx4 {v(SENT,4)}, v{BL}, {WS}, s{r} offen sc1\nbuffer_store_dwordx4 {v(SENT,4)}, v{BL}, {WS}, s{r} offen offset:1024 sc1")
    A(f"v_lshlrev_b32 v{t+4}, 2, v{t}\nv_lshl_add_u32 v{t+4}, v{t+1}, 14, v{t+4}\nbuffer_store_dword v{SENT}, v{t+4}, {WS}, s{S_CSB} offen sc1")
    c=t; g=t+1; u=t+4
    A(f"""v_and_b32 v{u}, 2, v{c}
    v_cmp_eq_u32 vcc, 0, v{u}
    v_mov_b32 v{u}, 0x44444444
    v_mov_b32 v{u+1}, 0xeeeeeeee
    v_cndmask_b32 v{IDX}, v{u+1}, v{u}, vcc
    v_mov_b32 v{u}, 0xf149f2ca
    v_cndmask_b32 v{NEG}, v{u}, 0, vcc""".replace(f"v_cndmask_b32 v{NEG}, v{u}, 0, vcc",f"v_cndmask_b32_e64 v{NEG}, v{u}, 0, vcc"))
    A(f"v_mov_b32 v{NEG+1}, v{NEG}\nv_mov_b32 v{SN1}, -1")
    for i in range(4): A(f"v_mov_b32 v{PB1+i}, 0\nv_mov_b32 v{PB2+i}, 0\nv_mov_b32 v{ONES+i}, 0x3f803f80")
    A(f"""v_bfe_u32 v{u}, v{c}, 2, 1
    v_lshlrev_b32 v{u}, 4, v{u}
    v_mov_b32 v{u+1}, 0x3f80
    v_lshlrev_b32 v{u}, v{u}, v{u+1}
    v_and_b32 v{u+1}, 2, v{c}
    v_lshrrev_b32 v{u+2}, 3, v{c}
    v_add_u32 v{u+1}, v{u+1}, v{u+2}
    v_and_b32 v{u+2}, 1, v{c}
    v_lshlrev_b32 v{u+2}, 1, v{u+2}
    v_xor_b32 v{u+2}, v{u+2}, v{g}
    v_lshl_add_u32 v{u+1}, v{u+2}, 2, v{u+1}""")
    for i in range(8): A(f"v_cmp_eq_u32 vcc, {i}, v{u+1}\nv_cndmask_b32 v{SEL1+i}, 0, v{u}, vcc")
    A(f"s_lshl_b32 s{Q}, s{w}, 11\ns_add_u32 s{Q}, s{Q}, {L_MEM}\nv_add_u32 v{MW}, s{Q}, v1")
    for p in range(1,4): A(f"v_xor_b32 v{MW+p}, {p*2048}, v{MW}")
    A(f"""v_lshrrev_b32 v{u}, 2, v{c}
    v_xor_b32 v{u+1}, v{u}, v{g}
    v_lshlrev_b32 v{u+1}, 3, v{u+1}
    v_lshl_add_u32 v{u+1}, v{c}, 5, v{u+1}
    s_lshl_b32 s{Q}, s{w}, 10
    s_add_u32 s{Q}, s{Q}, {L_X}
    v_add_u32 v{XW}, s{Q}, v{u+1}
    v_and_b32 v{u+1}, 3, v0
    v_xor_b32 v{u+2}, v{u+1}, v{g}
    v_lshlrev_b32 v{u+2}, 3, v{u+2}
    v_lshrrev_b32 v{u+3}, 2, v0
    v_lshl_add_u32 v{u+2}, v{u+3}, 5, v{u+2}
    v_add_u32 v{XR}, {L_X}, v{u+2}
    v_add_u32 v{VMR}, {L_VM}, v{L8}
    s_lshl_b32 s{Q}, s{w}, 9
    v_add_u32 v{VMW}, s{Q}, v{VMR}
    v_add_u32 v{KXR}, {L_KX}, v1
    ds_write_b128 v{KXR}, {v(PB1,4)} offset:{L_Z-L_KX}
    v_and_b32 v{L8}, 0x1f0, v1
    v_lshrrev_b32 v{DRP}, 5, v0
    v_lshl_add_u32 v{L8}, v{DRP}, 3, v{L8}
    v_lshlrev_b32 v{DRP}, 7, v0
    s_sub_u32 s{Q}, 3072, s{Q}
    v_add_u32 v{u+2}, s{Q}, v{DRP}
    v_cmp_gt_u32 vcc, 8, v0
    v_cndmask_b32 v{DRP}, v{u+2}, v{DRP}, vcc
    v_lshl_add_u32 v{u+2}, v{u}, 2, v{g}
    v_lshlrev_b32 v{u+2}, 11, v{u+2}
    v_lshl_add_u32 v{u+2}, v{u+1}, 4, v{u+2}
    s_lshl_b32 s{Q}, s{w}, 16
    s_lshl_b32 s{Q+1}, s{h}, 6
    s_add_u32 s{Q}, s{Q}, s{Q+1}
    v_add_u32 v{BS}, s{Q}, v{u+2}""")
    TB=t+8
    A(f"""v_and_b32 v{u+2}, 1, v{g}
    v_lshlrev_b32 v{TB}, 5, v{u+2}
    v_lshrrev_b32 v{u+2}, 1, v{g}
    v_lshl_add_u32 v{TB}, v{u+2}, 2, v{TB}
    v_lshrrev_b32 v{u+2}, 1, v{u}
    v_lshl_add_u32 v{TB}, v{u+2}, 4, v{TB}
    v_and_b32 v{u+2}, 1, v{u}
    v_add_u32 v{TB}, v{TB}, v{u+2}
    v_lshlrev_b32 v{TB}, 8, v{TB}
    v_lshl_add_u32 v{TB}, v{u+1}, 3, v{TB}
    v_bfe_u32 v{u+2}, v0, 2, 3
    v_lshl_add_u32 v{TB}, v{u+2}, 5, v{TB}
    s_mul_i32 s{Q}, s{w}, {32768+8192}
    v_add_u32 v{WV}, s{Q}, v1""")
    A(f"""s_mov_b32 s{S_S}, 0
    s_mov_b32 s{S_SC}, 0x3e0293ee
    s_mov_b32 s{S_HI}, 0xffff0000
    s_lshl_b32 s{Q}, s{h}, 13
    s_lshl_b32 s{Q+1}, s{w}, 11
    s_add_u32 s{Q}, s{Q}, s{Q+1}
    s_add_u32 s{S_KX}, s{Q}, {WS_KX}
    s_add_u32 s{S_VXO}, s{Q}, {WS_VX}
    s_add_u32 s{S_M0V}, s{Q+1}, {L_VX}
    s_lshl_b32 s{Q}, s{h}, 1
    s_add_u32 s{Q}, s{Q}, s{x}
    s_lshl_b32 s{Q+1}, s{Q}, 7
    s_add_u32 s{S_PR}, s{Q+1}, {WS_FL+F_PROG*128}
    s_cmp_eq_u32 s{w}, 0
    s_cselect_b32 s{S_PR}, s{S_PR}, 0x10000000
    s_mov_b32 s{S_TAG}, 0
    s_add_u32 s{S_CC}, s{S_CSB}, 0xc000
    s_mov_b32 s{S_CS}, s{S_CSB}
    s_mov_b32 s{S_CL}, s{S_CLB}
    s_lshl_b32 s{Q}, s{Q}, 12
    s_lshl_b32 s{Q+1}, s{w}, 10
    s_add_u32 s{Q}, s{Q}, s{Q+1}
    s_add_u32 s{S_VM}, s{Q}, {WS_KM}
    s_mov_b32 s{S_FI}, {WS_FL+F_KV*128}
    s_mov_b32 s{S_FT}, 64""")
    A(f"s_add_u32 s{Q}, s{S_VM}, {63*0x40000}\nbuffer_store_dwordx4 {v(SENT,4)}, v1, {WS}, s{Q} offen sc1")
    for n in range(12):
        mat,j=ORD[n>>2],n&3
        A(f"s_waitcnt vmcnt({8*W+6 if n<W else 8*W-8})\ns_barrier")
        if o.get('cs') and n&1==0: stamp(A,T0)
        if n==4:
            A(f"s_cmp_lg_u32 s{w}, 0\ns_cbranch_scc1 R_na\nv_mov_b32 v{T0}, 1\ns_mov_b64 exec, 1\nbuffer_atomic_add v{T0}, off, {s(S_DBG,4)}, 0 offset:{D_RDY*4}\ns_mov_b64 exec, -1")
            A.label('R_na')
        E=A.newlabel('wl')
        for ww in range(4):
            if mat==2 and ww!=j: continue
            N=A.newlabel('wn')
            A(f"s_cmp_lg_u32 s{w}, {ww}\ns_cbranch_scc1 {N}")
            for T in (range(8) if mat==2 else range(2)):
                A(f"v_xor_b32 v{u}, {j*32768+(T if mat==2 else 2*ww+T)*32}, v{TB}")
                for kl in range(2):
                    for m_ in range(4):
                        d=v(128+(T*2+kl)*8+2*m_,2) if mat==2 else a(mat*128+((((2*j+kl)^(2*ww))*2+T)*8)+2*m_,2)
                        A(f"ds_read_b64_tr_b16 {d}, v{u} offset:{trimm(kl,m_)}")
            A(f"s_branch {E}"); A.label(N)
        A.label(E)
        A("s_waitcnt lgkmcnt(0)\ns_barrier")
        chunk(n+W)
    for n in range(12+W,16): chunk(n)
    srd(A,S_B0,P_MEM,16384)
    A(f"""v_lshrrev_b32 v{u}, 2, v{c}
    v_and_b32 v{u+1}, 1, v{c}
    v_lshl_add_u32 v{u}, v{u}, 1, v{u+1}
    v_lshlrev_b32 v{u}, 11, v{u}
    v_bfe_u32 v{u+1}, v{c}, 1, 1
    v_lshl_add_u32 v{u}, v{u+1}, 5, v{u}
    v_lshl_add_u32 v{u}, v{g}, 3, v{u}
    s_lshl_b32 s{Q}, s{x}, 10
    s_lshl_b32 s{Q+1}, s{w}, 8
    s_add_u32 s{Q}, s{Q}, s{Q+1}""")
    for i in range(4): A(f"buffer_load_dwordx2 {v(M+2*i,2)}, v{u}, {s(S_B0,4)}, s{Q} offen offset:{64*i}")
    dbg=lambda r,off,n='':f"buffer_load_dword{n} {v(r,2 if n else 1)}, off, {s(S_DBG,4)}, 0 offset:{off} sc1"
    A(dbg(100,D_RDY*4)); A(dbg(101,D_INIT*4)); NX=6
    if o.get('wm',0):
        for r in (S_B,S_BC): A(f"buffer_load_dword v102, v{BL}, {WS}, s{r} offen sc1\nbuffer_load_dword v102, v{BL}, {WS}, s{r} offen offset:1024 sc1")
        A(f"v_lshlrev_b32 v103, 2, v{c}\nv_lshl_add_u32 v103, v{g}, 14, v103\nbuffer_load_dword v102, v103, {WS}, s{S_CSB} offen sc1"); NX=11
    A(f"s_lshl_b32 s{Q}, s{w}, 6\nv_xor_b32 v{TB}, s{Q}, v{TB}\ns_lshl_b32 s{Q}, s{w}, 13\nv_add_u32 v{u+1}, s{Q}, v1")
    for j in range(4):
        A(f"s_waitcnt vmcnt({24-8*j+NX if j<3 else 0})\ns_barrier")
        if o.get('cs') and j&1==0: stamp(A,T0)
        if j==3:
            A(f"v_readfirstlane_b32 s{Q}, v100\nv_readfirstlane_b32 s{Q+1}, v101\ns_cmp_ge_u32 s{Q}, 96\ns_cselect_b32 s{Q+1}, s{Q+1}, 0\ns_cmp_ge_u32 s{Q+1}, 1\ns_cbranch_scc1 R_rdy")
            spin_ge(A,S_DBG,D_RDY*4,96,T0,T1,Q)
            spin_ge(A,S_DBG,D_INIT*4,1,T0,T1,Q)
            A.label('R_rdy')
            A(dbg(104,D_P0*4,'x2')); A(dbg(106,XA*16)); A(dbg(107,XB*16)); A(f"buffer_load_dword v108, off, {WS}, s{S_FI} sc1")
        for T in range(2):
            A(f"v_xor_b32 v{u}, {j*32768+T*32}, v{TB}")
            for kl in range(2):
                for m_ in range(4): A(f"ds_read_b64_tr_b16 {v(64+(kl*2+T)*8+2*m_,2)}, v{u} offset:{trimm(kl,m_)}")
        A("s_waitcnt lgkmcnt(0)\ns_barrier")
        for k in range(8): A(f"ds_write_b128 v{u+1}, {v(64+4*k,4)} offset:{k*1024}")
        A(f"v_add_u32 v{u+1}, 0x8000, v{u+1}\ns_waitcnt lgkmcnt(0)")
    stamp(A,T0); u=104
    A(f"s_waitcnt vmcnt(0)\nv_readfirstlane_b32 s{Q}, v108\ns_cmp_ge_u32 s{Q}, 64\ns_cbranch_scc1 R_kv")
    spin_ge(A,S_WS,WS_FL+F_KV*128,64,T0,T1,Q)
    A.label('R_kv')
    stamp(A,T0)
    A(f"s_lshl_b32 s{Q}, s{w}, 11\ns_add_u32 s{S_M0K}, s{Q}, {L_KX}\ns_mov_b32 m0, s{S_M0K}")
    A(f"buffer_load_dwordx4 v1, {WS}, s{S_KX} offen sc1 lds\nbuffer_load_dwordx4 v1, {WS}, s{S_KX} offen offset:1024 sc1 lds\ns_add_u32 s{S_KX}, s{S_KX}, {0 if o.get('kc',0) else 0x40000}")
    if o.get('vc',0): A(f"s_mov_b32 m0, s{S_M0V}\n{dm2(S_VXO)}")
    A(f"""v_readfirstlane_b32 s{Q}, v{u}
    v_readfirstlane_b32 s{Q+1}, v{u+1}
    v_min_u32 v{u+2}, v{u+2}, v{u+3}
    s_cmp_lt_u32 s{Q+1}, s{Q}
    s_cselect_b32 s{Q}, {8192 if not o.get('badpol') else 0}, {0 if not o.get('badpol') else 8192}
    s_add_u32 s{S_AO}, s{S_AO}, s{Q}
    s_add_u32 s{S_AI}, s{S_AI}, s{Q}
    s_add_u32 s{S_AIV}, s{S_AI}, 4096
    s_lshl_b32 s{Q}, s{w}, 9
    s_add_u32 s{S_AOV}, s{S_AO}, s{Q}
    s_add_u32 s{S_AOV}, s{S_AOV}, 4096
    s_lshl_b32 s{Q}, s{w}, 10
    s_add_u32 s{S_AO}, s{S_AO}, s{Q}
    s_add_u32 s{S_AI}, s{S_AI}, s{Q}
    s_xor_b32 s{S_AP}, s{S_AI}, 0x8000
    v_readfirstlane_b32 s{Q}, v{u+2}""")
    if o.get('xe'): A(f"s_mov_b32 s{S_VM}, 0x10000000")
    if o.get('xp'): A(f"s_mov_b32 s{S_PR}, 0x10000000")
    fill(A)
    A("s_waitcnt vmcnt(0)\nv_lshlrev_b32 v31, 5, v0"); A(f"s_mov_b32 m0, s{S_M0V}")
    A(f"v_mov_b32 v{T0}, 0x10000000\nv_cmp_gt_u32 vcc, 12, v0\nv_cndmask_b32 v{DRP}, v{T0}, v{DRP}, vcc")
    A("s_mov_b32 s97, 0x3f80\ns_mov_b32 s99, 0x3f800000")
    if o.get('l4',1): A(f"v_cmp_gt_u32 vcc, 16, v0\nv_cndmask_b32 v{L4}, v{T0}, v{L4}, vcc")
    vq=o.get('vq',1)
    if vq==1: A(f"s_lshl_b32 s{Q+1}, s{w}, 9\nv_lshl_add_u32 v31, v0, 3, s{Q+1}")
    if vq==2: A(f"s_lshl_b32 s{Q+1}, s{w}, 9\nv_lshl_add_u32 v31, v0, 7, s{Q+1}\nv_cmp_gt_u32 vcc, 4, v0\nv_cndmask_b32 v31, v{T0}, v31, vcc")
    if vq==3: A(f"v_lshlrev_b32 v31, 7, v0\nv_cmp_gt_u32 vcc, 16, v0\nv_cndmask_b32 v31, v{T0}, v31, vcc")
    if o.get('kt'): A(f"v_cmp_gt_u32 vcc, {o.get('ktn',32)}, v0\nv_bfe_u32 v{T1}, v0, 4, 1\nv_and_b32 v0, 15, v0\nv_lshlrev_b32 v0, 7, v0\nv_lshl_add_u32 v0, v{T1}, 24, v0\nv_cndmask_b32 v0, v{T0}, v0, vcc")
    stamp(A,T0)
    if o.get('ph'): A(f"s_lshl_b32 s92, s{x}, 5\ns_add_u32 s92, s92, s{h}\ns_lshl_b32 s92, s92, 2\ns_add_u32 s92, s92, s{w}\ns_lshl_b32 s92, s92, 12\ns_add_u32 s92, s92, {5*MB}")
    A(f"s_cmp_lt_u32 s{Q}, 32\ns_cbranch_scc1 R_slow\ns_branch R_fast")
    step_loop(A,'R_fast',False,stamp,o)
    step_loop(A,'R_slow',True,stamp,o)
    if not o.get('rd',1): done(A,stamp)
def done(A,stamp):
    w=S_W
    A.label('R_done')
    A(f"buffer_store_dwordx4 {v(PB2,4)}, v1, {WS}, s{S_VM} offen sc1")
    A(f"s_waitcnt vmcnt(0) lgkmcnt(0)\ns_barrier\ns_cmp_lg_u32 s{w}, 0\ns_cbranch_scc1 L_fin\nv_mov_b32 v{T1}, 64\ns_mov_b64 exec, 1\nbuffer_store_dword v{T1}, off, {WS}, s{S_PR} sc1\ns_mov_b64 exec, -1")
    stamp(A,T0)
    if WB[0]&1: wbl2(A)
    A('s_branch L_fin')
def probe(A):
    A(f"s_lshl_b32 s{Q}, s{S_RANK}, 16\ns_add_u32 s{Q}, s{Q}, 7168\ns_add_u32 s{Q+1}, s{Q}, 8192\ns_mov_b64 exec, 1\nv_mov_b32 v4, 0\nv_mov_b32 v5, 0")
    for rep in range(3):
        A(f"buffer_store_dword v4, off, {WS}, s{Q} sc1\nbuffer_store_dword v4, off, {WS}, s{Q+1} sc1\ns_waitcnt vmcnt(0)")
        for p in range(2):
            A(f"s_memtime s[{Q+2}:{Q+3}]\ns_waitcnt lgkmcnt(0)\nbuffer_load_dword v6, off, {WS}, s{Q+p} sc1\ns_waitcnt vmcnt(0)\ns_memtime s[{Q+4}:{Q+5}]\ns_waitcnt lgkmcnt(0)")
            A(f"s_sub_u32 s{Q+2}, s{Q+2}, s{Q+4}\nv_max_u32 v{4+p}, s{Q+2}, v{4+p}")
    A(f"buffer_atomic_umax v4, off, {s(S_DBG,4)}, 0 offset:{D_P0*4}\nbuffer_atomic_umax v5, off, {s(S_DBG,4)}, 0 offset:{D_P1*4}\nv_mov_b32 v6, 1\ns_waitcnt vmcnt(0)\nbuffer_atomic_add v6, off, {s(S_DBG,4)}, 0 offset:{D_RDY*4}\ns_mov_b64 exec, -1")
```

```python
import sys
from common import *
import gemm
K="gated_mix__memory_aug_recurrent_mem_tr__geglu_ffn__prompt"
S_TS=98
def build(mode='full',stamps=False,opts={}):
    A=Asm()
    def stamp(A,vt=16):
        if not stamps: return
        L=A.newlabel('ts')
        A(f"s_cmp_lg_u32 s{S_W}, 0\ns_cbranch_scc1 {L}\ns_memrealtime s[100:101]\ns_waitcnt lgkmcnt(0)\nv_mov_b32 v{vt}, s100\nv_mov_b32 v{vt+1}, 0\ns_mov_b64 exec, 1")
        A(f"buffer_store_dword v{vt}, v{vt+1}, {s(S_WS,4)}, s{S_TS} offen\ns_mov_b64 exec, -1\ns_add_u32 s{S_TS}, s{S_TS}, 4")
        A.label(L)
    A(f"s_cmp_ge_u32 s2, 256\ns_cbranch_scc1 L_end")
    if stamps: A("s_memrealtime s[100:101]")
    A(f"s_load_dwordx4 s[88:91], s[0:1], 96\ns_load_dwordx16 s[64:79], s[0:1], 0\ns_load_dwordx8 s[80:87], s[0:1], 64\ns_load_dwordx2 s[92:93], s[0:1], 112")
    A(f"s_getreg_b32 s{S_VX}, hwreg(HW_REG_XCC_ID, 0, 3)\nv_lshrrev_b32 v1, 6, v0\nv_and_b32 v0, 63, v0\nv_readfirstlane_b32 s{S_W}, v1\nv_lshlrev_b32 v1, 4, v0")
    for i in range(2,32): A(f"v_mov_b32 v{i}, 0")
    A(f"s_mov_b32 s{S_BUD}, {opts.get('bud',100000)}\ns_mov_b32 s{S_RANK}, 0\ns_waitcnt lgkmcnt(0)")
    srd(A,S_DBG,P_DBG,256); srd(A,S_WS,P_WS,256*MB); srd(A,S_A,P_X,4*MB); srd(A,S_B0,P_WQ,8*MB); srd(A,S_B1,P_WK,8*MB); srd(A,S_OUT,P_OUT,4*MB)
    if opts.get('fakexcc'): A(f"s_lshr_b32 s{S_VX}, s2, 4\ns_mul_i32 s{S_VX}, s{S_VX}, s{S_VX}\ns_and_b32 s{S_VX}, s{S_VX}, 7")
    et=opts.get('et',0)
    A(f"s_cmp_lg_u32 s{S_W}, 0\ns_cbranch_scc1 {'C_tch' if et else 'C_wait'}")
    A(f"s_lshl_b32 s32, s{S_VX}, 4\nv_mov_b32 v2, s32\nv_mov_b32 v3, 1\ns_mov_b64 exec, 1\nbuffer_atomic_add v3, v2, {s(S_DBG,4)}, 0 offen sc0\ns_waitcnt vmcnt(0)\ns_mov_b64 exec, -1\nv_readfirstlane_b32 s{S_RANK}, v3")
    A(f"s_cmp_lt_u32 s{S_RANK}, 32\ns_cbranch_scc1 C_got")
    A(f"v_mov_b32 v2, {D_OVF*4}\nv_mov_b32 v3, 1\ns_mov_b64 exec, 1\nbuffer_atomic_add v3, v2, {s(S_DBG,4)}, 0 offen sc0\ns_waitcnt vmcnt(0)\ns_mov_b64 exec, -1\nv_readfirstlane_b32 s33, v3\nv_and_b32 v2, 0x70, v1")
    A.label('C_sp')
    A(f"buffer_load_dword v3, v2, {s(S_DBG,4)}, 0 offen sc1\ns_waitcnt vmcnt(0)\ns_mov_b32 s34, 0")
    for i in range(8): A(f"v_readlane_b32 s{40+i}, v3, {i}\ns_add_u32 s34, s34, s{40+i}")
    A(f"s_cmp_ge_u32 s34, 256\ns_cbranch_scc1 C_all\ns_sleep 4\ns_sub_u32 s{S_BUD}, s{S_BUD}, 1\ns_cbranch_scc0 C_sp\ns_mov_b32 s{S_BUD}, 0")
    A.label('C_all')
    for i in range(8):
        A(f"s_min_u32 s35, s{40+i}, 32\ns_sub_u32 s36, 32, s35\ns_mov_b32 s{S_VX}, {i}\ns_add_u32 s{S_RANK}, s35, s33\ns_cmp_lt_u32 s33, s36\ns_cbranch_scc1 C_got\ns_sub_u32 s33, s33, s36")
    A.label('C_got')
    A(f"s_lshl_b32 s32, s{S_VX}, 8\ns_or_b32 s32, s32, s{S_RANK}\nv_mov_b32 v3, s32\nv_mov_b32 v2, 163836\nds_write_b32 v2, v3\ns_waitcnt lgkmcnt(0)")
    if et:
        A(f"s_branch C_wait"); A.label('C_tch')
        A(f"s_cmp_eq_u32 s{S_VX}, {XB}\ns_cselect_b32 s33, {4*MB}, 0\ns_and_b32 s34, s{S_VX}, {~(XA^XB)&7}\ns_cmp_lg_u32 s34, {XA&XB}\ns_cbranch_scc1 C_wait")
        A(f"s_lshr_b32 s34, s2, 3\ns_mul_i32 s34, s34, 3\ns_add_u32 s34, s34, s{S_W}\ns_sub_u32 s34, s34, 1\ns_lshl_b32 s34, s34, 13\ns_add_u32 s33, s33, s34\nv_lshlrev_b32 v2, 7, v0")
        for i in range(et): A(f"buffer_load_dword v31, v2, {s(S_B1 if opts.get('ord',[1])[0]==1 else S_B0,4)}, s33 offen\ns_add_u32 s33, s33, {96*8192}")
    A.label('C_wait')
    A(f"s_barrier\nv_mov_b32 v2, 163836\nds_read_b32 v3, v2\ns_waitcnt lgkmcnt(0)\nv_readfirstlane_b32 s32, v3\ns_barrier")
    A(f"s_and_b32 s{S_RANK}, s32, 31\ns_lshr_b32 s{S_VX}, s32, 8\ns_and_b32 s{S_VX}, s{S_VX}, 7")
    if stamps:
        A(f"s_lshl_b32 s{S_TS}, s{S_VX}, 5\ns_add_u32 s{S_TS}, s{S_TS}, s{S_RANK}\ns_lshl_b32 s{S_TS}, s{S_TS}, 12\ns_add_u32 s{S_TS}, s{S_TS}, {WS_TS}")
        A(f"v_mov_b32 v16, s100\nv_mov_b32 v17, 0\nbuffer_store_dword v16, v17, {s(S_WS,4)}, s{S_TS} offen\ns_add_u32 s{S_TS}, s{S_TS}, 4")
        stamp(A)
    A(f"s_cmp_eq_u32 s{S_VX}, {XA}\ns_cbranch_scc1 R_start\ns_cmp_eq_u32 s{S_VX}, {XB}\ns_cbranch_scc1 R_start")
    A(f"s_sub_u32 s{S_Y}, s{S_VX}, 2\ns_cmp_eq_u32 s{S_VX}, 1\ns_cselect_b32 s{S_Y}, 0, s{S_Y}")
    A(f"s_cmp_lg_u32 s{S_VX}, 6\ns_cbranch_scc1 C_np\ns_cmp_lg_u32 s{S_W}, 0\ns_cbranch_scc1 G_start")
    import rec; rec.probe(A)
    A.label('C_np')
    A(f"s_cmp_lg_u32 s32, {7*256+31}\ns_cbranch_scc1 G_start\ns_cmp_lg_u32 s{S_W}, 3\ns_cbranch_scc1 G_start\nv_lshlrev_b32 v2, 7, v0\nv_mov_b32 v3, 0")
    for i in range(NFLAGS//64): A(f"s_mov_b32 s33, {WS_FL+i*8192}\nbuffer_store_dword v3, v2, {s(S_WS,4)}, s33 offen sc1")
    A(f"s_waitcnt vmcnt(0)\nv_mov_b32 v2, {D_INIT*4}\nv_mov_b32 v3, 1\nbuffer_store_dword v3, v2, {s(S_DBG,4)}, 0 offen sc1\ns_branch G_start")
    F=('flush',)
    u=lambda c:('up',0,3,c); d=lambda c:('dn',0,3,c); k=lambda b:('bk',b,1,0); vv=lambda b:('bv',b,1,0); q=lambda b,c:('bq',b,2,c)
    q2=lambda b:('bq',b,1,0)
    SK=lambda c:('sk',0,1,c); SV=lambda c:('sv',0,1,c)
    if opts.get('sw',1): SK,SV=SV,SK
    sched=opts.get('sched') or {0:[
     [SK(0),F,u(0),k(3),q(0,0),F],
     [SK(16),F,u(4),vv(3),q(0,8),F],
     [SV(0),F,u(8),u(24),F,d(12),('kv7',),F],
     [SV(16),F,u(12),F,d(0),q(4,0),q(4,8),F],
     [k(1),F,u(16),d(4),k(5),F],
     [vv(1),F,u(20),F,d(8),vv(5),F]],
     1:[
     [SK(0),F,u(0),k(3),d(4),F],
     [SK(16),F,u(4),vv(3),F,d(8),F],
     [SV(0),F,u(8),u(24),F,d(12),F,('kv7',),F],
     [SV(16),F,u(12),F,d(0),q(0,0),q(4,8),F],
     [k(1),F,u(16),k(5),q(4,0),F],
     [vv(1),F,u(20),q(0,8),vv(5),F]],
     2:[
     [SK(0),F,u(0),k(3),d(4),F],
     [SK(16),F,u(4),vv(3),F,d(8),F],
     [SV(0),F,u(24),u(8),F,q(0,0),('kv7',),F],
     [SV(16),F,u(12),F,d(0),q(0,8),q(4,8),F],
     [k(1),F,u(16),k(5),q(4,0),F],
     [vv(1),F,u(20),F,d(12),vv(5),F]],
     3:[
     [SK(0),F,u(0),k(3),d(4),F],
     [SK(16),F,u(4),vv(3),F,d(8),F],
     [SV(0),F,u(8),u(24),F,d(12),F,('kv7',),F],
     [SV(16),F,u(12),F,d(0),q(0,0),F,q(4,8),F],
     [k(1),F,u(16),q(0,8),k(5),F],
     [vv(1),F,u(20),vv(5),q(4,0),F]],
     4:[
     [SK(0),F,u(0),k(3),d(4),F],
     [SK(16),F,u(4),vv(3),F,d(8),F],
     [SV(0),F,u(8),u(24),F,d(12),F,('kv7',),F],
     [SV(16),F,u(12),F,d(0),q(0,0),q(0,8),F],
     [k(1),F,u(16),k(5),q(4,8),F],
     [vv(1),F,u(20),vv(5),q(4,0),F]],
     5:[
     [SK(0),F,u(0),k(3),F,d(4),F],
     [SK(16),F,u(4),vv(3),F,d(8),F],
     [SV(0),F,u(8),u(24),F,d(12),F,('kv7',),F],
     [SV(16),F,u(12),F,d(0),q(0,0),q(4,8),F],
     [k(1),F,u(16),k(5),q(0,8),F],
     [vv(1),F,u(20),vv(5),q(4,0),F]],
     6:[
     [SK(0),F,u(0),k(3),F,d(4),F],
     [SK(16),F,u(4),vv(3),F,d(8),F],
     [SV(0),F,u(8),u(24),F,d(12),F,('kv7',),F],
     [SV(16),F,u(12),F,d(0),q2(0),q2(6),F],
     [k(1),F,u(16),k(5),q2(2),F],
     [vv(1),F,u(20),vv(5),q2(4),F]],
     7:[
     [SK(0),F,u(0),k(3),F,d(4),F],
     [SK(16),F,u(4),vv(3),F,d(8),F],
     [SV(0),F,u(8),u(24),F,d(12),F,('kv7',),F],
     [SV(16),F,u(12),q2(0),d(0),q2(6),F],
     [k(1),F,u(16),k(5),q2(2),F],
     [vv(1),F,u(20),vv(5),q2(4),F]],
     8:[
     [SK(0),F,u(0),k(3),F,d(4),F],
     [SK(16),F,u(4),vv(3),F,d(8),F],
     [SV(0),F,u(8),u(24),F,d(12),F,q2(6),F],
     [SV(16),F,u(12),q2(0),d(0),('kv7',),F],
     [k(1),F,u(16),k(5),q2(2),F],
     [vv(1),F,u(20),vv(5),q2(4),F]],
     }[opts.get('sc',7)]
    if opts.get('x5',0): sched[4][3],sched[5][3]=sched[5][3],sched[4][3]
    if opts.get('pfw',0): sched=[L[:-1]+[('pf',P_WO,8*MB,opts['pfw'],4),F] for L in sched]
    gemm.OPT=opts
    gemm.gemm_role(A,sched,'T_start',stamp)
    A.label('T_start')
    if mode in('full','tail'):
        import tail; tail.tail_role(A,stamp,opts)
    A("s_branch L_fin")
    A.label('R_start')
    if mode in('full','rec'):
        import rec; rec.rec_role(A,stamp,opts)
    A.label('L_fin')
    A(f"s_cmp_lg_u32 s{S_BUD}, 0\ns_cbranch_scc1 L_end\nv_mov_b32 v2, {D_ERR*4}\nv_mov_b32 v3, 1\nbuffer_atomic_add v3, v2, {s(S_DBG,4)}, 0 offen")
    A.label('L_end')
    A("s_endpgm")
    ref=open(f"cdna_kernels/{K}.s.ref").read()
    head=ref[:ref.index("    ; v1 = byte offset")].replace("grid=(8192,1,1) block=(256,1,1) lds=0","grid=(256,1,1) block=(256,1,1) lds=163840")
    foot=ref[ref.index(".section .rodata"):].replace("next_free_vgpr 256","next_free_vgpr 512")
    return head+'; opts '+' '.join(f'{k}={x}' for k,x in opts.items() if k!='sched')+'\n'+A.text()+foot
if __name__=='__main__':
    mode=sys.argv[1]; out=sys.argv[2]; st='ts' in sys.argv[3:]
    opts={k:eval(x) for k,x in (o.split('=') for o in sys.argv[3:] if '=' in o)}
    open(out,'w').write(build(mode,st,opts))
```

```python
from common import *
WS=s(S_WS,4); OPT={}; SC=[' sc1',' sc1']
S_S=32; S_SC=33; S_HI=34; S_RT=35; S_EH=36; S_SA=37; S_GO=38; S_FO=39; S_OO=40; Q=56
L8=2; OA=3; RW=4; RR=5; GA=6; BA=7; L32=8; T0=10; T1=11; ONE=9
NEG0=12; NEG1=16; NEGM=20; ONES=24; GW=28
ACC=44
def mf(d,A_,B_,c): return f"v_mfma_f32_16x16x32_bf16 {v(d,4)}, {A_ if isinstance(A_,str) else v(A_,4)}, {v(B_,4)}, {c if isinstance(c,str) else v(c,4)}"
cv=lambda d,r:f"v_cvt_pk_bf16_f32 v{d}, v{r}, v{r+1}"
def xred(A,r,t,op):
    A(f"v_mov_b32 v{t}, v{r}\nv_permlane16_swap_b32 v{r}, v{t}\n{op} v{r}, v{r}, v{t}\nv_mov_b32 v{t}, v{r}\nv_permlane32_swap_b32 v{r}, v{t}\n{op} v{r}, v{r}, v{t}")
XW=20; XR=21; FA=22; FT=23; FR=60; LS=61; L_X=147456
QR=64; KX=80; VX=112; VM=176; KP=184; XI=188
S_SP=41; S_FM=42; S_DF=43; S_JA=44; S_JS=45; S_EA=46; S_MD=47; S_OOB=48; S_DP=49; S_SF=50; S_LB=51; S_PO=52; S_OI=53; S_FP=54; S_HS=55
poll=f"s_mov_b64 exec, 0xfff1f\nbuffer_load_dword v{FR}, v{FA}, {WS}, 0 offen sc1\ns_mov_b64 exec, -1"
chk=f"v_cmp_lt_u32 vcc, v{FR}, v{FT}\ns_mov_b32 s{S_FM}, vcc_lo"
def need(A,mask,then=None):
    L=A.newlabel('fw'); E=A.newlabel('fe'); D=A.newlabel('fd')
    A(f"s_and_b32 s{Q+6}, s{S_FM}, {mask}\ns_cbranch_scc0 {E}")
    A.label(L)
    if OPT.get('pm',1): A(f"{poll.replace('0xfff1f',hex(mask))}\ns_andn2_b32 s{S_FM}, s{S_FM}, {mask}\ns_waitcnt vmcnt(0)\nv_cmp_lt_u32 vcc, v{FR}, v{FT}\ns_and_b32 s{Q+6}, vcc_lo, {mask}\ns_cbranch_scc0 {D}")
    else: A(f"{poll}\ns_waitcnt vmcnt(0)\n{chk}\ns_and_b32 s{Q+6}, s{S_FM}, {mask}\ns_cbranch_scc0 {D}")
    A(f"s_sleep {OPT.get('ps',1)}\ns_sub_u32 s{S_BUD}, s{S_BUD}, 1\ns_cbranch_scc0 {L}\ns_mov_b32 s{S_BUD}, 0")
    A.label(D)
    if then: then()
    A.label(E)
def es(A,k):
    if OPT.get('es'): A(f's_memrealtime s[{64+2*k}:{65+2*k}]')
def wl(r,k,x): return f"v_writelane_b32 v{r}, {x}, {k}"
ld=lambda d,so,off:f"buffer_load_dwordx4 {v(d,4)}, v1, {WS}, s{so} offen offset:{off}"
def set_a(A): A(f"s_add_u32 s{Q}, s{S_SA}, 1\ns_min_u32 s{Q}, s{Q}, {63 if OPT.get('dp',1) else 64}\n{wl(FT,0,f's{Q}')}\n{wl(FT,1,f's{Q}')}\ns_or_b32 s{S_FM}, s{S_FM}, 3")
def set_p(A): A(f"""s_lshr_b32 s{Q}, s{S_SP}, 3
    s_lshl_b32 s{Q+1}, s{Q}, 7
    s_add_u32 s{Q+1}, s{Q+1}, {WS_FL+F_Q*128}
    s_add_u32 s{Q}, s{Q}, 1
    s_lshr_b32 s{Q+2}, s{S_SP}, 2
    s_cmp_lt_u32 s{S_SP}, 8
    s_cselect_b32 s{Q}, s{Q+2}, s{Q}
    s_cselect_b32 s{Q+2}, 64, 32
    s_lshl_b32 s{Q}, s{Q}, 7
    s_add_u32 s{Q}, s{Q}, {WS_FL+F_KV*128}
    {wl(FA,2,f's{Q+1}')}
    {wl(FA,3,f's{Q}')}
    {wl(FT,3,f's{Q+2}')}
    s_or_b32 s{S_FM}, s{S_FM}, 12""")
MO=0xff00; MF=0xf0010
def set_s(A): A(f"s_mov_b64 exec, {MO}\nv_add_u32 v{FT}, 1, v{FT}\ns_mov_b64 exec, -1\ns_or_b32 s{S_FM}, s{S_FM}, {MO}")
def set_f(A): A(f"""s_lshr_b32 s{Q+6}, s{S_SF}, 3
    s_lshl_b32 s{Q+6}, s{Q+6}, 7
    s_add_u32 s{Q+6}, s{Q+6}, {WS_FL+F_BF*128}
    {wl(FA,4,f's{Q+6}')}
    {wl(FT,4,16)}
    s_mov_b64 exec, 0xf0000
    v_add_u32 v{FT}, 1, v{FT}
    s_mov_b64 exec, -1
    s_or_b32 s{S_FM}, s{S_FM}, {MF}""")
def sig(r):
    return f"s_barrier\ns_mov_b64 exec, 1\nv_mov_b32 v{ONE}, s{S_JA if r==S_DF else S_JS}\nbuffer_store_dword v{ONE}, off, {WS}, s{r}{SC[0]}\ns_mov_b64 exec, -1\ns_mov_b32 s{r}, s{S_OOB}"
def pre(A):
    i=S_RANK
    need(A,12)
    A(f"s_lshl_b32 s{Q}, s{S_SP}, 5\ns_add_u32 s{Q}, s{Q}, s{i}\ns_lshl_b32 s{Q+1}, s{Q}, 13\ns_lshl_b32 s{Q+2}, s{S_RT}, 12\ns_add_u32 s{Q+2}, s{Q+2}, s{Q+1}\ns_add_u32 s{Q+2}, s{Q+2}, {WS_QX}")
    for k in range(4): A(ld(QR+4*k,Q+2,k*1024))
    A(f"s_add_u32 s{Q+2}, s{Q+1}, {WS_KX}\ns_add_u32 s{Q+3}, s{Q+2}, 4096")
    for k in range(4): A(ld(KX+4*k,Q+2,k*1024)); A(ld(KX+16+4*k,Q+3,k*1024))
    A(f"s_lshl_b32 s{Q+2}, s{S_EH}, 12\ns_add_u32 s{Q+2}, s{Q+2}, s{Q+1}\ns_add_u32 s{Q+2}, s{Q+2}, {WS_VX}")
    for k in range(4): A(ld(VX+4*k,Q+2,k*1024))
    A(f"s_lshl_b32 s{Q}, s{Q}, 11\nbuffer_load_dwordx4 {v(XI,4)}, v{L32}, {s(S_A,4)}, s{Q} offen\nbuffer_load_dwordx4 {v(XI+4,4)}, v{L32}, {s(S_A,4)}, s{Q} offen offset:16")
    A(f"s_add_u32 s{Q}, s{S_JA}, 1\nv_readlane_b32 s{S_SP}, v{LS}, s{Q}")
    set_p(A)
def ldx(A,spec,sc=''):
    q=Q+4
    A(f"s_lshl_b32 s{q}, s{S_SA}, 5\ns_add_u32 s{q}, s{q}, s{S_RANK}")
    A(f"s_lshl_b32 s{q}, s{q}, 13\ns_add_u32 s{q}, s{q}, {WS_KM}")
    if spec: A(f"s_and_b32 s{q+1}, s{S_FM}, 3\ns_cselect_b32 s{q}, s{S_OOB}, s{q}")
    A(f"s_lshl_b32 s{q+1}, s{S_W}, 10\ns_add_u32 s{q+1}, s{q+1}, s{q}\ns_add_u32 s{q+2}, s{q+1}, 4096")
    for x in range(2): A(f"buffer_load_dwordx2 {v(KP+2*x,2)}, v1, {WS}, s{q+1+x} offen offset:8{sc}")
    A(f"s_lshl_b32 s{q+1}, s{S_EH}, 11\ns_add_u32 s{q+1}, s{q+1}, s{q}\ns_add_u32 s{q+2}, s{q+1}, 4096")
    for p in range(2):
        for x in range(2): A(f"buffer_load_dwordx2 {v(VM+4*p+2*x,2)}, v1, {WS}, s{q+1+x} offen offset:{p*1024}{sc}")
def att(A):
    i=S_RANK; w=S_W
    KM=128; S0=144; S1=148; SM=152; P=156; BH=160; BL=164; Lr=168; R=172; O=196; XU=212
    G=R+2
    for k in range(8):
        A(mf(S1 if k&1 else S0,KX+16*(k&1)+4*(k>>1),QR+4*(k>>1),(NEG1 if k&1 else NEG0) if k<2 else (S1 if k&1 else S0)))
        A(f"v_lshlrev_b32 v{XU+2*k}, 16, v{XI+k}\nv_and_b32 v{XU+2*k+1}, s{S_HI}, v{XI+k}")
    A(f"v_mul_f32 v{G}, v{XU}, v{GW}\nv_mul_f32 v{G+1}, v{XU+1}, v{GW+1}")
    for k in range(2,16): A(f"v_fmac_f32 v{G+(k&1)}, v{XU+k}, v{GW+k}")
    A(f"v_add_f32 v{G}, v{G}, v{G+1}")
    A(f"v_max3_f32 v{R}, v{S0}, v{S0+1}, v{S0+2}\nv_max3_f32 v{R+1}, v{S0+3}, v{S1}, v{S1+1}\nv_max3_f32 v{R}, v{R}, v{S1+2}, v{S1+3}\nv_max_f32 v{R}, v{R}, v{R+1}\nv_mov_b32 v{BL}, 0\nv_mov_b32 v{BH+1}, 0")
    A(f"s_or_b32 s{S_FM}, s{S_FM}, s{S_EA}")
    L1=A.newlabel('dp'); L2=A.newlabel('dq'); L3=A.newlabel('dr')
    dl=lambda:A(f"s_cmp_lg_u32 s{S_SA}, 63\ns_cbranch_scc1 {L3}\ns_sleep {OPT['dd']}\n{L3}:") if OPT.get('dd') else 0
    need(A,3,lambda:(es(A,0),dl(),ldx(A,False),A("s_waitcnt vmcnt(0)")))
    if OPT.get('dp',1):
        A(f"s_cmp_lg_u32 s{S_SA}, 63\ns_cbranch_scc1 {L2}\n{L1}:\ns_waitcnt vmcnt(0)\nv_max3_u32 v{T0}, v{KP}, v{KP+2}, v{VM}\nv_max3_u32 v{T1}, v{VM+2}, v{VM+4}, v{VM+6}\nv_max_u32 v{T0}, v{T0}, v{T1}\nv_cmp_eq_u32 vcc, -1, v{T0}\ns_cbranch_vccz {L2}")
        ldx(A,False,' sc1')
        A(f"s_sub_u32 s{S_BUD}, s{S_BUD}, 1\ns_cbranch_scc0 {L1}\ns_mov_b32 s{S_BUD}, 0\ns_waitcnt vmcnt(0)\n{L2}:")
    es(A,1)
    A(f"ds_write2_b32 v{XW}, v{KP}, v{KP+2} offset0:0 offset1:1\nds_write2_b32 v{XW}, v{KP+1}, v{KP+3} offset0:128 offset1:129\ns_waitcnt vmcnt(16) lgkmcnt(0)\ns_barrier")
    for k in range(8): A(f"ds_read_b64_tr_b16 {v(KM+2*k,2)}, v{XR} offset:{k*512}")
    A(sig(S_DP)[10:])
    for k,sh in enumerate((8,4,2,1)):
        A(f"v_add_f32_dpp v{G}, v{G}, v{G} row_ror:{sh} row_mask:0xf bank_mask:0xf")
        A(f"s_waitcnt lgkmcnt({6-2*k})"); A(mf(SM,KM+4*k,QR+4*k,'0' if k==0 else SM))
    xred(A,G,G+1,'v_add_f32')
    A(f"v_add_f32 v{SM}, v{SM}, v{SM+2}\nv_add_f32 v{SM+1}, v{SM+1}, v{SM+3}\nv_max3_f32 v{R}, v{R}, v{SM}, v{SM+1}")
    xred(A,R,R+1,'v_max_f32')
    A(f"v_mul_f32 v{R}, s{S_SC}, v{R}")
    for r in range(S0,S0+10): A(f"v_fma_f32 v{r}, v{r}, s{S_SC}, -v{R}")
    for r in range(S0,S0+10): A(f"v_exp_f32 v{r}, v{r}")
    for j in range(5): A(cv(P+j,S0+2*j))
    A(f"v_mov_b32 v{BL+1}, v{BH}")
    A(mf(Lr,ONES,P,'0'))
    A(f"v_mov_b64 {v(BH+2,2)}, {v(BH,2)}\nv_mov_b64 {v(BL+2,2)}, {v(BL,2)}")
    gt=[f"v_mul_f32 v{G}, 0xbfb8aa3b, v{G}",f"v_exp_f32 v{G}, v{G}",f"v_mfma_f32_16x16x16_bf16 {v(Lr,4)}, {v(ONES,2)}, {v(BH,2)}, {v(Lr,4)}\nv_add_f32 v{G}, 1.0, v{G}",f"v_rcp_f32 v{G}, v{G}"]
    for j in range(4):
        A(mf(O+4*j,VX+4*j,P,'0'))
        if j<2: A(gt[2*j])
        A(mf(O+4*j,VM+4*(j>>1),BL if j&1 else BH,O+4*j))
        if j<2: A(gt[2*j+1])
    A(f"""s_lshl_b32 s{Q}, s{S_SA}, 5
    s_add_u32 s{Q}, s{Q}, s{i}
    s_lshl_b32 s{Q}, s{Q}, 2
    s_add_u32 s{Q}, s{Q}, s{S_GO}
    v_rcp_f32 v{R}, v{Lr}
    s_lshl_b32 s{Q+2}, s{S_SA}, 18
    s_add_u32 s{Q+2}, s{Q+2}, s{S_OO}
    s_mov_b32 s{S_DF}, s{S_FO}""")
    for jj in range(2):
        for r in range(O+8*jj,O+8*jj+8): A(f"v_mul_f32 v{r}, v{R}, v{r}")
        for j in range(4): A(cv(S0+4*jj+j,O+8*jj+2*j))
        x=f"buffer_store_dwordx4 {v(S0+4*jj,4)}, v1, {WS}, s{Q+2} offen offset:{jj*1024}@"+(f"\ns_mov_b64 exec, 1\nbuffer_store_dword v{G}, off, {WS}, s{Q}@\ns_mov_b64 exec, -1" if jj else "")
        if SC[1]==SC[2]: A(x.replace('@',SC[1]))
        else:
            L1=A.newlabel('o1'); L2=A.newlabel('o2')
            A(f"s_cmp_eq_u32 s{S_MD}, 3\ns_cselect_b32 s{Q+3}, -1, s{S_SA}\ns_cmp_ge_i32 s{Q+3}, {OPT.get('th',40)}\ns_cbranch_scc1 {L1}\n{x.replace('@',SC[2])}\ns_branch {L2}\n{L1}:\n{x.replace('@',SC[1])}\n{L2}:")
    A(f"s_add_u32 s{S_JA}, s{S_JA}, 1\ns_mov_b32 s{S_SA}, s{S_SP}\ns_mov_b32 s{S_EA}, 3")
    set_a(A)
AO=lambda:OPT.get('al',3)&1
AP=lambda:OPT.get('al',3)&2
FB=228; Gv=244; RING=128
def dma(A):
    need(A,MO); es(A,4)
    A(f"s_xor_b32 s{S_LB}, s{S_LB}, 0x10000\nv_xor_b32 v{RR}, 0x10000, v{RR}\ns_lshl_b32 s{Q}, s{S_S}, 18\ns_add_u32 s{Q}, s{Q}, s{S_OI}")
    for c in range(4):
        A(f"s_add_u32 m0, s{S_LB}, {c*16384}\ns_add_u32 s{Q+1}, s{Q}, {(c>>1)*4096+(c&1)*32768 if AO() else (c>>1)*131072+(c&1)*16384}")
        for k in range(4): A(f"buffer_load_dwordx4 v1, {WS}, s{Q+1} offen offset:{k*1024} sc1 lds")
def fld(A,part=0):
    es(A,7); need(A,[MF,0x10,MF&~0x10][part]); es(A,8)
    A(f"s_lshl_b32 s{Q+2}, s{S_SF}, 16\ns_lshl_b32 s{Q+3}, s{S_SF}, 7")
    A(f"s_lshl_b32 s{Q}, s{S_SF}, 18\ns_min_u32 s{Q}, s{Q}, s{S_OOB}")
    for k in [range(8),range(4),range(4,8)][part]:
        if k>3 and AP(): A(f"s_add_u32 s{Q+1}, s{Q}, {WS_KX+(k-4)*65536}\nbuffer_load_dwordx2 {v(FB+2*k,2)}, v{BA}, {WS}, s{Q+1} offen sc1")
        else: A(f"s_add_u32 s{Q+1}, s{Q+2}, {WS_BF+k*4*MB}\nbuffer_load_dwordx2 {v(FB+2*k,2)}, v{BA}, {WS}, s{Q+1} offen")
    if part!=1: A(f"buffer_load_dword v{Gv}, v{GA}, {WS}, s{Q+3} offen sc1")
def fin(A):
    t=RING
    for k in range(16): A(f"v_lshlrev_b32 v{t+2*k}, 16, v{FB+k}\nv_and_b32 v{t+2*k+1}, s{S_HI}, v{FB+k}")
    for u in (t,t+16):
        for k in range(4): A(f"v_add_f32 v{u+k}, v{u+k}, v{u+4+k}\nv_add_f32 v{u+8+k}, v{u+8+k}, v{u+12+k}")
        for k in range(4): A(f"v_add_f32 v{u+k}, v{u+k}, v{u+8+k}")
    for k in range(4): A(f"v_sub_f32 v{t+16+k}, v{t+16+k}, v{t+k}")
    for k in range(4): A(f"v_fma_f32 v{t+k}, v{t+16+k}, v{Gv}, v{t+k}")
    A(cv(t,t)); A(cv(t+1,t+2))
    A(f"buffer_store_dwordx2 {v(t,2)}, v{OA}, {s(S_OUT,4)}, s{Q+2} offen {OPT.get('nto','')}")
def gstage(A,last):
    D=6; PK=160
    rd=lambda n:A(f"ds_read_b128 {v(RING+4*(n&7),4)}, v{RR} offset:{n*1024}")
    def put(rt):
        for j in range(4): A(cv(PK+4*rt+j,ACC+8*rt+2*j))
        x=f"buffer_store_dwordx4 {v(PK+4*rt,4)}, v1, {WS}, s{Q+7} offen offset:{rt*1024}"
        if last or SC[1]==SC[2] or not OPT.get('th',40): A(x+SC[2 if last else 1]); return
        L1=A.newlabel('p1'); L2=A.newlabel('p2')
        A(f"s_cmp_ge_u32 s{S_HS}, {OPT.get('th',40)}\ns_cbranch_scc1 {L1}\n{x}{SC[2]}\ns_branch {L2}\n{L1}:\n{x}{SC[1]}\n{L2}:")
    A(f"s_lshl_b32 s{Q+7}, s{S_S}, {18 if AP() else 16}\ns_add_u32 s{Q+7}, s{Q+7}, s{S_PO}\ns_mov_b32 s{S_DP}, s{S_FP}\ns_mov_b32 s{S_HS}, s{S_S}\ns_add_u32 s{S_JS}, s{S_JS}, 1")
    if not last: A(f"v_readlane_b32 s{S_S}, v{LS}, s{S_JS}"); set_s(A)
    A(f"s_waitcnt vmcnt({12 if last else 22})\ns_barrier")
    nr=0; es(A,5)
    for n in range(64):
        rt,k=n>>5,n&31
        while nr<min(64,n+D):
            if last and nr and nr%16==0: A(f"s_waitcnt vmcnt({12-nr//4})\ns_barrier")
            rd(nr); nr+=1
        A(f"s_waitcnt lgkmcnt({nr-1-n})")
        for nt in range(2): A(mf(ACC+8*rt+4*nt,a((k*2+nt)*4,4),RING+4*(n&7),'0' if k==0 else ACC+8*rt+4*nt))
        if last:
            if n==44: put(0)
            if n==43 and OPT.get('wb',0)&4: wbl2(A)
        else:
            if n==10: A("s_waitcnt vmcnt(18)"); A(sig(S_DF)); A(poll)
            if n==34: A("s_waitcnt vmcnt(0)"); A(chk); fld(A); ldx(A,True); A(f"s_and_b32 s{S_EA}, s{S_FM}, 3")
            if n==52: A(poll)
    if not last: put(0)
    put(1)
    if not last: A("s_waitcnt vmcnt(2)"); A(chk); fin(A)
    if not last: A(f"s_mov_b32 s{S_SF}, s{S_HS}"); set_f(A)
def tail_role(A,stamp,o):
    i=S_RANK; w=S_W; c=64; g=65; u=66; OPT.update(o)
    segs=[[] for y in range(6)]; fr=list(o.get('tf',[104,101,140,137,125,131]))
    for sg in range(64):
        y=min(range(6),key=lambda y:(fr[y],y)); segs[y].append(sg); fr[y]=max(fr[y],o.get('t0',20.5)+o.get('t1',2.31)*(sg+1))+o.get('tc',3.8)
    for k,y in enumerate(o.get('lo',[2,0,3,4,1,5])): segs[y][-1]=58+k
    if o.get('v'): print(segs)
    assert sorted(sum(segs,[]))==list(range(64)) and all(len(L)!=1 for L in segs)
    A(f"v_mov_b32 v{LS}, 64")
    for y,L in enumerate(segs):
        N=A.newlabel('sl')
        A(f"s_cmp_lg_u32 s{S_Y}, {y}\ns_cbranch_scc1 {N}")
        if not L: A("s_branch L_fin")
        for j,sg in enumerate(L): A(wl(LS,j,sg))
        A.label(N)
    srd(A,S_B0,P_WO,8*MB); srd(A,S_B1,P_GW,2048); srd(A,S_A,P_X,4*MB)
    A(f"""v_lshrrev_b32 v{u}, 2, v0
    v_lshlrev_b32 v{u}, 11, v{u}
    v_and_b32 v{u+1}, 3, v0
    v_lshl_add_u32 v{u}, v{u+1}, 4, v{u}
    s_lshr_b32 s{Q+3}, s{i}, 3
    s_lshl_b32 s{Q}, s{Q+3}, 21
    s_and_b32 s{Q+4}, s{i}, 7
    s_lshl_b32 s{Q+4}, s{Q+4}, 2
    s_add_u32 s{Q+4}, s{Q+4}, s{w}
    s_lshl_b32 s{Q+1}, s{Q+4}, 6
    s_add_u32 s{Q}, s{Q}, s{Q+1}
    s_lshl_b32 s{Q+1}, s{i}, 6
    s_lshl_b32 s{S_PO}, s{Q+3}, {16 if AP() else 22}
    s_lshl_b32 s{Q+4}, s{Q+4}, 11
    s_add_u32 s{S_PO}, s{S_PO}, s{Q+4}
    s_add_u32 s{S_PO}, s{S_PO}, {WS_KX if AP() else WS_AP}
    s_lshl_b32 s{S_LB}, s{w}, 12
    s_lshl_b32 s{S_OI}, s{Q+3}, 15
    s_add_u32 s{S_OI}, s{S_OI}, s{S_LB}
    s_lshl_b32 s{S_OI}, s{S_OI}, {AO()}
    s_add_u32 s{S_OI}, s{S_OI}, {WS_QX if AO() else WS_O}
    v_add_u32 v{u}, s{Q}, v{u}
    s_lshl_b32 s{Q+2}, s{w}, 15
    v_lshrrev_b32 v{u+2}, 2, v0
    v_lshlrev_b32 v{u+2}, 6, v{u+2}
    v_lshl_add_u32 v{u+2}, v{u+1}, 3, v{u+2}
    v_add_u32 v{u+2}, s{Q+2}, v{u+2}
    v_lshlrev_b32 v{L32}, 5, v0
    buffer_load_dwordx4 {v(ACC,4)}, v{L32}, {s(S_B1,4)}, 0 offen
    buffer_load_dwordx4 {v(ACC+4,4)}, v{L32}, {s(S_B1,4)}, 0 offen offset:16""")
    def dm(n): A(f"s_add_u32 m0, s{Q+2}, {(n&31)*1024}\ns_mov_b32 s{Q}, {n*32768}\nbuffer_load_dwordx4 v{u}, {s(S_B0,4)}, s{Q} offen lds")
    for n in range(32): dm(n)
    A(f"""s_mov_b32 s{S_SC}, 0x3e0293ee
    s_mov_b32 s{S_HI}, 0xffff0000
    s_lshr_b32 s{S_RT}, s{w}, 1
    s_and_b32 s{S_EH}, s{w}, 1
    v_mov_b32 v{ONE}, 1
    v_lshlrev_b32 v{L8}, 3, v0
    v_and_b32 v{c}, 15, v0
    v_lshrrev_b32 v{g}, 4, v0
    s_lshl_b32 s{Q}, s{S_RT}, 4
    v_add_u32 v{u+3}, s{Q}, v{c}
    v_lshlrev_b32 v{GA}, 2, v{u+3}
    v_add_u32 v{GA}, {WS_G}, v{GA}
    v_lshlrev_b32 v{OA}, 11, v{u+3}
    v_lshl_add_u32 v{OA}, v{g}, 3, v{OA}
    s_lshl_b32 s{Q}, s{S_EH}, 5
    s_add_u32 s{Q}, s{Q}, s{Q+1}
    v_add_u32 v{OA}, s{Q}, v{OA}
    s_lshl_b32 s{Q}, s{i}, 11
    s_lshl_b32 s{Q+1}, s{S_RT}, 10
    s_add_u32 s{Q}, s{Q}, s{Q+1}
    s_lshl_b32 s{Q+1}, s{S_EH}, 3
    s_add_u32 s{Q}, s{Q}, s{Q+1}
    v_add_u32 v{BA}, s{Q}, v1
    v_mov_b32 v{RR}, v1
    v_lshlrev_b32 v{u+4}, 2, v{g}
    v_sub_u32 v{u+3}, v{u+3}, v{u+4}
    v_mov_b32 v{u+4}, 0xf149f2ca""")
    for k in range(8): A(f"v_cmp_gt_i32 vcc, {(k>>2)*16+(k&3)}, v{u+3}\nv_cndmask_b32 v{NEG0+k}, 0, v{u+4}, vcc")
    for k in range(4): A(f"v_mov_b32 v{ONES+k}, 0x3f803f80")
    A(f"""v_lshrrev_b32 v{u+3}, 2, v{c}
    v_xor_b32 v{u+3}, v{u+3}, v{g}
    v_lshlrev_b32 v{u+3}, 3, v{u+3}
    v_lshl_add_u32 v{u+3}, v{c}, 5, v{u+3}
    s_lshl_b32 s{Q}, s{w}, 10
    s_add_u32 s{Q}, s{Q}, {L_X}
    v_add_u32 v{XW}, s{Q}, v{u+3}
    v_xor_b32 v{u+3}, v{u+1}, v{g}
    v_lshlrev_b32 v{u+3}, 3, v{u+3}
    v_lshrrev_b32 v{u+4}, 2, v0
    v_lshl_add_u32 v{u+3}, v{u+4}, 5, v{u+3}
    v_add_u32 v{XR}, {L_X}, v{u+3}
    s_mov_b32 s{Q}, 0x10000000
    s_cmp_eq_u32 s{w}, 0
    s_cselect_b32 s{S_GO}, {WS_G}, s{Q}
    s_cselect_b32 s{S_FO}, {WS_FL+F_O*128}, s{Q}
    s_lshl_b32 s{Q}, s{S_Y}, 5
    s_add_u32 s{Q}, s{Q}, s{i}
    s_lshl_b32 s{Q}, s{Q}, 7
    s_add_u32 s{S_FO}, s{S_FO}, s{Q}
    s_add_u32 s{S_FP}, s{S_FO}, {(F_P-F_O)*128}
    s_lshl_b32 s{S_OO}, s{S_RT}, {12 if AO() else 17}
    s_lshl_b32 s{Q}, s{i}, {12+AO()}
    s_add_u32 s{S_OO}, s{S_OO}, s{Q}
    s_lshl_b32 s{Q}, s{S_EH}, 11
    s_add_u32 s{S_OO}, s{S_OO}, s{Q}
    s_add_u32 s{S_OO}, s{S_OO}, {WS_QX if AO() else WS_O}""")
    A("s_waitcnt vmcnt(32)")
    for k in range(8): A(f"v_lshlrev_b32 v{GW+2*k}, 16, v{ACC+k}\nv_and_b32 v{GW+2*k+1}, s{S_HI}, v{ACC+k}")
    for grp in range(8):
        A(f"s_waitcnt vmcnt({24 if grp<5 else 8*(7-grp)})")
        for ks in range(4*grp,4*grp+4):
            for nt in range(2):
                for hf in range(2): A(f"ds_read_b64_tr_b16 {a((ks*2+nt)*4+2*hf,2)}, v{u+2} offset:{(ks&15)*2048+hf*1024+nt*32}")
        if grp<4:
            A("s_waitcnt lgkmcnt(0)")
            for n in range(32+8*grp,40+8*grp): dm(n)
    if o.get('dry',0):
        assert AP()
        A(f"s_waitcnt lgkmcnt(0)\ns_barrier\ns_mov_b32 s{S_S}, 0x400\ns_mov_b32 s{S_FM}, 0\ns_mov_b32 s{S_MD}, 5\nv_mov_b32 v{FA}, 0\ns_branch T_last")
        A.label('T_init')
    A(f"""s_waitcnt lgkmcnt(0)
    v_readlane_b32 s{S_S}, v{LS}, 0
    s_mov_b32 s{S_OOB}, 0x10000000
    s_mov_b32 s{S_DF}, s{S_OOB}
    s_mov_b32 s{S_DP}, s{S_OOB}
    s_mov_b32 s{S_SF}, 0x1000
    s_mov_b32 s{S_MD}, 0
    s_mov_b32 s{S_JA}, 0
    s_mov_b32 s{S_JS}, 0
    s_mov_b32 s{S_EA}, 3
    s_mov_b32 s{S_FM}, 0
    s_mov_b32 s{S_SA}, s{S_S}
    s_mov_b32 s{S_SP}, s{S_S}
    s_lshl_b32 s{Q}, s{i}, 8
    s_add_u32 s{Q}, s{Q}, {WS_FL+F_PROG*128}
    v_mov_b32 v{FA}, s{Q}
    s_add_u32 s{Q}, s{Q}, 128
    {wl(FA,1,f's{Q}')}
    v_mov_b32 v{FT}, 0
    v_mov_b32 v{FR}, 0
    {wl(FT,2,16)}
    s_lshl_b32 s{Q}, s{S_Y}, 5
    s_and_b32 s{Q+1}, s{i}, 24
    s_add_u32 s{Q+1}, s{Q+1}, s{Q}
    s_lshl_b32 s{Q+1}, s{Q+1}, 7
    s_add_u32 s{Q+1}, s{Q+1}, {WS_FL+(F_O-8)*128}
    s_mov_b64 exec, {MO}
    v_lshl_add_u32 v{FA}, v0, 7, s{Q+1}
    s_lshr_b32 s{Q+1}, s{i}, 2
    s_add_u32 s{Q+1}, s{Q+1}, s{Q}
    s_lshl_b32 s{Q+1}, s{Q+1}, 7
    s_add_u32 s{Q+1}, s{Q+1}, {WS_FL+(F_P-128)*128}
    s_mov_b64 exec, 0xf0000
    v_lshl_add_u32 v{FA}, v0, 10, s{Q+1}
    s_mov_b64 exec, -1""")
    A(f"s_lshl_b32 s{Q}, s{S_VX}, 4\nbuffer_load_dword v{ACC}, off, {s(S_DBG,4)}, s{Q} sc1")
    set_a(A); set_p(A); set_s(A)
    stamp(A,T0)
    tf_=o.get('tfast',5)
    A(f"s_waitcnt vmcnt(0)\nv_readfirstlane_b32 s{Q}, v{ACC}\ns_cmp_lt_u32 s{Q}, {32 if not o.get('fakexcc') else 999}\ns_cbranch_scc1 ST_pre")
    for P in ('','S'):
        SC[:]=[' sc1' if P or not tf_&1 else '',' sc1' if P or not tf_&2 else '',' sc1' if P or not tf_&6 else '']
        A.label(P+'T_pre')
        pre(A)
        A(f"s_cmp_eq_u32 s{S_MD}, 2\ns_cbranch_scc1 {P}T_g\ns_waitcnt vmcnt(0)\ns_cmp_eq_u32 s{S_MD}, 0\ns_cbranch_scc1 {P}T_att\ns_mov_b32 s{S_MD}, 2")
        A.label(P+'T_loop')
        dma(A)
        A(f"s_cmp_lt_u32 s{S_SP}, 64\ns_cbranch_scc1 {P}T_att\ns_waitcnt vmcnt(0)\n{sig(S_DP)}\ns_branch {P}T_g")
        A.label(P+'T_att')
        att(A); es(A,2)
        A(f"s_cmp_eq_u32 s{S_MD}, 2\ns_cbranch_scc1 {P}T_pre\ns_waitcnt vmcnt(0)\n{sig(S_DF)}\ns_add_u32 s{S_MD}, s{S_MD}, 1\ns_cmp_eq_u32 s{S_MD}, 1\ns_cbranch_scc1 {P}T_pre")
        A.label(P+'T_last'); es(A,3)
        dma(A); gstage(A,True)
        if o.get('dry',0): A(f"s_cmp_eq_u32 s{S_MD}, 5\ns_cbranch_scc1 T_init")
        es(A,6); A(f"s_waitcnt vmcnt(0)\n{sig(S_DP)}")
        fld(A,2); A("s_waitcnt vmcnt(0)"); es(A,9); fin(A); stamp(A,T0)
        A("s_branch T_end")
        A.label(P+'T_g')
        gstage(A,False)
        stamp(A,T0)
        A(f"s_cmp_lg_u32 s{S_JS}, s{S_JA}\ns_cbranch_scc1 {P}T_loop\ns_mov_b32 s{S_MD}, 3")
        A.label(P+'T_fb'); es(A,6)
        A(f"s_waitcnt vmcnt(0)\n{sig(S_DP)}")
        fld(A); A("s_waitcnt vmcnt(0)"); es(A,9); fin(A)
        stamp(A,T0)
        A(f"s_mov_b32 s{S_SF}, s{S_SA}"); set_f(A); fld(A,1)
        if o.get('wb',0)&2: wbl2(A)
        A(f"s_branch {P}T_att")
    A.label('T_end')
    if o.get('wb',0)&8: A("s_waitcnt vmcnt(0)\ns_barrier"); wbl2(A,not o['wb']&16)
    if o.get('es'):
        es(A,10); A("s_waitcnt vmcnt(0)"); es(A,11); A("s_waitcnt lgkmcnt(0)")
        for k in range(12): A(wl(T0,k,f's{64+2*k}'))
        A(f"s_and_b32 s98, s98, 0xfffff000\ns_lshl_b32 s{Q}, s{w}, 6\ns_add_u32 s98, s98, s{Q}\nv_lshlrev_b32 v{T1}, 2, v0\ns_mov_b64 exec, 0xfff\nbuffer_store_dword v{T0}, v{T1}, {WS}, s98 offen offset:1024\ns_mov_b64 exec, -1")
```

```python
from common import *
WS=s(S_WS,4); OPT={}; SC=[' sc1',' sc1']
S_S=32; S_SC=33; S_HI=34; S_RT=35; S_EH=36; S_SA=37; S_GO=38; S_FO=39; S_OO=40; Q=56
L8=2; OA=3; RW=4; RR=5; GA=6; BA=7; L32=8; T0=10; T1=11; ONE=9
NEG0=12; NEG1=16; NEGM=20; ONES=24; GW=28
ACC=44
def mf(d,A_,B_,c): return f"v_mfma_f32_16x16x32_bf16 {v(d,4)}, {A_ if isinstance(A_,str) else v(A_,4)}, {v(B_,4)}, {c if isinstance(c,str) else v(c,4)}"
cv=lambda d,r:f"v_cvt_pk_bf16_f32 v{d}, v{r}, v{r+1}"
def xred(A,r,t,op):
    A(f"v_mov_b32 v{t}, v{r}\nv_permlane16_swap_b32 v{r}, v{t}\n{op} v{r}, v{r}, v{t}\nv_mov_b32 v{t}, v{r}\nv_permlane32_swap_b32 v{r}, v{t}\n{op} v{r}, v{r}, v{t}")
XW=20; XR=21; FA=22; FT=23; FR=60; LS=61; L_X=147456
QR=64; KX=80; VX=112; VM=176; KP=184; XI=188
S_SP=41; S_FM=42; S_DF=43; S_JA=44; S_JS=45; S_EA=46; S_MD=47; S_OOB=48; S_DP=49; S_SF=50; S_LB=51; S_PO=52; S_OI=53; S_FP=54; S_HS=55
poll=f"s_mov_b64 exec, 0xfff1f\nbuffer_load_dword v{FR}, v{FA}, {WS}, 0 offen sc1\ns_mov_b64 exec, -1"
chk=f"v_cmp_lt_u32 vcc, v{FR}, v{FT}\ns_mov_b32 s{S_FM}, vcc_lo"
def need(A,mask,then=None):
    L=A.newlabel('fw'); E=A.newlabel('fe'); D=A.newlabel('fd')
    A(f"s_and_b32 s{Q+6}, s{S_FM}, {mask}\ns_cbranch_scc0 {E}")
    A.label(L)
    if OPT.get('pm',1): A(f"{poll.replace('0xfff1f',hex(mask))}\ns_andn2_b32 s{S_FM}, s{S_FM}, {mask}\ns_waitcnt vmcnt(0)\nv_cmp_lt_u32 vcc, v{FR}, v{FT}\ns_and_b32 s{Q+6}, vcc_lo, {mask}\ns_cbranch_scc0 {D}")
    else: A(f"{poll}\ns_waitcnt vmcnt(0)\n{chk}\ns_and_b32 s{Q+6}, s{S_FM}, {mask}\ns_cbranch_scc0 {D}")
    A(f"s_sleep {OPT.get('ps',1)}\ns_sub_u32 s{S_BUD}, s{S_BUD}, 1\ns_cbranch_scc0 {L}\ns_mov_b32 s{S_BUD}, 0")
    A.label(D)
    if then: then()
    A.label(E)
def es(A,k):
    if OPT.get('es'): A(f's_memrealtime s[{64+2*k}:{65+2*k}]')
def wl(r,k,x): return f"v_writelane_b32 v{r}, {x}, {k}"
ld=lambda d,so,off:f"buffer_load_dwordx4 {v(d,4)}, v1, {WS}, s{so} offen offset:{off}"
def set_a(A): A(f"s_add_u32 s{Q}, s{S_SA}, 1\ns_min_u32 s{Q}, s{Q}, {63 if OPT.get('dp',1) else 64}\n{wl(FT,0,f's{Q}')}\n{wl(FT,1,f's{Q}')}\ns_or_b32 s{S_FM}, s{S_FM}, 3")
def set_p(A): A(f"""s_lshr_b32 s{Q}, s{S_SP}, 3
    s_lshl_b32 s{Q+1}, s{Q}, 7
    s_add_u32 s{Q+1}, s{Q+1}, {WS_FL+F_Q*128}
    s_add_u32 s{Q}, s{Q}, 1
    s_lshr_b32 s{Q+2}, s{S_SP}, 2
    s_cmp_lt_u32 s{S_SP}, 8
    s_cselect_b32 s{Q}, s{Q+2}, s{Q}
    s_cselect_b32 s{Q+2}, 64, 32
    s_lshl_b32 s{Q}, s{Q}, 7
    s_add_u32 s{Q}, s{Q}, {WS_FL+F_KV*128}
    {wl(FA,2,f's{Q+1}')}
    {wl(FA,3,f's{Q}')}
    {wl(FT,3,f's{Q+2}')}
    s_or_b32 s{S_FM}, s{S_FM}, 12""")
MO=0xff00; MF=0xf0010
def set_s(A): A(f"s_mov_b64 exec, {MO}\nv_add_u32 v{FT}, 1, v{FT}\ns_mov_b64 exec, -1\ns_or_b32 s{S_FM}, s{S_FM}, {MO}")
def set_f(A): A(f"""s_lshr_b32 s{Q+6}, s{S_SF}, 3
    s_lshl_b32 s{Q+6}, s{Q+6}, 7
    s_add_u32 s{Q+6}, s{Q+6}, {WS_FL+F_BF*128}
    {wl(FA,4,f's{Q+6}')}
    {wl(FT,4,16)}
    s_mov_b64 exec, 0xf0000
    v_add_u32 v{FT}, 1, v{FT}
    s_mov_b64 exec, -1
    s_or_b32 s{S_FM}, s{S_FM}, {MF}""")
def sig(r):
    return f"s_barrier\ns_mov_b64 exec, 1\nv_mov_b32 v{ONE}, s{S_JA if r==S_DF else S_JS}\nbuffer_store_dword v{ONE}, off, {WS}, s{r}{SC[0]}\ns_mov_b64 exec, -1\ns_mov_b32 s{r}, s{S_OOB}"
def pre(A):
    i=S_RANK
    need(A,12)
    A(f"s_lshl_b32 s{Q}, s{S_SP}, 5\ns_add_u32 s{Q}, s{Q}, s{i}\ns_lshl_b32 s{Q+1}, s{Q}, 13\ns_lshl_b32 s{Q+2}, s{S_RT}, 12\ns_add_u32 s{Q+2}, s{Q+2}, s{Q+1}\ns_add_u32 s{Q+2}, s{Q+2}, {WS_QX}")
    for k in range(4): A(ld(QR+4*k,Q+2,k*1024))
    A(f"s_add_u32 s{Q+2}, s{Q+1}, {WS_KX}\ns_add_u32 s{Q+3}, s{Q+2}, 4096")
    for k in range(4): A(ld(KX+4*k,Q+2,k*1024)); A(ld(KX+16+4*k,Q+3,k*1024))
    A(f"s_lshl_b32 s{Q+2}, s{S_EH}, 12\ns_add_u32 s{Q+2}, s{Q+2}, s{Q+1}\ns_add_u32 s{Q+2}, s{Q+2}, {WS_VX}")
    for k in range(4): A(ld(VX+4*k,Q+2,k*1024))
    A(f"s_lshl_b32 s{Q}, s{Q}, 11\nbuffer_load_dwordx4 {v(XI,4)}, v{L32}, {s(S_A,4)}, s{Q} offen\nbuffer_load_dwordx4 {v(XI+4,4)}, v{L32}, {s(S_A,4)}, s{Q} offen offset:16")
    A(f"s_add_u32 s{Q}, s{S_JA}, 1\nv_readlane_b32 s{S_SP}, v{LS}, s{Q}")
    set_p(A)
def ldx(A,spec,sc=''):
    q=Q+4
    A(f"s_lshl_b32 s{q}, s{S_SA}, 5\ns_add_u32 s{q}, s{q}, s{S_RANK}")
    A(f"s_lshl_b32 s{q}, s{q}, 13\ns_add_u32 s{q}, s{q}, {WS_KM}")
    if spec: A(f"s_and_b32 s{q+1}, s{S_FM}, 3\ns_cselect_b32 s{q}, s{S_OOB}, s{q}")
    A(f"s_lshl_b32 s{q+1}, s{S_W}, 10\ns_add_u32 s{q+1}, s{q+1}, s{q}\ns_add_u32 s{q+2}, s{q+1}, 4096")
    for x in range(2): A(f"buffer_load_dwordx2 {v(KP+2*x,2)}, v1, {WS}, s{q+1+x} offen offset:8{sc}")
    A(f"s_lshl_b32 s{q+1}, s{S_EH}, 11\ns_add_u32 s{q+1}, s{q+1}, s{q}\ns_add_u32 s{q+2}, s{q+1}, 4096")
    for p in range(2):
        for x in range(2): A(f"buffer_load_dwordx2 {v(VM+4*p+2*x,2)}, v1, {WS}, s{q+1+x} offen offset:{p*1024}{sc}")
def att(A):
    i=S_RANK; w=S_W
    KM=128; S0=144; S1=148; SM=152; P=156; BH=160; BL=164; Lr=168; R=172; O=196; XU=212
    G=R+2
    for k in range(8):
        A(mf(S1 if k&1 else S0,KX+16*(k&1)+4*(k>>1),QR+4*(k>>1),(NEG1 if k&1 else NEG0) if k<2 else (S1 if k&1 else S0)))
        A(f"v_lshlrev_b32 v{XU+2*k}, 16, v{XI+k}\nv_and_b32 v{XU+2*k+1}, s{S_HI}, v{XI+k}")
    A(f"v_mul_f32 v{G}, v{XU}, v{GW}\nv_mul_f32 v{G+1}, v{XU+1}, v{GW+1}")
    for k in range(2,16): A(f"v_fmac_f32 v{G+(k&1)}, v{XU+k}, v{GW+k}")
    A(f"v_add_f32 v{G}, v{G}, v{G+1}")
    A(f"v_max3_f32 v{R}, v{S0}, v{S0+1}, v{S0+2}\nv_max3_f32 v{R+1}, v{S0+3}, v{S1}, v{S1+1}\nv_max3_f32 v{R}, v{R}, v{S1+2}, v{S1+3}\nv_max_f32 v{R}, v{R}, v{R+1}\nv_mov_b32 v{BL}, 0\nv_mov_b32 v{BH+1}, 0")
    A(f"s_or_b32 s{S_FM}, s{S_FM}, s{S_EA}")
    L1=A.newlabel('dp'); L2=A.newlabel('dq'); L3=A.newlabel('dr')
    dl=lambda:A(f"s_cmp_lg_u32 s{S_SA}, 63\ns_cbranch_scc1 {L3}\ns_sleep {OPT['dd']}\n{L3}:") if OPT.get('dd') else 0
    need(A,3,lambda:(es(A,0),dl(),ldx(A,False),A("s_waitcnt vmcnt(0)")))
    if OPT.get('dp',1):
        A(f"s_cmp_lg_u32 s{S_SA}, 63\ns_cbranch_scc1 {L2}\n{L1}:\ns_waitcnt vmcnt(0)\nv_max3_u32 v{T0}, v{KP}, v{KP+2}, v{VM}\nv_max3_u32 v{T1}, v{VM+2}, v{VM+4}, v{VM+6}\nv_max_u32 v{T0}, v{T0}, v{T1}\nv_cmp_eq_u32 vcc, -1, v{T0}\ns_cbranch_vccz {L2}")
        ldx(A,False,' sc1')
        A(f"s_sub_u32 s{S_BUD}, s{S_BUD}, 1\ns_cbranch_scc0 {L1}\ns_mov_b32 s{S_BUD}, 0\ns_waitcnt vmcnt(0)\n{L2}:")
    es(A,1)
    A(f"ds_write2_b32 v{XW}, v{KP}, v{KP+2} offset0:0 offset1:1\nds_write2_b32 v{XW}, v{KP+1}, v{KP+3} offset0:128 offset1:129\ns_waitcnt vmcnt(16) lgkmcnt(0)\ns_barrier")
    for k in range(8): A(f"ds_read_b64_tr_b16 {v(KM+2*k,2)}, v{XR} offset:{k*512}")
    A(sig(S_DP)[10:])
    for k,sh in enumerate((8,4,2,1)):
        A(f"v_add_f32_dpp v{G}, v{G}, v{G} row_ror:{sh} row_mask:0xf bank_mask:0xf")
        A(f"s_waitcnt lgkmcnt({6-2*k})"); A(mf(SM,KM+4*k,QR+4*k,'0' if k==0 else SM))
    xred(A,G,G+1,'v_add_f32')
    A(f"v_add_f32 v{SM}, v{SM}, v{SM+2}\nv_add_f32 v{SM+1}, v{SM+1}, v{SM+3}\nv_max3_f32 v{R}, v{R}, v{SM}, v{SM+1}")
    xred(A,R,R+1,'v_max_f32')
    A(f"v_mul_f32 v{R}, s{S_SC}, v{R}")
    for r in range(S0,S0+10): A(f"v_fma_f32 v{r}, v{r}, s{S_SC}, -v{R}")
    for r in range(S0,S0+10): A(f"v_exp_f32 v{r}, v{r}")
    for j in range(5): A(cv(P+j,S0+2*j))
    A(f"v_mov_b32 v{BL+1}, v{BH}")
    A(mf(Lr,ONES,P,'0'))
    A(f"v_mov_b64 {v(BH+2,2)}, {v(BH,2)}\nv_mov_b64 {v(BL+2,2)}, {v(BL,2)}")
    gt=[f"v_mul_f32 v{G}, 0xbfb8aa3b, v{G}",f"v_exp_f32 v{G}, v{G}",f"v_mfma_f32_16x16x16_bf16 {v(Lr,4)}, {v(ONES,2)}, {v(BH,2)}, {v(Lr,4)}\nv_add_f32 v{G}, 1.0, v{G}",f"v_rcp_f32 v{G}, v{G}"]
    for j in range(4):
        A(mf(O+4*j,VX+4*j,P,'0'))
        if j<2: A(gt[2*j])
        A(mf(O+4*j,VM+4*(j>>1),BL if j&1 else BH,O+4*j))
        if j<2: A(gt[2*j+1])
    A(f"""s_lshl_b32 s{Q}, s{S_SA}, 5
    s_add_u32 s{Q}, s{Q}, s{i}
    s_lshl_b32 s{Q}, s{Q}, 2
    s_add_u32 s{Q}, s{Q}, s{S_GO}
    v_rcp_f32 v{R}, v{Lr}
    s_lshl_b32 s{Q+2}, s{S_SA}, 18
    s_add_u32 s{Q+2}, s{Q+2}, s{S_OO}
    s_mov_b32 s{S_DF}, s{S_FO}""")
    for jj in range(2):
        for r in range(O+8*jj,O+8*jj+8): A(f"v_mul_f32 v{r}, v{R}, v{r}")
        for j in range(4): A(cv(S0+4*jj+j,O+8*jj+2*j))
        x=f"buffer_store_dwordx4 {v(S0+4*jj,4)}, v1, {WS}, s{Q+2} offen offset:{jj*1024}@"+(f"\ns_mov_b64 exec, 1\nbuffer_store_dword v{G}, off, {WS}, s{Q}@\ns_mov_b64 exec, -1" if jj else "")
        if SC[1]==SC[2]: A(x.replace('@',SC[1]))
        else:
            L1=A.newlabel('o1'); L2=A.newlabel('o2')
            A(f"s_cmp_eq_u32 s{S_MD}, 3\ns_cselect_b32 s{Q+3}, -1, s{S_SA}\ns_cmp_ge_i32 s{Q+3}, {OPT.get('th',40)}\ns_cbranch_scc1 {L1}\n{x.replace('@',SC[2])}\ns_branch {L2}\n{L1}:\n{x.replace('@',SC[1])}\n{L2}:")
    A(f"s_add_u32 s{S_JA}, s{S_JA}, 1\ns_mov_b32 s{S_SA}, s{S_SP}\ns_mov_b32 s{S_EA}, 3")
    set_a(A)
AO=lambda:OPT.get('al',3)&1
AP=lambda:OPT.get('al',3)&2
FB=228; Gv=244; RING=128
def dma(A):
    need(A,MO); es(A,4)
    A(f"s_xor_b32 s{S_LB}, s{S_LB}, 0x10000\nv_xor_b32 v{RR}, 0x10000, v{RR}\ns_lshl_b32 s{Q}, s{S_S}, 18\ns_add_u32 s{Q}, s{Q}, s{S_OI}")
    for c in range(4):
        A(f"s_add_u32 m0, s{S_LB}, {c*16384}\ns_add_u32 s{Q+1}, s{Q}, {(c>>1)*4096+(c&1)*32768 if AO() else (c>>1)*131072+(c&1)*16384}")
        for k in range(4): A(f"buffer_load_dwordx4 v1, {WS}, s{Q+1} offen offset:{k*1024} sc1 lds")
def fld(A,part=0):
    es(A,7); need(A,[MF,0x10,MF&~0x10][part]); es(A,8)
    A(f"s_lshl_b32 s{Q+2}, s{S_SF}, 16\ns_lshl_b32 s{Q+3}, s{S_SF}, 7")
    A(f"s_lshl_b32 s{Q}, s{S_SF}, 18\ns_min_u32 s{Q}, s{Q}, s{S_OOB}")
    for k in [range(8),range(4),range(4,8)][part]:
        if k>3 and AP(): A(f"s_add_u32 s{Q+1}, s{Q}, {WS_KX+(k-4)*65536}\nbuffer_load_dwordx2 {v(FB+2*k,2)}, v{BA}, {WS}, s{Q+1} offen sc1")
        else: A(f"s_add_u32 s{Q+1}, s{Q+2}, {WS_BF+k*4*MB}\nbuffer_load_dwordx2 {v(FB+2*k,2)}, v{BA}, {WS}, s{Q+1} offen")
    if part!=1: A(f"buffer_load_dword v{Gv}, v{GA}, {WS}, s{Q+3} offen sc1")
def fin(A):
    t=RING
    for k in range(16): A(f"v_lshlrev_b32 v{t+2*k}, 16, v{FB+k}\nv_and_b32 v{t+2*k+1}, s{S_HI}, v{FB+k}")
    for u in (t,t+16):
        for k in range(4): A(f"v_add_f32 v{u+k}, v{u+k}, v{u+4+k}\nv_add_f32 v{u+8+k}, v{u+8+k}, v{u+12+k}")
        for k in range(4): A(f"v_add_f32 v{u+k}, v{u+k}, v{u+8+k}")
    for k in range(4): A(f"v_sub_f32 v{t+16+k}, v{t+16+k}, v{t+k}")
    for k in range(4): A(f"v_fma_f32 v{t+k}, v{t+16+k}, v{Gv}, v{t+k}")
    A(cv(t,t)); A(cv(t+1,t+2))
    A(f"buffer_store_dwordx2 {v(t,2)}, v{OA}, {s(S_OUT,4)}, s{Q+2} offen {OPT.get('nto','')}")
def gstage(A,last):
    D=OPT.get('gd',6); PK=160
    rd=lambda n:A(f"ds_read_b128 {v(RING+4*(n&7),4)}, v{RR} offset:{n*1024}")
    def put(rt):
        for j in range(4): A(cv(PK+4*rt+j,ACC+8*rt+2*j))
        x=f"buffer_store_dwordx4 {v(PK+4*rt,4)}, v1, {WS}, s{Q+7} offen offset:{rt*1024}"
        if last or SC[1]==SC[2] or not OPT.get('th',40): A(x+SC[2 if last else 1]); return
        L1=A.newlabel('p1'); L2=A.newlabel('p2')
        A(f"s_cmp_ge_u32 s{S_HS}, {OPT.get('th',40)}\ns_cbranch_scc1 {L1}\n{x}{SC[2]}\ns_branch {L2}\n{L1}:\n{x}{SC[1]}\n{L2}:")
    A(f"s_lshl_b32 s{Q+7}, s{S_S}, {18 if AP() else 16}\ns_add_u32 s{Q+7}, s{Q+7}, s{S_PO}\ns_mov_b32 s{S_DP}, s{S_FP}\ns_mov_b32 s{S_HS}, s{S_S}\ns_add_u32 s{S_JS}, s{S_JS}, 1")
    if not last: A(f"v_readlane_b32 s{S_S}, v{LS}, s{S_JS}"); set_s(A)
    A(f"s_waitcnt vmcnt({12 if last else 22})\ns_barrier")
    nr=0; es(A,5)
    for n in range(64):
        rt,k=n>>5,n&31
        while nr<min(64,n+D):
            if last and nr and nr%16==0: A(f"s_waitcnt vmcnt({12-nr//4})\ns_barrier")
            rd(nr); nr+=1
        A(f"s_waitcnt lgkmcnt({nr-1-n})")
        for nt in range(2): A(mf(ACC+8*rt+4*nt,a((k*2+nt)*4,4),RING+4*(n&7),'0' if k==0 else ACC+8*rt+4*nt))
        if last:
            if n==44: put(0)
            if n==43 and OPT.get('wb',0)&4: wbl2(A)
        else:
            if n==OPT.get('g1',10): A("s_waitcnt vmcnt(18)"); A(sig(S_DF)); A(poll)
            if n==OPT.get('g2',34): A("s_waitcnt vmcnt(0)"); A(chk); fld(A); ldx(A,True); A(f"s_and_b32 s{S_EA}, s{S_FM}, 3")
            if n==OPT.get('g3',52): A(poll)
    if not last: put(0)
    put(1)
    if not last: A("s_waitcnt vmcnt(2)"); A(chk); fin(A)
    if not last: A(f"s_mov_b32 s{S_SF}, s{S_HS}"); set_f(A)
def tail_role(A,stamp,o):
    i=S_RANK; w=S_W; c=64; g=65; u=66; OPT.update(o)
    segs=[[] for y in range(6)]; fr=list(o.get('tf',[104,101,140,137,125,131]))
    for sg in range(64):
        y=min(range(6),key=lambda y:(fr[y],y)); segs[y].append(sg); fr[y]=max(fr[y],o.get('t0',20.5)+o.get('t1',2.31)*(sg+1))+o.get('tc',3.8)
    for k,y in enumerate(o.get('lo',[2,0,3,4,1,5])): segs[y][-1]=58+k
    if o.get('v'): print(segs)
    assert sorted(sum(segs,[]))==list(range(64)) and all(len(L)!=1 for L in segs)
    A(f"v_mov_b32 v{LS}, 64")
    for y,L in enumerate(segs):
        N=A.newlabel('sl')
        A(f"s_cmp_lg_u32 s{S_Y}, {y}\ns_cbranch_scc1 {N}")
        if not L: A("s_branch L_fin")
        for j,sg in enumerate(L): A(wl(LS,j,sg))
        A.label(N)
    srd(A,S_B0,P_WO,8*MB); srd(A,S_B1,P_GW,2048); srd(A,S_A,P_X,4*MB)
    A(f"""v_lshrrev_b32 v{u}, 2, v0
    v_lshlrev_b32 v{u}, 11, v{u}
    v_and_b32 v{u+1}, 3, v0
    v_lshl_add_u32 v{u}, v{u+1}, 4, v{u}
    s_lshr_b32 s{Q+3}, s{i}, 3
    s_lshl_b32 s{Q}, s{Q+3}, 21
    s_and_b32 s{Q+4}, s{i}, 7
    s_lshl_b32 s{Q+4}, s{Q+4}, 2
    s_add_u32 s{Q+4}, s{Q+4}, s{w}
    s_lshl_b32 s{Q+1}, s{Q+4}, 6
    s_add_u32 s{Q}, s{Q}, s{Q+1}
    s_lshl_b32 s{Q+1}, s{i}, 6
    s_lshl_b32 s{S_PO}, s{Q+3}, {16 if AP() else 22}
    s_lshl_b32 s{Q+4}, s{Q+4}, 11
    s_add_u32 s{S_PO}, s{S_PO}, s{Q+4}
    s_add_u32 s{S_PO}, s{S_PO}, {WS_KX if AP() else WS_AP}
    s_lshl_b32 s{S_LB}, s{w}, 12
    s_lshl_b32 s{S_OI}, s{Q+3}, 15
    s_add_u32 s{S_OI}, s{S_OI}, s{S_LB}
    s_lshl_b32 s{S_OI}, s{S_OI}, {AO()}
    s_add_u32 s{S_OI}, s{S_OI}, {WS_QX if AO() else WS_O}
    v_add_u32 v{u}, s{Q}, v{u}
    s_lshl_b32 s{Q+2}, s{w}, 15
    v_lshrrev_b32 v{u+2}, 2, v0
    v_lshlrev_b32 v{u+2}, 6, v{u+2}
    v_lshl_add_u32 v{u+2}, v{u+1}, 3, v{u+2}
    v_add_u32 v{u+2}, s{Q+2}, v{u+2}
    v_lshlrev_b32 v{L32}, 5, v0
    buffer_load_dwordx4 {v(ACC,4)}, v{L32}, {s(S_B1,4)}, 0 offen
    buffer_load_dwordx4 {v(ACC+4,4)}, v{L32}, {s(S_B1,4)}, 0 offen offset:16""")
    A(f"s_lshl_b32 s{Q}, s{S_VX}, 4\nbuffer_load_dword v62, off, {s(S_DBG,4)}, s{Q} sc1")
    def dm(n): A(f"s_add_u32 m0, s{Q+2}, {(n&31)*1024}\ns_mov_b32 s{Q}, {n*32768}\nbuffer_load_dwordx4 v{u}, {s(S_B0,4)}, s{Q} offen lds")
    WW=o.get('ww',32)
    for n in range(WW): dm(n)
    A(f"""s_mov_b32 s{S_SC}, 0x3e0293ee
    s_mov_b32 s{S_HI}, 0xffff0000
    s_lshr_b32 s{S_RT}, s{w}, 1
    s_and_b32 s{S_EH}, s{w}, 1
    v_mov_b32 v{ONE}, 1
    v_lshlrev_b32 v{L8}, 3, v0
    v_and_b32 v{c}, 15, v0
    v_lshrrev_b32 v{g}, 4, v0
    s_lshl_b32 s{Q}, s{S_RT}, 4
    v_add_u32 v{u+3}, s{Q}, v{c}
    v_lshlrev_b32 v{GA}, 2, v{u+3}
    v_add_u32 v{GA}, {WS_G}, v{GA}
    v_lshlrev_b32 v{OA}, 11, v{u+3}
    v_lshl_add_u32 v{OA}, v{g}, 3, v{OA}
    s_lshl_b32 s{Q}, s{S_EH}, 5
    s_add_u32 s{Q}, s{Q}, s{Q+1}
    v_add_u32 v{OA}, s{Q}, v{OA}
    s_lshl_b32 s{Q}, s{i}, 11
    s_lshl_b32 s{Q+1}, s{S_RT}, 10
    s_add_u32 s{Q}, s{Q}, s{Q+1}
    s_lshl_b32 s{Q+1}, s{S_EH}, 3
    s_add_u32 s{Q}, s{Q}, s{Q+1}
    v_add_u32 v{BA}, s{Q}, v1
    v_mov_b32 v{RR}, v1
    v_lshlrev_b32 v{u+4}, 2, v{g}
    v_sub_u32 v{u+3}, v{u+3}, v{u+4}
    v_mov_b32 v{u+4}, 0xf149f2ca""")
    for k in range(8): A(f"v_cmp_gt_i32 vcc, {(k>>2)*16+(k&3)}, v{u+3}\nv_cndmask_b32 v{NEG0+k}, 0, v{u+4}, vcc")
    for k in range(4): A(f"v_mov_b32 v{ONES+k}, 0x3f803f80")
    A(f"""v_lshrrev_b32 v{u+3}, 2, v{c}
    v_xor_b32 v{u+3}, v{u+3}, v{g}
    v_lshlrev_b32 v{u+3}, 3, v{u+3}
    v_lshl_add_u32 v{u+3}, v{c}, 5, v{u+3}
    s_lshl_b32 s{Q}, s{w}, 10
    s_add_u32 s{Q}, s{Q}, {L_X}
    v_add_u32 v{XW}, s{Q}, v{u+3}
    v_xor_b32 v{u+3}, v{u+1}, v{g}
    v_lshlrev_b32 v{u+3}, 3, v{u+3}
    v_lshrrev_b32 v{u+4}, 2, v0
    v_lshl_add_u32 v{u+3}, v{u+4}, 5, v{u+3}
    v_add_u32 v{XR}, {L_X}, v{u+3}
    s_mov_b32 s{Q}, 0x10000000
    s_cmp_eq_u32 s{w}, 0
    s_cselect_b32 s{S_GO}, {WS_G}, s{Q}
    s_cselect_b32 s{S_FO}, {WS_FL+F_O*128}, s{Q}
    s_lshl_b32 s{Q}, s{S_Y}, 5
    s_add_u32 s{Q}, s{Q}, s{i}
    s_lshl_b32 s{Q}, s{Q}, 7
    s_add_u32 s{S_FO}, s{S_FO}, s{Q}
    s_add_u32 s{S_FP}, s{S_FO}, {(F_P-F_O)*128}
    s_lshl_b32 s{S_OO}, s{S_RT}, {12 if AO() else 17}
    s_lshl_b32 s{Q}, s{i}, {12+AO()}
    s_add_u32 s{S_OO}, s{S_OO}, s{Q}
    s_lshl_b32 s{Q}, s{S_EH}, 11
    s_add_u32 s{S_OO}, s{S_OO}, s{Q}
    s_add_u32 s{S_OO}, s{S_OO}, {WS_QX if AO() else WS_O}""")
    A(f"s_waitcnt vmcnt({WW})")
    for k in range(8): A(f"v_lshlrev_b32 v{GW+2*k}, 16, v{ACC+k}\nv_and_b32 v{GW+2*k+1}, s{S_HI}, v{ACC+k}")
    for grp in range(8):
        A(f"s_waitcnt vmcnt({min(WW-8,8*(7-grp))})")
        for ks in range(4*grp,4*grp+4):
            for nt in range(2):
                for hf in range(2): A(f"ds_read_b64_tr_b16 {a((ks*2+nt)*4+2*hf,2)}, v{u+2} offset:{(ks&15)*2048+hf*1024+nt*32}")
        if WW+8*grp<64:
            A("s_waitcnt lgkmcnt(0)")
            for n in range(WW+8*grp,WW+8+8*grp): dm(n)
    if o.get('dry',0):
        assert AP()
        A(f"s_waitcnt lgkmcnt(0)\ns_barrier\ns_mov_b32 s{S_S}, 0x400\ns_mov_b32 s{S_FM}, 0\ns_mov_b32 s{S_MD}, 5\nv_mov_b32 v{FA}, 0\ns_branch T_last")
        A.label('T_init')
    A(f"""s_waitcnt lgkmcnt(0)
    v_readlane_b32 s{S_S}, v{LS}, 0
    s_mov_b32 s{S_OOB}, 0x10000000
    s_mov_b32 s{S_DF}, s{S_OOB}
    s_mov_b32 s{S_DP}, s{S_OOB}
    s_mov_b32 s{S_SF}, 0x1000
    s_mov_b32 s{S_MD}, 0
    s_mov_b32 s{S_JA}, 0
    s_mov_b32 s{S_JS}, 0
    s_mov_b32 s{S_EA}, 3
    s_mov_b32 s{S_FM}, 0
    s_mov_b32 s{S_SA}, s{S_S}
    s_mov_b32 s{S_SP}, s{S_S}
    s_lshl_b32 s{Q}, s{i}, 8
    s_add_u32 s{Q}, s{Q}, {WS_FL+F_PROG*128}
    v_mov_b32 v{FA}, s{Q}
    s_add_u32 s{Q}, s{Q}, 128
    {wl(FA,1,f's{Q}')}
    v_mov_b32 v{FT}, 0
    v_mov_b32 v{FR}, 0
    {wl(FT,2,16)}
    s_lshl_b32 s{Q}, s{S_Y}, 5
    s_and_b32 s{Q+1}, s{i}, 24
    s_add_u32 s{Q+1}, s{Q+1}, s{Q}
    s_lshl_b32 s{Q+1}, s{Q+1}, 7
    s_add_u32 s{Q+1}, s{Q+1}, {WS_FL+(F_O-8)*128}
    s_mov_b64 exec, {MO}
    v_lshl_add_u32 v{FA}, v0, 7, s{Q+1}
    s_lshr_b32 s{Q+1}, s{i}, 2
    s_add_u32 s{Q+1}, s{Q+1}, s{Q}
    s_lshl_b32 s{Q+1}, s{Q+1}, 7
    s_add_u32 s{Q+1}, s{Q+1}, {WS_FL+(F_P-128)*128}
    s_mov_b64 exec, 0xf0000
    v_lshl_add_u32 v{FA}, v0, 10, s{Q+1}
    s_mov_b64 exec, -1""")
    set_a(A); set_p(A); set_s(A)
    stamp(A,T0)
    tf_=o.get('tfast',5)
    A(f"v_readfirstlane_b32 s{Q}, v62\ns_cmp_lt_u32 s{Q}, {32 if not o.get('fakexcc') else 999}\ns_cbranch_scc1 ST_pre")
    for P in ('','S'):
        SC[:]=[' sc1' if P or not tf_&1 else '',' sc1' if P or not tf_&2 else '',' sc1' if P or not tf_&6 else '']
        A.label(P+'T_pre')
        pre(A)
        A(f"s_cmp_eq_u32 s{S_MD}, 2\ns_cbranch_scc1 {P}T_g\ns_waitcnt vmcnt(0)\ns_cmp_eq_u32 s{S_MD}, 0\ns_cbranch_scc1 {P}T_att\ns_mov_b32 s{S_MD}, 2")
        A.label(P+'T_loop')
        dma(A)
        A(f"s_cmp_lt_u32 s{S_SP}, 64\ns_cbranch_scc1 {P}T_att\ns_waitcnt vmcnt(0)\n{sig(S_DP)}\ns_branch {P}T_g")
        A.label(P+'T_att')
        att(A); es(A,2)
        A(f"s_cmp_eq_u32 s{S_MD}, 2\ns_cbranch_scc1 {P}T_pre\ns_waitcnt vmcnt(0)\n{sig(S_DF)}\ns_add_u32 s{S_MD}, s{S_MD}, 1\ns_cmp_eq_u32 s{S_MD}, 1\ns_cbranch_scc1 {P}T_pre")
        A.label(P+'T_last'); es(A,3)
        dma(A); gstage(A,True)
        if o.get('dry',0): A(f"s_cmp_eq_u32 s{S_MD}, 5\ns_cbranch_scc1 T_init")
        es(A,6); A(f"s_waitcnt vmcnt(0)\n{sig(S_DP)}")
        fld(A,2); A("s_waitcnt vmcnt(0)"); es(A,9); fin(A); stamp(A,T0)
        A("s_branch T_end")
        A.label(P+'T_g')
        gstage(A,False)
        stamp(A,T0)
        A(f"s_cmp_lg_u32 s{S_JS}, s{S_JA}\ns_cbranch_scc1 {P}T_loop\ns_mov_b32 s{S_MD}, 3")
        A.label(P+'T_fb'); es(A,6)
        A(f"s_waitcnt vmcnt(0)\n{sig(S_DP)}")
        fld(A); A("s_waitcnt vmcnt(0)"); es(A,9); fin(A)
        stamp(A,T0)
        A(f"s_mov_b32 s{S_SF}, s{S_SA}"); set_f(A); fld(A,1)
        if o.get('wb',0)&2: wbl2(A)
        A(f"s_branch {P}T_att")
    A.label('T_end')
    if o.get('wb',0)&8: A("s_waitcnt vmcnt(0)\ns_barrier"); wbl2(A,not o['wb']&16)
    if o.get('es'):
        es(A,10); A("s_waitcnt vmcnt(0)"); es(A,11); A("s_waitcnt lgkmcnt(0)")
        for k in range(12): A(wl(T0,k,f's{64+2*k}'))
        A(f"s_and_b32 s98, s98, 0xfffff000\ns_lshl_b32 s{Q}, s{w}, 6\ns_add_u32 s98, s98, s{Q}\nv_lshlrev_b32 v{T1}, 2, v0\ns_mov_b64 exec, 0xfff\nbuffer_store_dword v{T0}, v{T1}, {WS}, s98 offen offset:1024\ns_mov_b64 exec, -1")
```
